```python
import torch

def _softmax(x, axis=-1):
    return torch.softmax(x, dim=axis)
def _gelu(x):
    return torch.nn.functional.gelu(x, approximate="tanh")
def _silu(x):
    return torch.nn.functional.silu(x)
def _sigmoid(x):
    return torch.sigmoid(x)
def _layernorm(x, axis=-1, eps=1e-5):
    m = x.mean(dim=axis, keepdim=True)
    v = x.var(dim=axis, keepdim=True, unbiased=False)
    return (x - m) / torch.sqrt(v + eps)
def _scatter_add(tgt, idx, src, axis=0):
    return tgt.clone().index_add_(axis, idx, src)
def _segment_sum(src, seg, n):
    out = torch.zeros((n,) + src.shape[1:], dtype=src.dtype)
    return out.index_add_(0, seg, src)
def _pad(x, pw):
    flat = tuple(v for pair in reversed(pw) for v in pair)
    return torch.nn.functional.pad(x, flat)

kernel_name = 'standalone__modern_conv_block_replknet__vision'

def setup_inputs():

    _w = (lambda a: (lambda t: t.to(torch.bfloat16) if t.is_floating_point() else t)(torch.as_tensor(a)))
    H = W = 384
    C = 96
    K = 3
    return {
        "x": _w((lambda *s: torch.randn(*s, dtype=torch.bfloat16) * 0.05)(1, H, W, C)),
        "dw_large": _w((lambda *s: torch.randn(*s, dtype=torch.bfloat16) * 0.4)(K, K, C) * (1.0 / K)),
        "dw_small": _w((lambda *s: torch.randn(*s, dtype=torch.bfloat16) * 0.4)(5, 5, C) * 0.2),
        "w1": _w((lambda *s: torch.randn(*s, dtype=torch.bfloat16) * 0.4)(C, 4 * C) * (C ** -0.5)),
        "w2": _w((lambda *s: torch.randn(*s, dtype=torch.bfloat16) * 0.1)(4 * C, C) * ((4 * C) ** -0.5)),
    }

def reference(x, dw_large, dw_small, w1, w2):
    B, H, W, C = x.shape
    Kl = dw_large.shape[0]
    pl = (Kl - 1) // 2
    xpl = _pad(x, ((0,0),(pl,pl),(pl,pl),(0,0)))
    out = torch.zeros_like(x)
    for i in range(Kl):
        for j in range(Kl):
            out = out + xpl[:, i:i+H, j:j+W, :] * dw_large[i, j][None, None, None, :]
    Ks = dw_small.shape[0]
    ps = (Ks - 1) // 2
    xps = _pad(x, ((0,0),(ps,ps),(ps,ps),(0,0)))
    for i in range(Ks):
        for j in range(Ks):
            out = out + xps[:, i:i+H, j:j+W, :] * dw_small[i, j][None, None, None, :]
    h = _layernorm(out, axis=-1)
    h = _gelu(torch.einsum('bhwc,ce->bhwe', h, w1))
    h = torch.einsum('bhwe,ec->bhwc', h, w2)
    return x + h
```

```python
import sys, struct, math
NAME = "standalone__modern_conv_block_replknet__vision"
OPT = dict(store_mod="", pf=1, stamp=0)
for a in sys.argv[2:]:
    k, v = a.split("=")
    OPT[k] = int(v) if v.lstrip("-").isdigit() else v.replace("+", " ")

def f2u(x): return struct.unpack("<I", struct.pack("<f", x))[0]
K0 = 2.0 * math.sqrt(2.0 / math.pi) * math.log2(math.e)
K1 = K0 * 0.044715
SC = K1 ** (1.0 / 3.0)
C0 = K0 / SC

L = []
def e(s): L.append("  " + s)
def lab(s): L.append(s + ":")
def cm(s): L.append("  ; " + s)
def vr(b, n): return f"v[{b}:{b+n-1}]"

SLOT = 12288
ST = 61440
S = [69632, 116736]
X4 = 147456
ROWP = 145 * 16
LDS_TOTAL = 163840
XBYTES = 384 * 384 * 192
ROWB = 384 * 192

sX, sO, sW1, sW2, sDS, sDL = 4, 8, 12, 16, 20, 24
sW = 28
sCU = 29
sT0, sT1, sT2, sT3 = 30, 31, 32, 33
sBASE = 34
sBFL = 39
sC0 = 44
sSC = 46
sMSK = 48
sJ1, sJ2 = 56, 57
sDBG = 60
sTS = 64

vTID = 0
vA1, vA2 = 1, 2
vPX = 3
vLIN = 4
vT0, vT1, vT2, vT3 = 5, 6, 7, 8
vIN = 9
vXW = 10
vIDX = 13
vFL = 14
vPF = 15
vX = 16
vXP = 40
vO = 64
vH = [112, 128]
vT = 144
vU = 160
vY = 176
vF1 = 184
vF2 = 208
vRES = 232
vCW = 64
vREL = 104
vW1O = 110
vDUM = 111
vACC = 112
vB = 144
vP = 216
vS = 136

def stamp(i):
    if OPT["stamp"]:
        e(f"s_memtime s[{sTS+2*i}:{sTS+2*i+1}]")

def srd(d, ptr, nbytes):
    e(f"s_mov_b32 s{d}, s{ptr}")
    e(f"s_mov_b32 s{d+1}, s{ptr+1}")
    e(f"s_mov_b32 s{d+2}, {nbytes}")
    e(f"s_mov_b32 s{d+3}, 0x20000")

uid = [0]
def newlab(p):
    uid[0] += 1
    return f"L_{p}_{uid[0]}"

def dma_block(k):
    n = 46 if k < 4 else 30
    cm(f"input DMA block {k}")
    e(f"s_sub_u32 s{sT0}, s{sBASE+k}, {2*ROWB + 2*192}")
    e(f"s_lshl_b32 s{sT1}, s{sW}, 10")
    e(f"s_add_u32 s{sT1}, s{sT1}, {S[k&1]}")
    e(f"s_and_b32 s{sT2}, s{sBFL+k}, 1")
    e(f"s_mul_i32 s{sT2}, s{sT2}, 0x3f")
    e(f"s_and_b32 s{sT3}, s{sBFL+k}, 2")
    e(f"s_mul_i32 s{sT3}, s{sT3}, 0x1f80")
    e(f"s_or_b32 s{sT2}, s{sT2}, s{sT3}")
    e(f"v_and_b32 v{vT3}, s{sT2}, v{vFL}")
    e(f"v_lshrrev_b32 v{vT2}, 8, v{vT3}")
    e(f"v_or_b32 v{vT3}, v{vT3}, v{vT2}")
    ni = (n + 7) // 8
    for i in range(ni):
        skip = None
        if 8 * i + 7 >= n:
            skip = newlab("skipdma")
            e(f"s_cmp_ge_u32 s{sW}, {n - 8*i}")
            e(f"s_cbranch_scc1 {skip}")
        t = vT0 + (i & 1)
        e(f"v_lshlrev_b32 v{vT2}, {31-i}, v{vT3}")
        e(f"v_add_u32 v{t}, s{sT0}, v{vREL+i}")
        e(f"s_add_u32 m0, s{sT1}, {8192*i}")
        e(f"v_and_b32 v{vT2}, 0x80000000, v{vT2}")
        e(f"v_or_b32 v{t}, v{t}, v{vT2}")
        e(f"buffer_load_dwordx4 v{t}, s[{sX}:{sX+3}], 0 offen lds")
        if skip: lab(skip)
    return ni - 1

def wait_vm(a, b):
    l1, l2 = newlab("wv"), newlab("wv")
    e(f"s_cmp_ge_u32 s{sW}, 6")
    e(f"s_cbranch_scc1 {l1}")
    e(f"s_waitcnt vmcnt({a})")
    e(f"s_branch {l2}")
    lab(l1)
    e(f"s_waitcnt vmcnt({b})")
    lab(l2)

def prefetch(k):
    if not OPT["pf"]: return 0
    cm(f"L2 prefetch block {k}")
    e(f"s_sub_u32 s{sT0}, s{sBASE+k}, {2*ROWB + 2*192}")
    e(f"v_add_u32 v{vT0}, s{sT0}, v{vPF}")
    e(f"v_and_b32 v{vT1}, 0x80000000, v{vPF}")
    e(f"v_or_b32 v{vT0}, v{vT0}, v{vT1}")
    e(f"buffer_load_dword v{vDUM}, v{vT0}, s[{sX}:{sX+3}], 0 offen")
    e(f"buffer_load_dword v{vDUM}, v{vT0}, s[{sX}:{sX+3}], 0 offen offset:64")
    return 2

def dma_w(slots):
    skip = newlab("skipw")
    cm(f"weight DMA slots {slots}")
    e(f"s_cmp_ge_u32 s{sW}, 6")
    e(f"s_cbranch_scc1 {skip}")
    e(f"s_mul_i32 s{sT0}, s{sW}, 12288")
    e(f"s_lshl_b32 s{sT1}, s{sW}, 10")
    for j in slots:
        e(f"s_add_u32 m0, s{sT1}, {j*SLOT}")
        e(f"s_add_u32 s{sT2}, s{sT0}, {j*64}")
        e(f"buffer_load_dwordx4 v{vW1O}, s[{sW1}:{sW1+3}], s{sT2} offen lds")
        e(f"s_add_u32 m0, s{sT1}, {j*SLOT+6144}")
        e(f"s_add_u32 s{sT2}, s{sT1}, {j*6144}")
        e(f"buffer_load_dwordx4 v{vLIN}, s[{sW2}:{sW2+3}], s{sT2} offen lds")
    lab(skip)

def conv_block(k):
    R = 2 if k < 4 else 1
    sb = S[k & 1]
    cm(f"---- conv block {k}")
    if R == 2:
        e(f"v_add_u32 v{vT0}, {sb}, v{vIN}")
    else:
        e(f"v_bfe_u32 v{vT1}, v{vTID}, 1, 3")
        e(f"v_mul_u32_u24 v{vT1}, {ROWP}, v{vT1}")
        e(f"v_sub_u32 v{vT0}, v{vIN}, v{vT1}")
        e(f"v_add_u32 v{vT0}, {sb}, v{vT0}")
    reads = []
    for q in range(3):
        for f in range(3):
            for rp in range(4):
                col = 4 * (rp >> 1) + (rp & 1)
                d = vB + q * 24 + f * 8 + 2 * rp
                reads.append(f"ds_read_b64 {vr(d,2)}, v{vT0} offset:{2*f*ROWP + col*192 + 8*q}")
    for r in reads[:12]: e(r)
    nxt = 12
    statq = []
    for q in range(3):
        for f in range(3):
            idx = q * 3 + f
            outstanding_after = min(36, nxt) - 4 * (idx + 1)
            e(f"s_waitcnt lgkmcnt({outstanding_after})")
            for rho in range(R):
                a = vCW + 12 * q + 4 * f + (2 if rho == 0 else 0)
                e(f"v_smfmac_f32_16x16x64_bf16 {vr(vACC + rho*12 + 4*q, 4)}, {vr(a,4)}, {vr(vB + q*24 + f*8, 8)}, v{vIDX}")
            for r in reads[nxt:nxt+4]: e(r)
            nxt += 4
    e("s_nop 7")
    for rho in range(R):
        a = vACC + rho * 12
        s2, q2 = vS + 4, vS + 6
        e(f"v_pk_add_f32 {vr(s2,2)}, {vr(a,2)}, {vr(a+2,2)}")
        e(f"v_pk_mul_f32 {vr(q2,2)}, {vr(a,2)}, {vr(a,2)}")
        for i in range(1, 6):
            if i >= 2: e(f"v_pk_add_f32 {vr(s2,2)}, {vr(s2,2)}, {vr(a+2*i,2)}")
            e(f"v_pk_fma_f32 {vr(q2,2)}, {vr(a+2*i,2)}, {vr(a+2*i,2)}, {vr(q2,2)}")
        e(f"v_add_f32 v{vS+2*rho}, v{s2}, v{s2+1}")
        e(f"v_add_f32 v{vS+2*rho+1}, v{q2}, v{q2+1}")
    e(f"s_lshl_b32 s{sT0}, s{sW}, 10")
    e(f"v_add_u32 v{vT1}, s{sT0}, v{vLIN}")
    e(f"ds_write_b128 v{vT1}, {vr(vS,4)} offset:{ST}")
    e("s_waitcnt lgkmcnt(0)")
    e("s_barrier")
    for w in range(8):
        e(f"ds_read_b128 {vr(vP+4*w,4)}, v{vLIN} offset:{ST + 1024*w if ST + 1024*w < 65536 else 0}") if ST + 1024*w < 65536 else None
    if ST + 7 * 1024 >= 65536:
        e(f"v_add_u32 v{vT1}, {ST}, v{vLIN}")
        for w in range(8):
            if ST + 1024 * w >= 65536:
                e(f"ds_read_b128 {vr(vP+4*w,4)}, v{vT1} offset:{1024*w}")
    for w in range(1, 8):
        e(f"s_waitcnt lgkmcnt({7-w})")
        for rho in range(R):
            e(f"v_pk_add_f32 {vr(vP+2*rho,2)}, {vr(vP+2*rho,2)}, {vr(vP+4*w+2*rho,2)}")
    for rho in range(R):
        sm, sq = vP + 2 * rho, vP + 2 * rho + 1
        rs, nb = vS + 2 * rho, vS + 2 * rho + 1
        e(f"v_mul_f32 v{sm}, {hex(f2u(1.0/96))}, v{sm}")
        e(f"v_mul_f32 v{sq}, {hex(f2u(1.0/96))}, v{sq}")
        e(f"v_fma_f32 v{sq}, -v{sm}, v{sm}, v{sq}")
        e(f"v_max_f32 v{sq}, 0, v{sq}")
        e(f"v_add_f32 v{sq}, {hex(f2u(1e-5))}, v{sq}")
        e(f"v_rsq_f32 v{sq}, v{sq}")
        e("s_nop 0")
        e(f"v_mul_f32 v{rs}, {hex(f2u(SC))}, v{sq}")
        e(f"v_mul_f32 v{nb}, v{sm}, v{rs}")
    xb = sb if R == 2 else X4
    for q in range(3):
        e(f"v_add_u32 v{vT0+q}, {xb}, v{vXW+q}")
    for rho in range(R):
        a = vACC + rho * 12
        for i in range(6):
            e(f"v_pk_fma_f32 {vr(a+2*i,2)}, {vr(a+2*i,2)}, {vr(vS+2*rho,2)}, {vr(vS+2*rho,2)} op_sel:[0,0,1] op_sel_hi:[1,0,1] neg_lo:[0,0,1] neg_hi:[0,0,1]")
        for q in range(3):
            d = vP + 8 + rho * 6 + 2 * q
            e(f"v_cvt_pk_bf16_f32 v{d}, v{a+4*q}, v{a+4*q+1}")
            e(f"v_cvt_pk_bf16_f32 v{d+1}, v{a+4*q+2}, v{a+4*q+3}")
            e(f"ds_write_b64 v{vT0+q}, {vr(d,2)} offset:{rho*12288}")
    e("s_waitcnt lgkmcnt(0)")
    e("s_barrier")
    if k < 4:
        skip = newlab("skippick")
        e(f"s_lshr_b32 s{sT0}, s{sW}, 2")
        e(f"s_cmp_lg_u32 s{sT0}, {k&1}")
        e(f"s_cbranch_scc1 {skip}")
        e(f"s_and_b32 s{sT0}, s{sW}, 3")
        e(f"s_mul_i32 s{sT0}, s{sT0}, 6144")
        e(f"s_add_u32 s{sT0}, s{sT0}, {sb}")
        e(f"v_add_u32 v{vT0}, s{sT0}, v{vLIN}")
        d = vX if k < 2 else vXP
        for s in range(6):
            e(f"ds_read_b128 {vr(d+4*s,4)}, v{vT0} offset:{1024*s}")
        e("s_waitcnt lgkmcnt(0)")
        lab(skip)

def zero_acc(R=2):
    for i in range(12 * R): e(f"v_mov_b32 v{vACC+i}, 0")

class Addr:
    def __init__(self): self.b = {vA1: 0, vA2: 0}
    def off(self, reg, slot, extra):
        o = (slot - self.b[reg]) * SLOT + extra
        return o
    def ensure(self, reg, slot):
        if not (0 <= (slot - self.b[reg]) * SLOT and (slot - self.b[reg] + 1) * SLOT <= 65536):
            d = (slot - self.b[reg]) * SLOT
            if d > 0: e(f"v_add_u32 v{reg}, {d}, v{reg}")
            else: e(f"v_subrev_u32 v{reg}, {-d}, v{reg}")
            self.b[reg] = slot
AD = Addr()
def f1_reads(slot):
    AD.ensure(vA1, slot)
    return [f"ds_read_b64_tr_b16 {vr(vF1+4*s+2*t,2)}, v{vA1} offset:{AD.off(vA1, slot, (16*s+4*t)*64)}" for s in range(6) for t in range(2)]
def f2_reads(slot):
    AD.ensure(vA2, slot)
    return [f"ds_read_b64_tr_b16 {vr(vF2+12*s+4*T+2*t,2)}, v{vA2} offset:{AD.off(vA2, slot, 6144+(16*s+4*t)*192+64*T)}" for s in range(2) for T in range(3) for t in range(2)]
def g1(h, x):
    return [f"v_mfma_f32_32x32x16_bf16 {vr(h,16)}, {vr(vF1+4*s,4)}, {vr(x+4*s,4)}, {vr(h,16) if s else 0}" for s in range(6)]
def g2(zero=False):
    return [f"v_mfma_f32_32x32x16_bf16 {vr(vO+16*T,16)}, {vr(vF2+12*s+4*T,4)}, {vr(vY+4*s,4)}, {0 if (zero and s==0) else vr(vO+16*T,16)}" for s in range(2) for T in range(3)]
def cvts(lo, hi): return [f"v_cvt_pk_bf16_f32 v{vY+i}, v{vU+2*i}, v{vU+2*i+1}" for i in range(lo, hi)]
def pz(h):
    a = [f"v_pk_fma_f32 {vr(vT+2*i,2)}, {vr(h+2*i,2)}, {vr(h+2*i,2)}, s[{sC0}:{sC0+1}]" for i in range(8)]
    b = [f"v_pk_mul_f32 {vr(vT+2*i,2)}, {vr(vT+2*i,2)}, {vr(h+2*i,2)} neg_lo:[1,0] neg_hi:[1,0]" for i in range(8)]
    return a + b
def weave(ops, ds, group):
    ng = (len(ds) + group - 1) // group if ds else 0
    per = max(1, len(ops) // max(ng, 1))
    di = 0
    for i, o in enumerate(ops):
        e(o)
        if (i + 1) % per == 0 and di < len(ds):
            for r in ds[di:di+group]: e(r)
            di += group
    for r in ds[di:]: e(r)
def mphase(mf, fill):
    for i in range(6):
        if mf: e(mf[i])
        for o in fill[i]: e(o)

def res_load(sbase):
    for i in range(6):
        e(f"buffer_load_dwordx4 {vr(vRES+4*i,4)}, v{vPX}, s[{sX}:{sX+3}], s{sbase} offen offset:{32*i}")
def res_unpack():
    for i in range(24):
        e(f"v_lshlrev_b32 v{vO+2*i}, 16, v{vRES+i}")
        e(f"v_and_b32 v{vO+2*i+1}, 0xffff0000, v{vRES+i}")
def out_store(sbase):
    for i in range(6):
        for r in range(4):
            e(f"v_cvt_pk_bf16_f32 v{vO+8*i+r}, v{vO+8*i+2*r}, v{vO+8*i+2*r+1}")
        e(f"buffer_store_dwordx4 {vr(vO+8*i,4)}, v{vPX}, s[{sO}:{sO+3}], s{sbase} offen offset:{32*i} {OPT['store_mod']}")

def ffn_chain(steps, hooks):
    N = len(steps)
    def hook(p, j):
        if (p, j) in hooks: hooks[(p, j)]()
    for r in f1_reads(steps[0][0]): e(r)
    hook("pre", 0)
    e("s_waitcnt lgkmcnt(0)")
    for m in g1(vH[0], steps[0][1]): e(m)
    hook("f1", 1)
    for r in f1_reads(steps[1][0]): e(r)
    e("s_nop 3")
    for o in pz(vH[0]): e(o)
    for j in range(N):
        cm(f"ustep {j}")
        ex = [f"v_exp_f32 v{vT+i}, v{vT+i}" for i in range(16)]
        rc = [f"v_rcp_f32 v{vT+i}, v{vT+i}" for i in range(16)]
        c = cvts(0, 8) if j >= 1 else []
        hook("m1", j)
        if j + 1 < N: e(f"s_waitcnt lgkmcnt({12 if j >= 1 else 0})")
        mphase(g1(vH[(j+1) & 1], steps[j+1][1]) if j + 1 < N else [],
               [ex[0:3], ex[3:6], ex[6:9], ex[9:12], ex[12:14] + c[0:2], ex[14:16] + c[2:4]])
        hook("f1", j + 2)
        d = [f"v_pk_fma_f32 {vr(vT+2*i,2)}, {vr(vT+2*i,2)}, s[{sSC}:{sSC+1}], s[{sSC}:{sSC+1}]" for i in range(8)]
        weave(d, f1_reads(steps[j+2][0]) if j + 2 < N else [], 6)
        hook("m2", j)
        if j >= 1: e(f"s_waitcnt lgkmcnt({12 if j + 2 < N else 0})")
        mphase(g2(steps[j-1][2]) if j >= 1 else [],
               [rc[0:2] + c[4:6], rc[2:4] + c[6:8], rc[4:7], rc[7:10], rc[10:13], rc[13:16]])
        hook("p2", j)
        h = vH[j & 1]
        y = [f"v_pk_mul_f32 {vr(vU+2*i,2)}, {vr(h+2*i,2)}, {vr(vT+2*i,2)}" for i in range(8)]
        hook("f2", j)
        weave(y + (pz(vH[(j+1) & 1]) if j + 1 < N else []), f2_reads(steps[j][0]), 4)
        hook("post", j)
    for o in cvts(0, 8): e(o)
    e("s_waitcnt lgkmcnt(0)")
    e("s_nop 0")
    for m in g2(steps[N-1][2]): e(m)

e("s_cmp_ge_u32 s2, 256")
e("s_cbranch_scc1 L_end")
e("s_load_dwordx8 s[64:71], s[0:1], 0")
e("s_load_dwordx8 s[72:79], s[0:1], 32")
e(f"v_lshrrev_b32 v{vT0}, 6, v0")
e(f"v_and_b32 v{vT1}, 63, v0")
e(f"v_readfirstlane_b32 s{sW}, v{vT0}")
e(f"v_lshlrev_b32 v{vLIN}, 4, v{vT1}")
e(f"s_lshr_b32 s{sCU}, s2, 3")
e(f"s_and_b32 s3, s2, 7")
for k in range(5):
    if k < 4: e(f"s_add_u32 s{sT0}, s{sCU}, {32*k}")
    else:
        e(f"s_lshr_b32 s{sT0}, s{sCU}, 1")
        e(f"s_add_u32 s{sT0}, s{sT0}, 128")
    e(f"s_mul_i32 s{sT1}, s{sT0}, 171")
    e(f"s_lshr_b32 s{sT1}, s{sT1}, 10")
    e(f"s_mul_i32 s{sT2}, s{sT1}, 6")
    e(f"s_sub_u32 s{sT2}, s{sT0}, s{sT2}")
    e(f"s_mul_i32 s{sT3}, s3, 6")
    e(f"s_add_u32 s{sT2}, s{sT2}, s{sT3}")
    e(f"s_mul_i32 s{sBASE+k}, s{sT1}, {16*ROWB}")
    e(f"s_mul_i32 s{sT3}, s{sT2}, {8*192}")
    e(f"s_add_u32 s{sBASE+k}, s{sBASE+k}, s{sT3}")
    if k == 4:
        e(f"s_and_b32 s{sT3}, s{sCU}, 1")
        e(f"s_mul_i32 s{sT3}, s{sT3}, {8*ROWB}")
        e(f"s_add_u32 s{sBASE+k}, s{sBASE+k}, s{sT3}")
    e(f"s_cmp_eq_u32 s{sT2}, 0")
    e(f"s_cselect_b32 s{sBFL+k}, 1, 0")
    e(f"s_cmp_eq_u32 s{sT2}, 47")
    e(f"s_cselect_b32 s{sBFL+k}, 2, s{sBFL+k}")
e(f"v_mov_b32 v{vFL}, 0")
e(f"s_mov_b32 s{sT0}, {ROWB - 145*16}")
for i in range(6):
    e(f"v_add_u32 v{vT0}, {512*i}, v0")
    e(f"v_mul_u32_u24 v{vT2}, 7232, v{vT0}")
    e(f"v_lshrrev_b32 v{vT2}, 20, v{vT2}")
    e(f"v_mul_u32_u24 v{vT3}, 145, v{vT2}")
    e(f"v_sub_u32 v{vT3}, v{vT0}, v{vT3}")
    e(f"v_lshlrev_b32 v{vT0}, 4, v{vT0}")
    e(f"v_mad_u32_u24 v{vREL+i}, v{vT2}, s{sT0}, v{vT0}")
    e(f"v_subrev_u32 v{vT2}, 24, v{vT3}")
    e(f"v_lshrrev_b32 v{vT2}, 31, v{vT2}")
    e(f"v_lshl_or_b32 v{vFL}, v{vT2}, {i}, v{vFL}")
    e(f"v_sub_u32 v{vT2}, 119, v{vT3}")
    e(f"v_lshrrev_b32 v{vT2}, 31, v{vT2}")
    e(f"v_lshl_or_b32 v{vFL}, v{vT2}, {8+i}, v{vFL}")
for x in range(3072): assert (x * 7232) >> 20 == x // 145
e("s_waitcnt lgkmcnt(0)")
srd(sX, 64, XBYTES); srd(sDL, 66, 1728); srd(sDS, 68, 4800); srd(sW1, 70, 73728)
srd(sW2, 72, 73728); srd(sO, 74, XBYTES)
if OPT["stamp"]:
    srd(sDBG, 78, 1 << 20)
stamp(0)
lb_large, lb_done = newlab("dwl"), newlab("dwd")
e(f"s_lshl_b32 s{sT0}, s{sW}, 10")
e(f"s_add_u32 m0, s{sT0}, {ST}")
e(f"s_cmp_ge_u32 s{sW}, 5")
e(f"s_cbranch_scc1 {lb_large}")
e(f"buffer_load_dwordx4 v{vLIN}, s[{sDS}:{sDS+3}], s{sT0} offen lds")
e(f"s_branch {lb_done}")
lab(lb_large)
e(f"s_sub_u32 s{sT0}, s{sT0}, 5120")
e(f"buffer_load_dwordx4 v{vLIN}, s[{sDL}:{sDL+3}], s{sT0} offen lds")
lab(lb_done)
n0 = dma_block(0)
n1 = dma_block(1)
e(f"v_and_b32 v{vT1}, 63, v0")
e(f"v_lshrrev_b32 v{vT0}, 2, v{vT1}")
e(f"v_mul_u32_u24 v{vT0}, 768, v{vT0}")
e(f"v_and_b32 v{vT2}, 3, v0")
e(f"v_lshl_add_u32 v{vW1O}, v{vT2}, 4, v{vT0}")
dma_w(range(5))
e(f"v_mul_u32_u24 v{vT0}, 3641, v0")
e(f"v_lshrrev_b32 v{vT0}, 16, v{vT0}")
for x in range(512): assert (x * 3641) >> 16 == x // 18
e(f"s_mov_b32 s{sT0}, {ROWB - 18*128}")
e(f"v_lshlrev_b32 v{vT2}, 7, v0")
e(f"v_mad_u32_u24 v{vPF}, v{vT0}, s{sT0}, v{vT2}")
e(f"v_sub_u32 v{vT2}, 359, v0")
e(f"v_and_b32 v{vT2}, 0x80000000, v{vT2}")
e(f"v_or_b32 v{vPF}, v{vPF}, v{vT2}")
e(f"v_and_b32 v{vT0}, 14, v0")
e(f"v_bfe_u32 v{vT2}, v0, 4, 1")
e(f"v_add_u32 v{vT0}, v{vT0}, v{vT2}")
e(f"v_mul_u32_u24 v{vIN}, {ROWP}, v{vT0}")
e(f"v_and_b32 v{vT0}, 1, v0")
e(f"v_mul_u32_u24 v{vT0}, 768, v{vT0}")
e(f"v_bfe_u32 v{vT2}, v0, 5, 1")
e(f"v_mul_u32_u24 v{vT2}, 384, v{vT2}")
e(f"v_add3_u32 v{vIN}, v{vIN}, v{vT0}, v{vT2}")
e(f"s_mul_i32 s{sT0}, s{sW}, 24")
e(f"v_add_u32 v{vIN}, s{sT0}, v{vIN}")
e(f"v_bfe_u32 v{vT0}, v0, 5, 1")
e(f"v_mul_u32_u24 v{vT0}, 6144, v{vT0}")
e(f"v_and_b32 v{vT2}, 31, v0")
e(f"v_lshl_add_u32 v{vT0}, v{vT2}, 4, v{vT0}")
for q in range(3):
    e(f"s_mul_i32 s{sT0}, s{sW}, 3")
    e(f"s_add_u32 s{sT0}, s{sT0}, {q}")
    e(f"s_lshr_b32 s{sT1}, s{sT0}, 1")
    e(f"s_lshl_b32 s{sT1}, s{sT1}, 9")
    e(f"s_and_b32 s{sT0}, s{sT0}, 1")
    e(f"s_lshl_b32 s{sT0}, s{sT0}, 3")
    e(f"s_add_u32 s{sT0}, s{sT0}, s{sT1}")
    e(f"v_add_u32 v{vXW+q}, s{sT0}, v{vT0}")
e(f"v_and_b32 v{vT0}, 3, v0")
e(f"v_mul_u32_u24 v{vIDX}, 0x5555, v{vT0}")
e(f"v_bfe_u32 v{vT0}, v0, 4, 1")
e(f"v_lshlrev_b32 v{vT0}, 5, v{vT0}")
e(f"v_and_b32 v{vT2}, 1, v0")
e(f"v_lshl_add_u32 v{vT0}, v{vT2}, 4, v{vT0}")
e(f"v_bfe_u32 v{vT2}, v0, 1, 1")
e(f"v_lshl_add_u32 v{vT0}, v{vT2}, 3, v{vT0}")
e(f"v_bfe_u32 v{vT2}, v0, 5, 1")
e(f"v_bfe_u32 v{vT3}, v0, 2, 2")
e(f"v_lshl_add_u32 v{vT2}, v{vT2}, 3, v{vT3}")
e(f"v_lshl_add_u32 v{vA1}, v{vT2}, 6, v{vT0}")
e(f"v_mul_u32_u24 v{vT2}, 192, v{vT2}")
e(f"v_add_u32 v{vA2}, v{vT2}, v{vT0}")
e(f"v_and_b32 v{vT0}, 14, v0")
e(f"s_mov_b32 s{sT0}, {ROWB}")
e(f"v_mul_lo_u32 v{vPX}, v{vT0}, s{sT0}")
e(f"v_and_b32 v{vT0}, 1, v0")
e(f"v_mul_u32_u24 v{vT0}, 768, v{vT0}")
e(f"v_bfe_u32 v{vT2}, v0, 4, 1")
e(f"v_mul_u32_u24 v{vT2}, 192, v{vT2}")
e(f"v_add3_u32 v{vPX}, v{vPX}, v{vT0}, v{vT2}")
e(f"v_bfe_u32 v{vT2}, v0, 5, 1")
e(f"v_lshl_add_u32 v{vPX}, v{vT2}, 4, v{vPX}")
e(f"s_bfe_u32 s{sT0}, s{sW}, 0x10001")
e(f"s_mul_i32 s{sT0}, s{sT0}, {ROWB}")
e(f"s_and_b32 s{sT1}, s{sW}, 1")
e(f"s_mul_i32 s{sT1}, s{sT1}, 384")
e(f"s_add_u32 s{sT0}, s{sT0}, s{sT1}")
e(f"s_cmp_ge_u32 s{sW}, 4")
e(f"s_cselect_b32 s{sJ1}, s{sBASE+1}, s{sBASE}")
e(f"s_cselect_b32 s{sJ2}, s{sBASE+3}, s{sBASE+2}")
e(f"s_add_u32 s{sJ1}, s{sJ1}, s{sT0}")
e(f"s_add_u32 s{sJ2}, s{sJ2}, s{sT0}")
e(f"s_mov_b32 s{sC0}, {hex(f2u(C0))}")
e(f"s_mov_b32 s{sC0+1}, {hex(f2u(C0))}")
e(f"s_mov_b32 s{sSC}, {hex(f2u(SC))}")
e(f"s_mov_b32 s{sSC+1}, {hex(f2u(SC))}")
e(f"v_bfe_u32 v{vT0}, v0, 4, 2")
e(f"v_lshlrev_b32 v{vT0}, 1, v{vT0}")
e(f"v_bfe_u32 v{vT2}, v0, 2, 2")
e(f"v_sub_u32 v{vT0}, v{vT0}, v{vT2}")
e(f"v_cmp_gt_u32 s[{sMSK}:{sMSK+1}], 5, v{vT0}")
e(f"v_add_u32 v{vT2}, 1, v{vT0}")
e(f"v_cmp_gt_u32 s[{sMSK+2}:{sMSK+3}], 5, v{vT2}")
e(f"v_subrev_u32 v{vT2}, 1, v{vT0}")
e(f"v_cmp_gt_u32 s[{sMSK+4}:{sMSK+5}], 3, v{vT2}")
e(f"v_cmp_gt_u32 s[{sMSK+6}:{sMSK+7}], 3, v{vT0}")
e(f"v_mul_i32_i24 v{vT0}, 192, v{vT0}")
e(f"v_and_b32 v{vT2}, 3, v0")
e(f"v_lshl_add_u32 v{vT0}, v{vT2}, 1, v{vT0}")
e(f"s_mul_i32 s{sT0}, s{sW}, 24")
e(f"s_add_u32 s{sT0}, s{sT0}, {ST}")
e(f"v_add_u32 v{vT3}, s{sT0}, v{vT0}")
for i in range(38): e(f"v_mov_b32 v{vCW+i}, 0")
for i in range(18): e(f"v_mov_b32 v{vB+i}, 0")
wait_vm(22, 10)
e("s_barrier")
npf = prefetch(2)
for ab in range(2):
    e(f"s_mov_b64 exec, s[{sMSK+2*ab}:{sMSK+2*ab+1}]")
    for q in range(3):
        for i in range(5):
            e(f"ds_read_u16 v{vCW+12*q+2+2*i+ab}, v{vT3} offset:{(5*i+ab)*192 + 8*q}")
    e("s_waitcnt lgkmcnt(0)")
    e(f"s_mov_b64 exec, s[{sMSK+4+2*ab}:{sMSK+4+2*ab+1}]")
    for q in range(3):
        for i in range(3):
            e(f"ds_read_u16 v{vB+9*ab+3*q+i}, v{vT3} offset:{5120 + (3*i+ab-1)*192 + 8*q}")
    e("s_waitcnt lgkmcnt(0)")
e("s_mov_b64 exec, -1")
for ab in range(2):
    for q in range(3):
        for i in range(3):
            r = vCW + 12*q + 2 + 2*(i+1) + ab
            e(f"v_lshl_or_b32 v{r}, v{vB+9*ab+3*q+i}, 16, v{r}")
stamp(1)
for k in range(5):
    zero_acc(2 if k < 4 else 1)
    if k == 0: wait_vm(16 + npf, 5 + npf)
    elif k == 1: wait_vm(10 + npf, npf)
    elif k == 4: e("s_waitcnt vmcnt(0)")
    else: e(f"s_waitcnt vmcnt({npf})")
    e("s_barrier")
    stamp(2 + k)
    if 1 <= k <= 3:
        dma_block(k + 1)
        if k + 2 <= 4: prefetch(k + 2)
    conv_block(k)
stamp(7)
dma_w(range(5, 12))
res_load(sJ1)

steps = [(j, vX, False) for j in range(12)] + [(j, vXP, False) for j in range(12)] + [(12 + j, vX, j == 0) for j in range(3)]
hooks = {}
def h_pre():
    e("s_waitcnt vmcnt(0)")
    res_unpack()
hooks[("pre", 0)] = h_pre
def h_bar():
    e("s_barrier")
hooks[("f1", 5)] = h_bar
hooks[("post", 10)] = lambda: res_load(sJ2)
def h_out1():
    e("s_nop 7")
    out_store(sJ1)
    e("s_waitcnt vmcnt(6)")
    e("s_nop 0")
    res_unpack()
    stamp(8)
hooks[("p2", 12)] = h_out1
def h_x4():
    e(f"s_lshr_b32 s{sT0}, s{sW}, 2")
    e(f"s_mul_i32 s{sT0}, s{sT0}, 6144")
    e(f"s_add_u32 s{sT0}, s{sT0}, {X4}")
    e(f"v_add_u32 v{vT0}, s{sT0}, v{vLIN}")
    for s in range(6): e(f"ds_read_b128 {vr(vX+4*s,4)}, v{vT0} offset:{1024*s}")
hooks[("m2", 20)] = h_x4
def rebase(reg):
    def f():
        e(f"s_and_b32 s{sT0}, s{sW}, 3")
        e(f"s_mul_i32 s{sT0}, s{sT0}, {3*SLOT}")
        e(f"s_sub_u32 s{sT0}, s{sT0}, {AD.b[reg]*SLOT}")
        e(f"v_add_u32 v{reg}, s{sT0}, v{reg}")
        AD.b[reg] = 12
    return f
hooks[("f1", 24)] = rebase(vA1)
hooks[("f2", 24)] = rebase(vA2)
def h_out2():
    e("s_nop 7")
    out_store(sJ2)
    stamp(9)
    e(f"v_bfe_u32 v{vT1}, v{vTID}, 1, 3")
    e(f"s_mov_b32 s{sT0}, {ROWB}")
    e(f"v_mul_lo_u32 v{vT1}, v{vT1}, s{sT0}")
    e(f"v_sub_u32 v{vPX}, v{vPX}, v{vT1}")
    e(f"s_lshr_b32 s{sT0}, s{sW}, 2")
    e(f"s_mul_i32 s{sT0}, s{sT0}, 384")
    e(f"s_add_u32 s{sT0}, s{sT0}, s{sBASE+4}")
    for t in range(3):
        e(f"s_and_b32 s{sT1}, s{sW}, 3")
        e(f"s_mul_i32 s{sT1}, s{sT1}, 3")
        e(f"s_add_u32 s{sT1}, s{sT1}, {t}")
        e(f"s_lshr_b32 s{sT2}, s{sT1}, 1")
        e(f"s_lshl_b32 s{sT2}, s{sT2}, 5")
        e(f"s_and_b32 s{sT1}, s{sT1}, 1")
        e(f"s_lshl_b32 s{sT1}, s{sT1}, 3")
        e(f"s_add_u32 s{sT1}, s{sT1}, s{sT2}")
        e(f"s_add_u32 s{sMSK+t}, s{sT1}, s{sT0}")
        e(f"buffer_load_dwordx2 {vr(vRES+2*t,2)}, v{vPX}, s[{sX}:{sX+3}], s{sMSK+t} offen")
hooks[("p2", 24)] = h_out2
ffn_chain(steps, hooks)
stamp(10)
e(f"s_mul_i32 s{sT0}, s{sW}, 12288")
e(f"v_add_u32 v{vT0}, s{sT0}, v{vLIN}")
e(f"s_and_b32 s{sT0}, s{sW}, 4")
e(f"s_mul_i32 s{sT0}, s{sT0}, 12288")
e(f"s_and_b32 s{sT1}, s{sW}, 3")
e(f"s_mul_i32 s{sT1}, s{sT1}, 3072")
e(f"s_add_u32 s{sT0}, s{sT0}, s{sT1}")
e(f"v_add_u32 v{vT1}, s{sT0}, v{vLIN}")
e("s_barrier")
e("s_nop 7")
for u in range(12): e(f"ds_write_b128 v{vT0}, {vr(vO+4*u,4)} offset:{1024*u}")
e("s_waitcnt lgkmcnt(0)")
e("s_barrier")
vR = 112
for t in range(3):
    for p in range(4):
        e(f"ds_read_b128 {vr(vR+16*t+4*p,4)}, v{vT1} offset:{12288*p + 1024*t}")
e("s_waitcnt vmcnt(0)")
for t in range(3):
    for i in range(2):
        e(f"v_lshlrev_b32 v{vO+4*t+2*i}, 16, v{vRES+2*t+i}")
        e(f"v_and_b32 v{vO+4*t+2*i+1}, 0xffff0000, v{vRES+2*t+i}")
for t in range(3):
    e(f"s_waitcnt lgkmcnt({8-4*t})")
    for p in range(4):
        for i in range(2):
            e(f"v_pk_add_f32 {vr(vO+4*t+2*i,2)}, {vr(vO+4*t+2*i,2)}, {vr(vR+16*t+4*p+2*i,2)}")
    e(f"v_cvt_pk_bf16_f32 v{vO+16+2*t}, v{vO+4*t}, v{vO+4*t+1}")
    e(f"v_cvt_pk_bf16_f32 v{vO+16+2*t+1}, v{vO+4*t+2}, v{vO+4*t+3}")
    e(f"buffer_store_dwordx2 {vr(vO+16+2*t,2)}, v{vPX}, s[{sO}:{sO+3}], s{sMSK+t} offen {OPT['store_mod']}")
if OPT["stamp"]:
    e("s_waitcnt vmcnt(0)")
    stamp(11)
    e("s_waitcnt lgkmcnt(0)")
    e(f"s_lshl_b32 s{sT0}, s2, 3")
    e(f"s_add_u32 s{sT0}, s{sT0}, s{sW}")
    e(f"s_lshl_b32 s{sT0}, s{sT0}, 6")
    e(f"v_mov_b32 v{vT0}, 0")
    for i in range(12):
        e(f"v_mov_b32 v{vT1}, s{sTS+2*i}")
        e(f"buffer_store_dword v{vT1}, v{vT0}, s[{sDBG}:{sDBG+3}], s{sT0} offen offset:{4*i}")
lab("L_end")
e("s_endpgm")

ref = open(f"cdna_kernels/{NAME}.s.ref").read().splitlines()
head = [l for l in ref if l.startswith(";") and "@launch" not in l]
out = "\n".join(head) + f"\n; @launch grid=(256,1,1) block=(512,1,1) lds={LDS_TOTAL}\n"
out += f""".amdgcn_target "amdgcn-amd-amdhsa--gfx950"
.text
.globl {NAME}_kernel
.p2align 8
.type {NAME}_kernel,@function
{NAME}_kernel:
""" + "\n".join(L) + f"""
.section .rodata,"a"
.p2align 6
.amdhsa_kernel {NAME}_kernel
  .amdhsa_next_free_vgpr 256
  .amdhsa_next_free_sgpr 102
  .amdhsa_accum_offset 256
  .amdhsa_group_segment_fixed_size 0
  .amdhsa_kernarg_size 64
  .amdhsa_user_sgpr_count 2
  .amdhsa_user_sgpr_kernarg_segment_ptr 1
  .amdhsa_system_sgpr_workgroup_id_x 1
.end_amdhsa_kernel
"""
open(sys.argv[1], "w").write(out)
```

```python
import sys, struct, math
NAME = "standalone__modern_conv_block_replknet__vision"
OPT = dict(store_mod="", pf=1, stamp=0, ld_mod="", res_mod="", w_mod="")
for a in sys.argv[2:]:
    k, v = a.split("=")
    OPT[k] = int(v) if v.lstrip("-").isdigit() else v.replace("+", " ")

def f2u(x): return struct.unpack("<I", struct.pack("<f", x))[0]
K0 = 2.0 * math.sqrt(2.0 / math.pi) * math.log2(math.e)
K1 = K0 * 0.044715
SC = K1 ** (1.0 / 3.0)
C0 = K0 / SC

L = []
def e(s): L.append("  " + s)
def lab(s): L.append(s + ":")
def cm(s): L.append("  ; " + s)
def vr(b, n): return f"v[{b}:{b+n-1}]"

SLOT = 12288
ST = 61440
S = [69632, 116736]
X4 = 147456
ROWP = 145 * 16
LDS_TOTAL = 163840
XBYTES = 384 * 384 * 192
ROWB = 384 * 192

sX, sO, sW1, sW2, sDS, sDL = 4, 8, 12, 16, 20, 24
sW = 28
sCU = 29
sT0, sT1, sT2, sT3 = 30, 31, 32, 33
sBASE = 34
sBFL = 39
sC0 = 44
sSC = 46
sMSK = 48
sJ1, sJ2 = 56, 57
sDBG = 60
sTS = 64

vTID = 0
vA1, vA2 = 1, 2
vPX = 3
vLIN = 4
vT0, vT1, vT2, vT3 = 5, 6, 7, 8
vIN = 9
vXW = 10
vIDX = 13
vFL = 14
vPF = 15
vX = 16
vXP = 40
vO = 64
vH = [112, 128]
vT = 144
vU = 160
vY = 176
vF1 = 184
vF2 = 208
vRES = 232
vCW = 64
vREL = 104
vW1O = 110
vDUM = 111
vACC = 112
vB = 144
vP = 216
vS = 136

def stamp(i):
    if OPT["stamp"]:
        e(f"s_memtime s[{sTS+2*i}:{sTS+2*i+1}]")

def srd(d, ptr, nbytes):
    e(f"s_mov_b32 s{d}, s{ptr}")
    e(f"s_mov_b32 s{d+1}, s{ptr+1}")
    e(f"s_mov_b32 s{d+2}, {nbytes}")
    e(f"s_mov_b32 s{d+3}, 0x20000")

uid = [0]
def newlab(p):
    uid[0] += 1
    return f"L_{p}_{uid[0]}"

def dma_block(k):
    n = 46 if k < 4 else 30
    cm(f"input DMA block {k}")
    e(f"s_sub_u32 s{sT0}, s{sBASE+k}, {2*ROWB + 2*192}")
    e(f"s_lshl_b32 s{sT1}, s{sW}, 10")
    e(f"s_add_u32 s{sT1}, s{sT1}, {S[k&1]}")
    e(f"s_and_b32 s{sT2}, s{sBFL+k}, 1")
    e(f"s_mul_i32 s{sT2}, s{sT2}, 0x3f")
    e(f"s_and_b32 s{sT3}, s{sBFL+k}, 2")
    e(f"s_mul_i32 s{sT3}, s{sT3}, 0x1f80")
    e(f"s_or_b32 s{sT2}, s{sT2}, s{sT3}")
    e(f"v_and_b32 v{vT3}, s{sT2}, v{vFL}")
    e(f"v_lshrrev_b32 v{vT2}, 8, v{vT3}")
    e(f"v_or_b32 v{vT3}, v{vT3}, v{vT2}")
    ni = (n + 7) // 8
    for i in range(ni):
        skip = None
        if 8 * i + 7 >= n:
            skip = newlab("skipdma")
            e(f"s_cmp_ge_u32 s{sW}, {n - 8*i}")
            e(f"s_cbranch_scc1 {skip}")
        t = vT0 + (i & 1)
        e(f"v_lshlrev_b32 v{vT2}, {31-i}, v{vT3}")
        e(f"v_add_u32 v{t}, s{sT0}, v{vREL+i}")
        e(f"s_add_u32 m0, s{sT1}, {8192*i}")
        e(f"v_and_b32 v{vT2}, 0x80000000, v{vT2}")
        e(f"v_or_b32 v{t}, v{t}, v{vT2}")
        e(f"buffer_load_dwordx4 v{t}, s[{sX}:{sX+3}], 0 offen {OPT['ld_mod']} lds")
        if skip: lab(skip)
    return ni - 1

def wait_vm(a, b):
    l1, l2 = newlab("wv"), newlab("wv")
    e(f"s_cmp_ge_u32 s{sW}, 6")
    e(f"s_cbranch_scc1 {l1}")
    e(f"s_waitcnt vmcnt({a})")
    e(f"s_branch {l2}")
    lab(l1)
    e(f"s_waitcnt vmcnt({b})")
    lab(l2)

def prefetch(k):
    if not OPT["pf"]: return 0
    cm(f"L2 prefetch block {k}")
    e(f"s_sub_u32 s{sT0}, s{sBASE+k}, {2*ROWB + 2*192}")
    e(f"v_add_u32 v{vT0}, s{sT0}, v{vPF}")
    e(f"v_and_b32 v{vT1}, 0x80000000, v{vPF}")
    e(f"v_or_b32 v{vT0}, v{vT0}, v{vT1}")
    e(f"buffer_load_dword v{vDUM}, v{vT0}, s[{sX}:{sX+3}], 0 offen {OPT['ld_mod']}")
    e(f"buffer_load_dword v{vDUM}, v{vT0}, s[{sX}:{sX+3}], 0 offen offset:64 {OPT['ld_mod']}")
    return 2

def dma_w(slots):
    skip = newlab("skipw")
    cm(f"weight DMA slots {slots}")
    e(f"s_cmp_ge_u32 s{sW}, 6")
    e(f"s_cbranch_scc1 {skip}")
    e(f"s_mul_i32 s{sT0}, s{sW}, 12288")
    e(f"s_lshl_b32 s{sT1}, s{sW}, 10")
    for j in slots:
        e(f"s_add_u32 m0, s{sT1}, {j*SLOT}")
        e(f"s_add_u32 s{sT2}, s{sT0}, {j*64}")
        e(f"buffer_load_dwordx4 v{vW1O}, s[{sW1}:{sW1+3}], s{sT2} offen {OPT['w_mod']} lds")
        e(f"s_add_u32 m0, s{sT1}, {j*SLOT+6144}")
        e(f"s_add_u32 s{sT2}, s{sT1}, {j*6144}")
        e(f"buffer_load_dwordx4 v{vLIN}, s[{sW2}:{sW2+3}], s{sT2} offen {OPT['w_mod']} lds")
    lab(skip)

def conv_block(k):
    R = 2 if k < 4 else 1
    sb = S[k & 1]
    cm(f"---- conv block {k}")
    if R == 2:
        e(f"v_add_u32 v{vT0}, {sb}, v{vIN}")
    else:
        e(f"v_bfe_u32 v{vT1}, v{vTID}, 1, 3")
        e(f"v_mul_u32_u24 v{vT1}, {ROWP}, v{vT1}")
        e(f"v_sub_u32 v{vT0}, v{vIN}, v{vT1}")
        e(f"v_add_u32 v{vT0}, {sb}, v{vT0}")
    reads = []
    for q in range(3):
        for f in range(3):
            for rp in range(4):
                col = 4 * (rp >> 1) + (rp & 1)
                d = vB + q * 24 + f * 8 + 2 * rp
                reads.append(f"ds_read_b64 {vr(d,2)}, v{vT0} offset:{2*f*ROWP + col*192 + 8*q}")
    for r in reads[:12]: e(r)
    nxt = 12
    statq = []
    for q in range(3):
        for f in range(3):
            idx = q * 3 + f
            outstanding_after = min(36, nxt) - 4 * (idx + 1)
            e(f"s_waitcnt lgkmcnt({outstanding_after})")
            for rho in range(R):
                a = vCW + 12 * q + 4 * f + (2 if rho == 0 else 0)
                e(f"v_smfmac_f32_16x16x64_bf16 {vr(vACC + rho*12 + 4*q, 4)}, {vr(a,4)}, {vr(vB + q*24 + f*8, 8)}, v{vIDX}")
            for r in reads[nxt:nxt+4]: e(r)
            nxt += 4
    e("s_nop 7")
    for rho in range(R):
        a = vACC + rho * 12
        s2, q2 = vS + 4, vS + 6
        e(f"v_pk_add_f32 {vr(s2,2)}, {vr(a,2)}, {vr(a+2,2)}")
        e(f"v_pk_mul_f32 {vr(q2,2)}, {vr(a,2)}, {vr(a,2)}")
        for i in range(1, 6):
            if i >= 2: e(f"v_pk_add_f32 {vr(s2,2)}, {vr(s2,2)}, {vr(a+2*i,2)}")
            e(f"v_pk_fma_f32 {vr(q2,2)}, {vr(a+2*i,2)}, {vr(a+2*i,2)}, {vr(q2,2)}")
        e(f"v_add_f32 v{vS+2*rho}, v{s2}, v{s2+1}")
        e(f"v_add_f32 v{vS+2*rho+1}, v{q2}, v{q2+1}")
    e(f"s_lshl_b32 s{sT0}, s{sW}, 10")
    e(f"v_add_u32 v{vT1}, s{sT0}, v{vLIN}")
    e(f"ds_write_b128 v{vT1}, {vr(vS,4)} offset:{ST}")
    e("s_waitcnt lgkmcnt(0)")
    e("s_barrier")
    for w in range(8):
        e(f"ds_read_b128 {vr(vP+4*w,4)}, v{vLIN} offset:{ST + 1024*w if ST + 1024*w < 65536 else 0}") if ST + 1024*w < 65536 else None
    if ST + 7 * 1024 >= 65536:
        e(f"v_add_u32 v{vT1}, {ST}, v{vLIN}")
        for w in range(8):
            if ST + 1024 * w >= 65536:
                e(f"ds_read_b128 {vr(vP+4*w,4)}, v{vT1} offset:{1024*w}")
    for w in range(1, 8):
        e(f"s_waitcnt lgkmcnt({7-w})")
        for rho in range(R):
            e(f"v_pk_add_f32 {vr(vP+2*rho,2)}, {vr(vP+2*rho,2)}, {vr(vP+4*w+2*rho,2)}")
    for rho in range(R):
        sm, sq = vP + 2 * rho, vP + 2 * rho + 1
        rs, nb = vS + 2 * rho, vS + 2 * rho + 1
        e(f"v_mul_f32 v{sm}, {hex(f2u(1.0/96))}, v{sm}")
        e(f"v_mul_f32 v{sq}, {hex(f2u(1.0/96))}, v{sq}")
        e(f"v_fma_f32 v{sq}, -v{sm}, v{sm}, v{sq}")
        e(f"v_max_f32 v{sq}, 0, v{sq}")
        e(f"v_add_f32 v{sq}, {hex(f2u(1e-5))}, v{sq}")
        e(f"v_rsq_f32 v{sq}, v{sq}")
        e("s_nop 0")
        e(f"v_mul_f32 v{rs}, {hex(f2u(SC))}, v{sq}")
        e(f"v_mul_f32 v{nb}, v{sm}, v{rs}")
    xb = sb if R == 2 else X4
    for q in range(3):
        e(f"v_add_u32 v{vT0+q}, {xb}, v{vXW+q}")
    for rho in range(R):
        a = vACC + rho * 12
        for i in range(6):
            e(f"v_pk_fma_f32 {vr(a+2*i,2)}, {vr(a+2*i,2)}, {vr(vS+2*rho,2)}, {vr(vS+2*rho,2)} op_sel:[0,0,1] op_sel_hi:[1,0,1] neg_lo:[0,0,1] neg_hi:[0,0,1]")
        for q in range(3):
            d = vP + 8 + rho * 6 + 2 * q
            e(f"v_cvt_pk_bf16_f32 v{d}, v{a+4*q}, v{a+4*q+1}")
            e(f"v_cvt_pk_bf16_f32 v{d+1}, v{a+4*q+2}, v{a+4*q+3}")
            e(f"ds_write_b64 v{vT0+q}, {vr(d,2)} offset:{rho*12288}")
    e("s_waitcnt lgkmcnt(0)")
    e("s_barrier")
    if k < 4:
        skip = newlab("skippick")
        e(f"s_lshr_b32 s{sT0}, s{sW}, 2")
        e(f"s_cmp_lg_u32 s{sT0}, {k&1}")
        e(f"s_cbranch_scc1 {skip}")
        e(f"s_and_b32 s{sT0}, s{sW}, 3")
        e(f"s_mul_i32 s{sT0}, s{sT0}, 6144")
        e(f"s_add_u32 s{sT0}, s{sT0}, {sb}")
        e(f"v_add_u32 v{vT0}, s{sT0}, v{vLIN}")
        d = vX if k < 2 else vXP
        for s in range(6):
            e(f"ds_read_b128 {vr(d+4*s,4)}, v{vT0} offset:{1024*s}")
        e("s_waitcnt lgkmcnt(0)")
        lab(skip)

def zero_acc(R=2):
    for i in range(12 * R): e(f"v_mov_b32 v{vACC+i}, 0")

class Addr:
    def __init__(self): self.b = {vA1: 0, vA2: 0}
    def off(self, reg, slot, extra):
        o = (slot - self.b[reg]) * SLOT + extra
        return o
    def ensure(self, reg, slot):
        if not (0 <= (slot - self.b[reg]) * SLOT and (slot - self.b[reg] + 1) * SLOT <= 65536):
            d = (slot - self.b[reg]) * SLOT
            if d > 0: e(f"v_add_u32 v{reg}, {d}, v{reg}")
            else: e(f"v_subrev_u32 v{reg}, {-d}, v{reg}")
            self.b[reg] = slot
AD = Addr()
def f1_reads(slot):
    AD.ensure(vA1, slot)
    return [f"ds_read_b64_tr_b16 {vr(vF1+4*s+2*t,2)}, v{vA1} offset:{AD.off(vA1, slot, (16*s+4*t)*64)}" for s in range(6) for t in range(2)]
def f2_reads(slot):
    AD.ensure(vA2, slot)
    return [f"ds_read_b64_tr_b16 {vr(vF2+12*s+4*T+2*t,2)}, v{vA2} offset:{AD.off(vA2, slot, 6144+(16*s+4*t)*192+64*T)}" for s in range(2) for T in range(3) for t in range(2)]
def g1(h, x):
    return [f"v_mfma_f32_32x32x16_bf16 {vr(h,16)}, {vr(vF1+4*s,4)}, {vr(x+4*s,4)}, {vr(h,16) if s else 0}" for s in range(6)]
def g2(zero=False):
    return [f"v_mfma_f32_32x32x16_bf16 {vr(vO+16*T,16)}, {vr(vF2+12*s+4*T,4)}, {vr(vY+4*s,4)}, {0 if (zero and s==0) else vr(vO+16*T,16)}" for s in range(2) for T in range(3)]
def cvts(lo, hi): return [f"v_cvt_pk_bf16_f32 v{vY+i}, v{vU+2*i}, v{vU+2*i+1}" for i in range(lo, hi)]
def pz(h):
    a = [f"v_pk_fma_f32 {vr(vT+2*i,2)}, {vr(h+2*i,2)}, {vr(h+2*i,2)}, s[{sC0}:{sC0+1}]" for i in range(8)]
    b = [f"v_pk_mul_f32 {vr(vT+2*i,2)}, {vr(vT+2*i,2)}, {vr(h+2*i,2)} neg_lo:[1,0] neg_hi:[1,0]" for i in range(8)]
    return a + b
def weave(ops, ds, group):
    ng = (len(ds) + group - 1) // group if ds else 0
    per = max(1, len(ops) // max(ng, 1))
    di = 0
    for i, o in enumerate(ops):
        e(o)
        if (i + 1) % per == 0 and di < len(ds):
            for r in ds[di:di+group]: e(r)
            di += group
    for r in ds[di:]: e(r)
def mphase(mf, fill):
    for i in range(6):
        if mf: e(mf[i])
        for o in fill[i]: e(o)

def res_load(sbase):
    for i in range(6):
        e(f"buffer_load_dwordx4 {vr(vRES+4*i,4)}, v{vPX}, s[{sX}:{sX+3}], s{sbase} offen offset:{32*i} {OPT['res_mod']}")
def res_unpack():
    for i in range(24):
        e(f"v_lshlrev_b32 v{vO+2*i}, 16, v{vRES+i}")
        e(f"v_and_b32 v{vO+2*i+1}, 0xffff0000, v{vRES+i}")
def out_store(sbase):
    for i in range(6):
        for r in range(4):
            e(f"v_cvt_pk_bf16_f32 v{vO+8*i+r}, v{vO+8*i+2*r}, v{vO+8*i+2*r+1}")
        e(f"buffer_store_dwordx4 {vr(vO+8*i,4)}, v{vPX}, s[{sO}:{sO+3}], s{sbase} offen offset:{32*i} {OPT['store_mod']}")

def ffn_chain(steps, hooks):
    N = len(steps)
    def hook(p, j):
        if (p, j) in hooks: hooks[(p, j)]()
    for r in f1_reads(steps[0][0]): e(r)
    hook("pre", 0)
    e("s_waitcnt lgkmcnt(0)")
    for m in g1(vH[0], steps[0][1]): e(m)
    hook("f1", 1)
    for r in f1_reads(steps[1][0]): e(r)
    e("s_nop 3")
    for o in pz(vH[0]): e(o)
    for j in range(N):
        cm(f"ustep {j}")
        ex = [f"v_exp_f32 v{vT+i}, v{vT+i}" for i in range(16)]
        rc = [f"v_rcp_f32 v{vT+i}, v{vT+i}" for i in range(16)]
        c = cvts(0, 8) if j >= 1 else []
        hook("m1", j)
        if j + 1 < N: e(f"s_waitcnt lgkmcnt({12 if j >= 1 else 0})")
        mphase(g1(vH[(j+1) & 1], steps[j+1][1]) if j + 1 < N else [],
               [ex[0:3], ex[3:6], ex[6:9], ex[9:12], ex[12:14] + c[0:2], ex[14:16] + c[2:4]])
        hook("f1", j + 2)
        d = [f"v_pk_fma_f32 {vr(vT+2*i,2)}, {vr(vT+2*i,2)}, s[{sSC}:{sSC+1}], s[{sSC}:{sSC+1}]" for i in range(8)]
        weave(d, f1_reads(steps[j+2][0]) if j + 2 < N else [], 6)
        hook("m2", j)
        if j >= 1: e(f"s_waitcnt lgkmcnt({12 if j + 2 < N else 0})")
        mphase(g2(steps[j-1][2]) if j >= 1 else [],
               [rc[0:2] + c[4:6], rc[2:4] + c[6:8], rc[4:7], rc[7:10], rc[10:13], rc[13:16]])
        hook("p2", j)
        h = vH[j & 1]
        y = [f"v_pk_mul_f32 {vr(vU+2*i,2)}, {vr(h+2*i,2)}, {vr(vT+2*i,2)}" for i in range(8)]
        hook("f2", j)
        weave(y + (pz(vH[(j+1) & 1]) if j + 1 < N else []), f2_reads(steps[j][0]), 4)
        hook("post", j)
    for o in cvts(0, 8): e(o)
    e("s_waitcnt lgkmcnt(0)")
    e("s_nop 0")
    for m in g2(steps[N-1][2]): e(m)

e("s_cmp_ge_u32 s2, 256")
e("s_cbranch_scc1 L_end")
e("s_load_dwordx8 s[64:71], s[0:1], 0")
e("s_load_dwordx8 s[72:79], s[0:1], 32")
e(f"v_lshrrev_b32 v{vT0}, 6, v0")
e(f"v_and_b32 v{vT1}, 63, v0")
e(f"v_readfirstlane_b32 s{sW}, v{vT0}")
e(f"v_lshlrev_b32 v{vLIN}, 4, v{vT1}")
e(f"s_lshr_b32 s{sCU}, s2, 3")
e(f"s_and_b32 s3, s2, 7")
for k in range(5):
    if k < 4: e(f"s_add_u32 s{sT0}, s{sCU}, {32*k}")
    else:
        e(f"s_lshr_b32 s{sT0}, s{sCU}, 1")
        e(f"s_add_u32 s{sT0}, s{sT0}, 128")
    e(f"s_mul_i32 s{sT1}, s{sT0}, 171")
    e(f"s_lshr_b32 s{sT1}, s{sT1}, 10")
    e(f"s_mul_i32 s{sT2}, s{sT1}, 6")
    e(f"s_sub_u32 s{sT2}, s{sT0}, s{sT2}")
    e(f"s_mul_i32 s{sT3}, s3, 6")
    e(f"s_add_u32 s{sT2}, s{sT2}, s{sT3}")
    e(f"s_mul_i32 s{sBASE+k}, s{sT1}, {16*ROWB}")
    e(f"s_mul_i32 s{sT3}, s{sT2}, {8*192}")
    e(f"s_add_u32 s{sBASE+k}, s{sBASE+k}, s{sT3}")
    if k == 4:
        e(f"s_and_b32 s{sT3}, s{sCU}, 1")
        e(f"s_mul_i32 s{sT3}, s{sT3}, {8*ROWB}")
        e(f"s_add_u32 s{sBASE+k}, s{sBASE+k}, s{sT3}")
    e(f"s_cmp_eq_u32 s{sT2}, 0")
    e(f"s_cselect_b32 s{sBFL+k}, 1, 0")
    e(f"s_cmp_eq_u32 s{sT2}, 47")
    e(f"s_cselect_b32 s{sBFL+k}, 2, s{sBFL+k}")
e(f"v_mov_b32 v{vFL}, 0")
e(f"s_mov_b32 s{sT0}, {ROWB - 145*16}")
for i in range(6):
    e(f"v_add_u32 v{vT0}, {512*i}, v0")
    e(f"v_mul_u32_u24 v{vT2}, 7232, v{vT0}")
    e(f"v_lshrrev_b32 v{vT2}, 20, v{vT2}")
    e(f"v_mul_u32_u24 v{vT3}, 145, v{vT2}")
    e(f"v_sub_u32 v{vT3}, v{vT0}, v{vT3}")
    e(f"v_lshlrev_b32 v{vT0}, 4, v{vT0}")
    e(f"v_mad_u32_u24 v{vREL+i}, v{vT2}, s{sT0}, v{vT0}")
    e(f"v_subrev_u32 v{vT2}, 24, v{vT3}")
    e(f"v_lshrrev_b32 v{vT2}, 31, v{vT2}")
    e(f"v_lshl_or_b32 v{vFL}, v{vT2}, {i}, v{vFL}")
    e(f"v_sub_u32 v{vT2}, 119, v{vT3}")
    e(f"v_lshrrev_b32 v{vT2}, 31, v{vT2}")
    e(f"v_lshl_or_b32 v{vFL}, v{vT2}, {8+i}, v{vFL}")
for x in range(3072): assert (x * 7232) >> 20 == x // 145
e("s_waitcnt lgkmcnt(0)")
srd(sX, 64, XBYTES); srd(sDL, 66, 1728); srd(sDS, 68, 4800); srd(sW1, 70, 73728)
srd(sW2, 72, 73728); srd(sO, 74, XBYTES)
if OPT["stamp"]:
    srd(sDBG, 78, 1 << 20)
stamp(0)
if OPT["stamp"]: e(f"s_memrealtime s[{sTS+24}:{sTS+25}]")
lb_large, lb_done = newlab("dwl"), newlab("dwd")
e(f"s_lshl_b32 s{sT0}, s{sW}, 10")
e(f"s_add_u32 m0, s{sT0}, {ST}")
e(f"s_cmp_ge_u32 s{sW}, 5")
e(f"s_cbranch_scc1 {lb_large}")
e(f"buffer_load_dwordx4 v{vLIN}, s[{sDS}:{sDS+3}], s{sT0} offen lds")
e(f"s_branch {lb_done}")
lab(lb_large)
e(f"s_sub_u32 s{sT0}, s{sT0}, 5120")
e(f"buffer_load_dwordx4 v{vLIN}, s[{sDL}:{sDL+3}], s{sT0} offen lds")
lab(lb_done)
n0 = dma_block(0)
n1 = dma_block(1)
e(f"v_and_b32 v{vT1}, 63, v0")
e(f"v_lshrrev_b32 v{vT0}, 2, v{vT1}")
e(f"v_mul_u32_u24 v{vT0}, 768, v{vT0}")
e(f"v_and_b32 v{vT2}, 3, v0")
e(f"v_lshl_add_u32 v{vW1O}, v{vT2}, 4, v{vT0}")
dma_w(range(5))
e(f"v_mul_u32_u24 v{vT0}, 3641, v0")
e(f"v_lshrrev_b32 v{vT0}, 16, v{vT0}")
for x in range(512): assert (x * 3641) >> 16 == x // 18
e(f"s_mov_b32 s{sT0}, {ROWB - 18*128}")
e(f"v_lshlrev_b32 v{vT2}, 7, v0")
e(f"v_mad_u32_u24 v{vPF}, v{vT0}, s{sT0}, v{vT2}")
e(f"v_sub_u32 v{vT2}, 359, v0")
e(f"v_and_b32 v{vT2}, 0x80000000, v{vT2}")
e(f"v_or_b32 v{vPF}, v{vPF}, v{vT2}")
e(f"v_and_b32 v{vT0}, 14, v0")
e(f"v_bfe_u32 v{vT2}, v0, 4, 1")
e(f"v_add_u32 v{vT0}, v{vT0}, v{vT2}")
e(f"v_mul_u32_u24 v{vIN}, {ROWP}, v{vT0}")
e(f"v_and_b32 v{vT0}, 1, v0")
e(f"v_mul_u32_u24 v{vT0}, 768, v{vT0}")
e(f"v_bfe_u32 v{vT2}, v0, 5, 1")
e(f"v_mul_u32_u24 v{vT2}, 384, v{vT2}")
e(f"v_add3_u32 v{vIN}, v{vIN}, v{vT0}, v{vT2}")
e(f"s_mul_i32 s{sT0}, s{sW}, 24")
e(f"v_add_u32 v{vIN}, s{sT0}, v{vIN}")
e(f"v_bfe_u32 v{vT0}, v0, 5, 1")
e(f"v_mul_u32_u24 v{vT0}, 6144, v{vT0}")
e(f"v_and_b32 v{vT2}, 31, v0")
e(f"v_lshl_add_u32 v{vT0}, v{vT2}, 4, v{vT0}")
for q in range(3):
    e(f"s_mul_i32 s{sT0}, s{sW}, 3")
    e(f"s_add_u32 s{sT0}, s{sT0}, {q}")
    e(f"s_lshr_b32 s{sT1}, s{sT0}, 1")
    e(f"s_lshl_b32 s{sT1}, s{sT1}, 9")
    e(f"s_and_b32 s{sT0}, s{sT0}, 1")
    e(f"s_lshl_b32 s{sT0}, s{sT0}, 3")
    e(f"s_add_u32 s{sT0}, s{sT0}, s{sT1}")
    e(f"v_add_u32 v{vXW+q}, s{sT0}, v{vT0}")
e(f"v_and_b32 v{vT0}, 3, v0")
e(f"v_mul_u32_u24 v{vIDX}, 0x5555, v{vT0}")
e(f"v_bfe_u32 v{vT0}, v0, 4, 1")
e(f"v_lshlrev_b32 v{vT0}, 5, v{vT0}")
e(f"v_and_b32 v{vT2}, 1, v0")
e(f"v_lshl_add_u32 v{vT0}, v{vT2}, 4, v{vT0}")
e(f"v_bfe_u32 v{vT2}, v0, 1, 1")
e(f"v_lshl_add_u32 v{vT0}, v{vT2}, 3, v{vT0}")
e(f"v_bfe_u32 v{vT2}, v0, 5, 1")
e(f"v_bfe_u32 v{vT3}, v0, 2, 2")
e(f"v_lshl_add_u32 v{vT2}, v{vT2}, 3, v{vT3}")
e(f"v_lshl_add_u32 v{vA1}, v{vT2}, 6, v{vT0}")
e(f"v_mul_u32_u24 v{vT2}, 192, v{vT2}")
e(f"v_add_u32 v{vA2}, v{vT2}, v{vT0}")
e(f"v_and_b32 v{vT0}, 14, v0")
e(f"s_mov_b32 s{sT0}, {ROWB}")
e(f"v_mul_lo_u32 v{vPX}, v{vT0}, s{sT0}")
e(f"v_and_b32 v{vT0}, 1, v0")
e(f"v_mul_u32_u24 v{vT0}, 768, v{vT0}")
e(f"v_bfe_u32 v{vT2}, v0, 4, 1")
e(f"v_mul_u32_u24 v{vT2}, 192, v{vT2}")
e(f"v_add3_u32 v{vPX}, v{vPX}, v{vT0}, v{vT2}")
e(f"v_bfe_u32 v{vT2}, v0, 5, 1")
e(f"v_lshl_add_u32 v{vPX}, v{vT2}, 4, v{vPX}")
e(f"s_bfe_u32 s{sT0}, s{sW}, 0x10001")
e(f"s_mul_i32 s{sT0}, s{sT0}, {ROWB}")
e(f"s_and_b32 s{sT1}, s{sW}, 1")
e(f"s_mul_i32 s{sT1}, s{sT1}, 384")
e(f"s_add_u32 s{sT0}, s{sT0}, s{sT1}")
e(f"s_cmp_ge_u32 s{sW}, 4")
e(f"s_cselect_b32 s{sJ1}, s{sBASE+1}, s{sBASE}")
e(f"s_cselect_b32 s{sJ2}, s{sBASE+3}, s{sBASE+2}")
e(f"s_add_u32 s{sJ1}, s{sJ1}, s{sT0}")
e(f"s_add_u32 s{sJ2}, s{sJ2}, s{sT0}")
e(f"s_mov_b32 s{sC0}, {hex(f2u(C0))}")
e(f"s_mov_b32 s{sC0+1}, {hex(f2u(C0))}")
e(f"s_mov_b32 s{sSC}, {hex(f2u(SC))}")
e(f"s_mov_b32 s{sSC+1}, {hex(f2u(SC))}")
e(f"v_bfe_u32 v{vT0}, v0, 4, 2")
e(f"v_lshlrev_b32 v{vT0}, 1, v{vT0}")
e(f"v_bfe_u32 v{vT2}, v0, 2, 2")
e(f"v_sub_u32 v{vT0}, v{vT0}, v{vT2}")
e(f"v_cmp_gt_u32 s[{sMSK}:{sMSK+1}], 5, v{vT0}")
e(f"v_add_u32 v{vT2}, 1, v{vT0}")
e(f"v_cmp_gt_u32 s[{sMSK+2}:{sMSK+3}], 5, v{vT2}")
e(f"v_subrev_u32 v{vT2}, 1, v{vT0}")
e(f"v_cmp_gt_u32 s[{sMSK+4}:{sMSK+5}], 3, v{vT2}")
e(f"v_cmp_gt_u32 s[{sMSK+6}:{sMSK+7}], 3, v{vT0}")
e(f"v_mul_i32_i24 v{vT0}, 192, v{vT0}")
e(f"v_and_b32 v{vT2}, 3, v0")
e(f"v_lshl_add_u32 v{vT0}, v{vT2}, 1, v{vT0}")
e(f"s_mul_i32 s{sT0}, s{sW}, 24")
e(f"s_add_u32 s{sT0}, s{sT0}, {ST}")
e(f"v_add_u32 v{vT3}, s{sT0}, v{vT0}")
for i in range(38): e(f"v_mov_b32 v{vCW+i}, 0")
for i in range(18): e(f"v_mov_b32 v{vB+i}, 0")
wait_vm(22, 10)
e("s_barrier")
npf = prefetch(2)
for ab in range(2):
    e(f"s_mov_b64 exec, s[{sMSK+2*ab}:{sMSK+2*ab+1}]")
    for q in range(3):
        for i in range(5):
            e(f"ds_read_u16 v{vCW+12*q+2+2*i+ab}, v{vT3} offset:{(5*i+ab)*192 + 8*q}")
    e("s_waitcnt lgkmcnt(0)")
    e(f"s_mov_b64 exec, s[{sMSK+4+2*ab}:{sMSK+4+2*ab+1}]")
    for q in range(3):
        for i in range(3):
            e(f"ds_read_u16 v{vB+9*ab+3*q+i}, v{vT3} offset:{5120 + (3*i+ab-1)*192 + 8*q}")
    e("s_waitcnt lgkmcnt(0)")
e("s_mov_b64 exec, -1")
for ab in range(2):
    for q in range(3):
        for i in range(3):
            r = vCW + 12*q + 2 + 2*(i+1) + ab
            e(f"v_lshl_or_b32 v{r}, v{vB+9*ab+3*q+i}, 16, v{r}")
stamp(1)
for k in range(5):
    zero_acc(2 if k < 4 else 1)
    if k == 0: wait_vm(16 + npf, 5 + npf)
    elif k == 1: wait_vm(10 + npf, npf)
    elif k == 4: e("s_waitcnt vmcnt(0)")
    else: e(f"s_waitcnt vmcnt({npf})")
    e("s_barrier")
    stamp(2 + k)
    if 1 <= k <= 3:
        dma_block(k + 1)
        if k + 2 <= 4: prefetch(k + 2)
    conv_block(k)
stamp(7)
dma_w(range(5, 12))
res_load(sJ1)

steps = [(j, vX, False) for j in range(12)] + [(j, vXP, False) for j in range(12)] + [(12 + j, vX, j == 0) for j in range(3)]
hooks = {}
def h_pre():
    e("s_waitcnt vmcnt(0)")
    res_unpack()
hooks[("pre", 0)] = h_pre
def h_bar():
    e("s_barrier")
hooks[("f1", 5)] = h_bar
hooks[("post", 10)] = lambda: res_load(sJ2)
def h_out1():
    e("s_nop 7")
    out_store(sJ1)
    e("s_waitcnt vmcnt(6)")
    e("s_nop 0")
    res_unpack()
    stamp(8)
hooks[("p2", 12)] = h_out1
def h_x4():
    e(f"s_lshr_b32 s{sT0}, s{sW}, 2")
    e(f"s_mul_i32 s{sT0}, s{sT0}, 6144")
    e(f"s_add_u32 s{sT0}, s{sT0}, {X4}")
    e(f"v_add_u32 v{vT0}, s{sT0}, v{vLIN}")
    for s in range(6): e(f"ds_read_b128 {vr(vX+4*s,4)}, v{vT0} offset:{1024*s}")
hooks[("m2", 20)] = h_x4
def rebase(reg):
    def f():
        e(f"s_and_b32 s{sT0}, s{sW}, 3")
        e(f"s_mul_i32 s{sT0}, s{sT0}, {3*SLOT}")
        e(f"s_sub_u32 s{sT0}, s{sT0}, {AD.b[reg]*SLOT}")
        e(f"v_add_u32 v{reg}, s{sT0}, v{reg}")
        AD.b[reg] = 12
    return f
hooks[("f1", 24)] = rebase(vA1)
hooks[("f2", 24)] = rebase(vA2)
def h_out2():
    e("s_nop 7")
    out_store(sJ2)
    stamp(9)
    e(f"v_bfe_u32 v{vT1}, v{vTID}, 1, 3")
    e(f"s_mov_b32 s{sT0}, {ROWB}")
    e(f"v_mul_lo_u32 v{vT1}, v{vT1}, s{sT0}")
    e(f"v_sub_u32 v{vPX}, v{vPX}, v{vT1}")
    e(f"s_lshr_b32 s{sT0}, s{sW}, 2")
    e(f"s_mul_i32 s{sT0}, s{sT0}, 384")
    e(f"s_add_u32 s{sT0}, s{sT0}, s{sBASE+4}")
    for t in range(3):
        e(f"s_and_b32 s{sT1}, s{sW}, 3")
        e(f"s_mul_i32 s{sT1}, s{sT1}, 3")
        e(f"s_add_u32 s{sT1}, s{sT1}, {t}")
        e(f"s_lshr_b32 s{sT2}, s{sT1}, 1")
        e(f"s_lshl_b32 s{sT2}, s{sT2}, 5")
        e(f"s_and_b32 s{sT1}, s{sT1}, 1")
        e(f"s_lshl_b32 s{sT1}, s{sT1}, 3")
        e(f"s_add_u32 s{sT1}, s{sT1}, s{sT2}")
        e(f"s_add_u32 s{sMSK+t}, s{sT1}, s{sT0}")
        e(f"buffer_load_dwordx2 {vr(vRES+2*t,2)}, v{vPX}, s[{sX}:{sX+3}], s{sMSK+t} offen")
hooks[("p2", 24)] = h_out2
ffn_chain(steps, hooks)
stamp(10)
e(f"s_mul_i32 s{sT0}, s{sW}, 12288")
e(f"v_add_u32 v{vT0}, s{sT0}, v{vLIN}")
e(f"s_and_b32 s{sT0}, s{sW}, 4")
e(f"s_mul_i32 s{sT0}, s{sT0}, 12288")
e(f"s_and_b32 s{sT1}, s{sW}, 3")
e(f"s_mul_i32 s{sT1}, s{sT1}, 3072")
e(f"s_add_u32 s{sT0}, s{sT0}, s{sT1}")
e(f"v_add_u32 v{vT1}, s{sT0}, v{vLIN}")
e("s_barrier")
e("s_nop 7")
for u in range(12): e(f"ds_write_b128 v{vT0}, {vr(vO+4*u,4)} offset:{1024*u}")
e("s_waitcnt lgkmcnt(0)")
e("s_barrier")
vR = 112
for t in range(3):
    for p in range(4):
        e(f"ds_read_b128 {vr(vR+16*t+4*p,4)}, v{vT1} offset:{12288*p + 1024*t}")
e("s_waitcnt vmcnt(0)")
for t in range(3):
    for i in range(2):
        e(f"v_lshlrev_b32 v{vO+4*t+2*i}, 16, v{vRES+2*t+i}")
        e(f"v_and_b32 v{vO+4*t+2*i+1}, 0xffff0000, v{vRES+2*t+i}")
for t in range(3):
    e(f"s_waitcnt lgkmcnt({8-4*t})")
    for p in range(4):
        for i in range(2):
            e(f"v_pk_add_f32 {vr(vO+4*t+2*i,2)}, {vr(vO+4*t+2*i,2)}, {vr(vR+16*t+4*p+2*i,2)}")
    e(f"v_cvt_pk_bf16_f32 v{vO+16+2*t}, v{vO+4*t}, v{vO+4*t+1}")
    e(f"v_cvt_pk_bf16_f32 v{vO+16+2*t+1}, v{vO+4*t+2}, v{vO+4*t+3}")
    e(f"buffer_store_dwordx2 {vr(vO+16+2*t,2)}, v{vPX}, s[{sO}:{sO+3}], s{sMSK+t} offen {OPT['store_mod']}")
if OPT["stamp"]:
    e("s_waitcnt vmcnt(0)")
    stamp(11)
    e(f"s_memrealtime s[{sTS+26}:{sTS+27}]")
    e("s_waitcnt lgkmcnt(0)")
    e(f"s_lshl_b32 s{sT0}, s2, 3")
    e(f"s_add_u32 s{sT0}, s{sT0}, s{sW}")
    e(f"s_lshl_b32 s{sT0}, s{sT0}, 6")
    e(f"v_mov_b32 v{vT0}, 0")
    for i in range(14):
        e(f"v_mov_b32 v{vT1}, s{sTS+2*i}")
        e(f"buffer_store_dword v{vT1}, v{vT0}, s[{sDBG}:{sDBG+3}], s{sT0} offen offset:{4*i}")
lab("L_end")
e("s_endpgm")

ref = open(f"cdna_kernels/{NAME}.s.ref").read().splitlines()
head = [l for l in ref if l.startswith(";") and "@launch" not in l]
out = "\n".join(head) + f"\n; @launch grid=(256,1,1) block=(512,1,1) lds={LDS_TOTAL}\n"
out += f""".amdgcn_target "amdgcn-amd-amdhsa--gfx950"
.text
.globl {NAME}_kernel
.p2align 8
.type {NAME}_kernel,@function
{NAME}_kernel:
""" + "\n".join(L) + f"""
.section .rodata,"a"
.p2align 6
.amdhsa_kernel {NAME}_kernel
  .amdhsa_next_free_vgpr 256
  .amdhsa_next_free_sgpr 102
  .amdhsa_accum_offset 256
  .amdhsa_group_segment_fixed_size 0
  .amdhsa_kernarg_size 64
  .amdhsa_user_sgpr_count 2
  .amdhsa_user_sgpr_kernarg_segment_ptr 1
  .amdhsa_system_sgpr_workgroup_id_x 1
.end_amdhsa_kernel
"""
open(sys.argv[1], "w").write(out)
```

```python
import sys, struct, math
NAME = "standalone__modern_conv_block_replknet__vision"
OPT = dict(store_mod="", stamp=0, ld_mod="", w_mod="", prio=2, fine=-1, bar=9, gam=6)
for a in sys.argv[2:]:
    k, v = a.split("=")
    OPT[k] = int(v) if v.lstrip("-").isdigit() else v.replace("+", " ")

def f2u(x): return struct.unpack("<I", struct.pack("<f", x))[0]
K0 = 2.0 * math.sqrt(2.0 / math.pi) * math.log2(math.e)
K1 = K0 * 0.044715
SC = K1 ** (1.0 / 3.0)
C0 = K0 / SC

L = []
def e(s): L.append("  " + s)
def lab(s): L.append(s + ":")
def cm(s): L.append("  ; " + s)
def vr(b, n): return f"v[{b}:{b+n-1}]"
def sr(b, n=2): return f"s[{b}:{b+n-1}]"

SLOT = 12288
SB = [47104, 116736, 0, 47104, 108544]
XB = [75776, 139264, 22528, 75776, 151552]
DW = 108544
STB = [100352 + 4096 * (k & 1) for k in range(5)]
ROWP = 145 * 16
LDS_TOTAL = 163840
XBYTES = 384 * 384 * 192
ROWB = 384 * 192
ORDER = [0, 4, 5, 1, 2, 3, 9, 10, 11, 6, 7, 8]

sX, sO, sWS, sDS, sDL = 4, 8, 12, 20, 24
sWB, sWP, sWJ = 16, 17, 18
sI4 = 19
sW = 28
sCU = 29
sT0, sT1, sT2, sT3 = 30, 31, 32, 33
sBASE = 34
sBFL = 39
sC0 = 44
sSC = 46
sMSK = 48
sJ1, sJ2 = 56, 57
sI1K = 58
sI3K = 59
sDBG = 60
sTS = 64

vTID = 0
vA1, vA2 = 1, 2
vPX = 3
vLIN = 4
vT0, vT1, vT2, vT3 = 5, 6, 7, 8
vIN = 9
vXW = 10
vWO = 11
vPK = 12
vIDX = 13
vFL = 14
vRD = 15
vX = 16
vXP = 40
vO = 64
vH = [112, 128]
vT = 144
vU = 160
vY = 176
vF1 = 184
vF2 = 208
vRES = 232
vCW = 64
vREL = 138
vCA = 142
vSTA = 143
vACC = 144
vS = 192
vD = 200
vRES1 = 208

def stamp(i, fine=False):
    if OPT["fine"] >= 0 and not fine and 1 <= i <= 12: return
    if OPT["stamp"]:
        e(f"{'s_memtime' if OPT['stamp'] == 1 else 's_memrealtime'} s[{sTS+2*i}:{sTS+2*i+1}]")

def srd(d, ptr, nbytes):
    e(f"s_mov_b32 s{d}, s{ptr}")
    e(f"s_mov_b32 s{d+1}, s{ptr+1}")
    e(f"s_mov_b32 s{d+2}, {nbytes}")
    e(f"s_mov_b32 s{d+3}, 0x20000")

uid = [0]
def newlab(p):
    uid[0] += 1
    return f"L_{p}_{uid[0]}"

class LQ:
    def __init__(self): self.q = []
    def op(self, s, tag=None):
        e(s); self.q.append(tag)
    def wait(self, tag):
        idx = [i for i, t in enumerate(self.q) if t == tag]
        if not idx: return
        n = len(self.q) - 1 - max(idx)
        e(f"s_waitcnt lgkmcnt({min(n, 14)})")
        self.q = self.q[max(idx) + 1:]
    def waitall(self):
        e("s_waitcnt lgkmcnt(0)"); self.q = []

def block_base(k):
    if k == 0: e(f"s_mov_b32 s{sT0}, s{sCU}")
    elif k < 4: e(f"s_add_u32 s{sT0}, s{sCU}, {32*k}")
    else:
        e(f"s_lshr_b32 s{sT0}, s{sCU}, 1")
        e(f"s_add_u32 s{sT0}, s{sT0}, 128")
    e(f"s_mul_i32 s{sT1}, s{sT0}, 171")
    e(f"s_lshr_b32 s{sT1}, s{sT1}, 10")
    e(f"s_mul_i32 s{sT2}, s{sT1}, 6")
    e(f"s_sub_u32 s{sT2}, s{sT0}, s{sT2}")
    e(f"s_add_u32 s{sT2}, s{sT2}, s3")
    e(f"s_mul_i32 s{sBASE+k}, s{sT1}, {16*ROWB}")
    e(f"s_mul_i32 s{sT3}, s{sT2}, {8*192}")
    e(f"s_add_u32 s{sBASE+k}, s{sBASE+k}, s{sT3}")
    if k == 4:
        e(f"s_and_b32 s{sT3}, s{sCU}, 1")
        e(f"s_mul_i32 s{sT3}, s{sT3}, {8*ROWB}")
        e(f"s_add_u32 s{sBASE+k}, s{sBASE+k}, s{sT3}")
    e(f"s_cmp_eq_u32 s{sT2}, 0")
    e(f"s_cselect_b32 s{sBFL+k}, 0, 8")
    e(f"s_cmp_eq_u32 s{sT2}, 47")
    e(f"s_cselect_b32 s{sBFL+k}, 4, s{sBFL+k}")

def calc_rel(js):
    e(f"s_mov_b32 s{sT0}, {ROWB - 145*16}")
    for j in js:
        e(f"v_and_b32 v{vT0}, 255, v0")
        if j: e(f"v_add_u32 v{vT0}, {256*j}, v{vT0}")
        e(f"v_mul_u32_u24 v{vT2}, 7232, v{vT0}")
        e(f"v_lshrrev_b32 v{vT2}, 20, v{vT2}")
        e(f"v_mul_u32_u24 v{vT3}, 145, v{vT2}")
        e(f"v_sub_u32 v{vT3}, v{vT0}, v{vT3}")
        e(f"v_lshlrev_b32 v{vT0}, 4, v{vT0}")
        e(f"v_mad_u32_u24 v{vREL+j}, v{vT2}, s{sT0}, v{vT0}")
        e(f"v_add_u32 v{vT2}, 1, v{vT3}")
        e(f"v_mul_u32_u24 v{vT2}, 1338, v{vT2}")
        e(f"v_lshrrev_b32 v{vT2}, 16, v{vT2}")
        e(f"v_mad_i32_i24 v{vREL+j}, v{vT2}, -8, v{vREL+j}")
        e(f"v_subrev_u32 v{vT2}, 24, v{vT3}")
        e(f"v_lshrrev_b32 v{vT2}, 31, v{vT2}")
        e(f"v_lshl_or_b32 v{vFL}, v{vT2}, {j}, v{vFL}")
        e(f"v_sub_u32 v{vT2}, 120, v{vT3}")
        e(f"v_lshrrev_b32 v{vT2}, 31, v{vT2}")
        e(f"v_lshl_or_b32 v{vFL}, v{vT2}, {4+j}, v{vFL}")
for x in range(1024): assert (x * 7232) >> 20 == x // 145
for x in range(145): assert ((x + 1) * 1338) >> 16 == (x >= 48) + (x >= 97)

def dma_block(k, parts=None):
    ng = 3 if k < 4 else 2
    if parts is None: parts = [(g, j) for g in range(ng) for j in range(4)]
    cm(f"input DMA block {k} parts {parts}")
    js = sorted(set(j for g, j in parts))
    e(f"s_sub_u32 s{sT0}, s{sBASE+k}, {2*ROWB + 2*192}")
    e(f"v_lshrrev_b32 v{vT3}, s{sBFL+k}, v{vFL}")
    for j in js: e(f"v_bfe_i32 v{vD+j}, v{vT3}, {j}, 1")
    n = 0
    for g, j in parts:
        if g: continue
        e(f"v_add_u32 v{vD+4+j}, s{sT0}, v{vREL+j}")
        e(f"s_add_u32 m0, s{sI1K}, {SB[k] + 4096*j}")
        e(f"v_or_b32 v{vD+4+j}, v{vD+4+j}, v{vD+j}")
        e(f"buffer_load_dwordx4 v{vD+4+j}, {sr(sX,4)}, 0 offen {OPT['ld_mod']} lds")
        n += 1
    for j in js: e(f"v_or_b32 v{vD+j}, v{vD+j}, v{vREL+j}")
    for g, j in parts:
        if g == 0: continue
        skip = None
        if g == ng - 1 and j == 3:
            skip = newlab("skipdma")
            e(f"s_cmp_ge_u32 s{sI4}, 2")
            e(f"s_cbranch_scc1 {skip}")
        else: n += 1
        e(f"s_add_u32 m0, s{sI1K}, {SB[k] + 7*g*ROWP + 4096*j}")
        e(f"s_add_u32 s{sT1}, s{sT0}, {7*g*ROWB}")
        e(f"buffer_load_dwordx4 v{vD+j}, {sr(sX,4)}, s{sT1} offen {OPT['ld_mod']} lds")
        if skip: lab(skip)
    return n

def dma_w(slots):
    cm(f"weight DMA slots {list(slots)}")
    for j in slots:
        e(f"s_mul_i32 s{sT0}, s{sWJ}, {j}")
        e(f"s_add_u32 s{sT0}, s{sT0}, s{sWB}")
        for t in range(3):
            e(f"s_add_u32 m0, s{sI3K}, {j*SLOT + 1024*t}")
            if t: e(f"s_add_u32 s{sT0}, s{sT0}, s{sWP}")
            else: e("s_nop 0")
            e(f"buffer_load_dwordx4 v{vWO}, {sr(sWS,4)}, s{sT0} offen {OPT['w_mod']} lds")
    return 3 * len(slots)

def zero16(a):
    z = vr(vCW, 2)
    e(f"v_mfma_f32_32x32x8_bf16 {vr(a,16)}, {z}, {z}, 0")

def pickup(k, q):
    e(f"v_add_u32 v{vT3}, {XB[k]}, v{vPK}")
    d = vX if k < 2 else vXP
    for s in range(6): q.op(f"ds_read_b128 {vr(d+4*s,4)}, v{vT3} offset:{1024*s}", "pk")

def conv_addr(k):
    if k < 4: e(f"v_add_u32 v{vCA}, {SB[k]}, v{vIN}")
    else:
        e(f"v_bfe_u32 v{vT1}, v{vTID}, 1, 3")
        e(f"v_mul_u32_u24 v{vT1}, {ROWP}, v{vT1}")
        e(f"v_sub_u32 v{vCA}, v{vIN}, v{vT1}")
        e(f"v_add_u32 v{vCA}, {SB[k]}, v{vCA}")

def conv(k, gamma=False):
    q = LQ()
    cm(f"======== conv {k}")
    R = 2 if k < 4 else 1
    ring = [vXP, vXP + 8, vXP + 16] + ([vRES, vRES + 8, vRES + 16] if k < 4 else [vACC + 24, vACC + 32, vACC + 40])
    reads = []
    for qq in range(6):
        for f in range(3):
            for rp in range(4):
                d = ring[(qq * 3 + f) % 6] + 2 * rp
                reads.append((f"ds_read_b64 {vr(d,2)}, v{vCA} offset:{2*f*ROWP + (rp>>1)*776 + (rp&1)*192 + 8*qq}", ("B", qq * 3 + f)))
    for r, t in reads[:12]: q.op(r, t)
    if k in (2, 3): pickup(k - 2, q)
    nxt = 12
    for idx in range(18):
        qq, f = divmod(idx, 3)
        q.wait(("B", idx))
        for rho in range(R):
            a = vCW + 12 * qq + 4 * f + (2 if rho == 0 else 0)
            e(f"v_smfmac_f32_16x16x64_bf16 {vr(vACC + rho*24 + 4*qq, 4)}, {vr(a,4)}, {vr(ring[idx % 6], 8)}, v{vIDX}")
            h = (2 if rho == 0 else 4) if R == 2 else 4
            lo = nxt + (h - 2 if R == 2 else 0)
            for r, t in reads[lo:nxt+h]: q.op(r, t)
        nxt += 4
        if gamma and idx == OPT["gam"]: e("s_barrier")
    if k < 4:
        e(f"v_add_u32 v{vT3}, {SB[k]}, v{vRD}")
        d = vRES1 if k < 2 else vRES
        for i in range(12): e(f"ds_read_b64 {vr(d+2*i,2)}, v{vT3} offset:{32*(i>>1) + 8*(i&1)}")
    else:
        pickup(2, q)
    e(f"v_add_u32 v{vSTA}, {STB[k]}, v{vLIN}")
    e(f"v_add_u32 v{vT0}, s{sI1K}, v{vSTA}")
    for rho in range(R):
        a = vACC + rho * 24
        s2, q2 = vS + 4 * rho, vS + 4 * rho + 2
        e(f"v_pk_add_f32 {vr(s2,2)}, {vr(a,2)}, {vr(a+2,2)}")
        e(f"v_pk_mul_f32 {vr(q2,2)}, {vr(a,2)}, {vr(a,2)}")
        for i in range(1, 12):
            if i >= 2: e(f"v_pk_add_f32 {vr(s2,2)}, {vr(s2,2)}, {vr(a+2*i,2)}")
            e(f"v_pk_fma_f32 {vr(q2,2)}, {vr(a+2*i,2)}, {vr(a+2*i,2)}, {vr(q2,2)}")
    e(f"v_add_f32 v{vS}, v{vS}, v{vS+1}")
    e(f"v_add_f32 v{vS+1}, v{vS+2}, v{vS+3}")
    if R == 2:
        e(f"v_add_f32 v{vS+2}, v{vS+4}, v{vS+5}")
        e(f"v_add_f32 v{vS+3}, v{vS+6}, v{vS+7}")
    e(f"ds_write_b128 v{vT0}, {vr(vS,4)}")
    e("s_waitcnt lgkmcnt(0)")

def norm(k, pre=None):
    q = LQ()
    cm(f"======== norm {k}")
    R = 2 if k < 4 else 1
    tb = vXP if k < 4 else vACC + 24
    for w in range(4): q.op(f"ds_read_b128 {vr(tb+4*w,4)}, v{vSTA} offset:{1024*w}", "st")
    e(f"v_add_u32 v{vT0}, {XB[k]}, v{vXW}")
    if pre: pre()
    q.wait("st")
    for i in range(2 * R): e(f"v_add_f32 v{tb+i}, v{tb+i}, v{tb+4+i}")
    for i in range(2 * R): e(f"v_add_f32 v{tb+8+i}, v{tb+8+i}, v{tb+12+i}")
    for i in range(2 * R): e(f"v_add_f32 v{tb+i}, v{tb+i}, v{tb+8+i}")
    rr = range(R)
    sm = [tb + 2 * r for r in rr]; sq = [tb + 2 * r + 1 for r in rr]
    for r in rr: e(f"v_mul_f32 v{sm[r]}, {hex(f2u(1.0/96))}, v{sm[r]}")
    for r in rr: e(f"v_mul_f32 v{sq[r]}, {hex(f2u(1.0/96))}, v{sq[r]}")
    for r in rr: e(f"v_fma_f32 v{sq[r]}, -v{sm[r]}, v{sm[r]}, v{sq[r]}")
    for r in rr: e(f"v_max_f32 v{sq[r]}, 0, v{sq[r]}")
    for r in rr: e(f"v_add_f32 v{sq[r]}, {hex(f2u(1e-5))}, v{sq[r]}")
    for r in rr: e(f"v_rsq_f32 v{sq[r]}, v{sq[r]}")
    e("s_nop 0")
    for r in rr: e(f"v_mul_f32 v{sq[r]}, {hex(f2u(SC))}, v{sq[r]}")
    for r in rr: e(f"v_mul_f32 v{sm[r]}, v{sm[r]}, v{sq[r]}")
    for rho in rr:
        a = vACC + rho * 24
        for o in range(3):
            for i in range(8): e(f"v_fma_f32 v{a+8*o+i}, v{a+8*o+i}, v{sq[rho]}, -v{sm[rho]}")
            for i in range(4): e(f"v_cvt_pk_bf16_f32 v{a+4*o+i}, v{a+8*o+2*i}, v{a+8*o+2*i+1}")
        for o in range(3): e(f"ds_write_b128 v{vT0}, {vr(a+4*o,4)} offset:{rho*12288 + 512*o}")

def norm_end(nextk):
    e("s_waitcnt lgkmcnt(0)")
    if nextk is not None:
        for i in range(3 if nextk < 4 else 2): zero16(vACC + 16 * i)
        conv_addr(nextk)

def load_cw():
    for ab in range(2):
        e(f"s_mov_b64 exec, s[{sMSK+2*ab}:{sMSK+2*ab+1}]")
        for q in range(6):
            for i in range(5):
                e(f"ds_read_u16 v{vCW+12*q+2+2*i+ab}, v{vS} offset:{(5*i+ab)*192 + 8*q}")
        e(f"s_mov_b64 exec, s[{sMSK+4+2*ab}:{sMSK+4+2*ab+1}]")
        for q in range(6):
            for i in range(3):
                e(f"ds_read_u16 v{vRES1+18*ab+3*q+i}, v{vS} offset:{5120 + (3*i+ab-1)*192 + 8*q}")
    e("s_mov_b64 exec, -1")
def merge_cw():
    e("s_waitcnt lgkmcnt(0)")
    for ab in range(2):
        for q in range(6):
            for i in range(3):
                r = vCW + 12*q + 2 + 2*(i+1) + ab
                e(f"v_lshl_or_b32 v{r}, v{vRES1+18*ab+3*q+i}, 16, v{r}")

def setup_conv():
    e(f"v_and_b32 v{vT0}, 14, v0")
    e(f"v_mul_u32_u24 v{vRD}, {ROWP}, v{vT0}")
    e(f"v_and_b32 v{vT0}, 1, v0")
    e(f"v_mul_u32_u24 v{vT0}, 776, v{vT0}")
    e(f"v_add_u32 v{vRD}, v{vRD}, v{vT0}")
    e(f"v_bfe_u32 v{vT2}, v0, 4, 1")
    e(f"v_mul_u32_u24 v{vT0}, {ROWP}, v{vT2}")
    e(f"v_bfe_u32 v{vT3}, v0, 5, 1")
    e(f"v_mul_u32_u24 v{vT1}, 384, v{vT3}")
    e(f"v_add3_u32 v{vIN}, v{vRD}, v{vT0}, v{vT1}")
    e(f"s_mul_i32 s{sT0}, s{sI4}, 48")
    e(f"v_add_u32 v{vIN}, s{sT0}, v{vIN}")
    e(f"v_mul_u32_u24 v{vT0}, 192, v{vT2}")
    e(f"v_lshl_add_u32 v{vPX}, v{vT3}, 4, v{vT0}")
    e(f"s_lshr_b32 s{sT0}, s{sI4}, 1")
    e(f"s_mul_i32 s{sT1}, s{sT0}, {ROWP}")
    e(f"s_and_b32 s{sT2}, s{sI4}, 1")
    e(f"s_mul_i32 s{sT3}, s{sT2}, 392")
    e(f"s_add_u32 s{sT1}, s{sT1}, s{sT3}")
    e(f"s_add_u32 s{sT1}, s{sT1}, {2*ROWP + 384}")
    e(f"v_add3_u32 v{vRD}, v{vRD}, v{vPX}, s{sT1}")
    e(f"v_mul_u32_u24 v{vT0}, 6144, v{vT3}")
    e(f"v_and_b32 v{vT2}, 31, v0")
    e(f"v_lshl_add_u32 v{vT0}, v{vT2}, 4, v{vT0}")
    e(f"s_mul_i32 s{sT0}, s{sI4}, 1536")
    e(f"v_add_u32 v{vXW}, s{sT0}, v{vT0}")
    e(f"s_mul_i32 s{sT0}, s{sI4}, 6144")
    e(f"v_add_u32 v{vPK}, s{sT0}, v{vLIN}")

def setup_ffn(grp):
    e(f"s_cmp_lt_u32 s{sI4}, 2")
    e(f"s_cselect_b32 s{sWS}, s96, s98")
    e(f"s_cselect_b32 s{sWS+1}, s97, s99")
    e(f"s_mov_b32 s{sWS+2}, 73728")
    e(f"s_mov_b32 s{sWS+3}, 0x20000")
    e(f"s_movk_i32 s{sWP}, 1024")
    e(f"s_cselect_b32 s{sWP}, 12288, s{sWP}")
    e(f"s_cselect_b32 s{sWJ}, 64, 6144")
    e(f"s_cselect_b32 s{sT0}, 768, 64")
    e(f"s_and_b32 s{sT1}, s{sI4}, 1")
    e(f"s_mul_i32 s{sWB}, s{sWP}, 3")
    e(f"s_mul_i32 s{sWB}, s{sWB}, s{sT1}")
    e(f"s_mul_i32 s{sI3K}, s{sI4}, 3072")
    e(f"v_bfe_u32 v{vT0}, v0, 2, 4")
    e(f"v_mul_u32_u24 v{vT0}, s{sT0}, v{vT0}")
    e(f"v_and_b32 v{vT2}, 3, v0")
    e(f"v_lshl_add_u32 v{vWO}, v{vT2}, 4, v{vT0}")
    e(f"v_and_b32 v{vT1}, 14, v0")
    e(f"s_mov_b32 s{sT3}, {ROWB}")
    e(f"v_mul_lo_u32 v{vT0}, v{vT1}, s{sT3}")
    e(f"v_and_b32 v{vT1}, 1, v0")
    e(f"v_mul_u32_u24 v{vT1}, 768, v{vT1}")
    e(f"v_add3_u32 v{vPX}, v{vPX}, v{vT0}, v{vT1}")
    e(f"s_lshr_b32 s{sT0}, s{sI4}, 1")
    e(f"s_mul_i32 s{sT0}, s{sT0}, {ROWB}")
    e(f"s_and_b32 s{sT2}, s{sI4}, 1")
    e(f"s_mul_i32 s{sT2}, s{sT2}, 384")
    e(f"s_add_u32 s{sT0}, s{sT0}, s{sT2}")
    e(f"s_add_u32 s{sJ1}, s{sBASE+grp}, s{sT0}")
    e(f"s_add_u32 s{sJ2}, s{sBASE+2+grp}, s{sT0}")
    e(f"v_bfe_u32 v{vT0}, v0, 4, 1")
    e(f"v_lshlrev_b32 v{vT0}, 5, v{vT0}")
    e(f"v_and_b32 v{vT2}, 1, v0")
    e(f"v_lshl_add_u32 v{vT0}, v{vT2}, 4, v{vT0}")
    e(f"v_bfe_u32 v{vT2}, v0, 1, 1")
    e(f"v_lshl_add_u32 v{vT0}, v{vT2}, 3, v{vT0}")
    e(f"v_bfe_u32 v{vT2}, v0, 2, 2")
    e(f"v_bfe_u32 v{vT3}, v0, 5, 1")
    e(f"v_lshl_add_u32 v{vT2}, v{vT3}, 3, v{vT2}")
    e(f"v_lshl_add_u32 v{vA1}, v{vT2}, 6, v{vT0}")
    e(f"v_mul_u32_u24 v{vT2}, 192, v{vT2}")
    e(f"v_add_u32 v{vA2}, v{vT2}, v{vT0}")
    for r, v in ((sC0, C0), (sSC, SC)):
        e(f"s_mov_b32 s{r}, {hex(f2u(v))}")
        e(f"s_mov_b32 s{r+1}, {hex(f2u(v))}")

class Addr:
    def __init__(self): self.b = {vA1: 0, vA2: 0}
    def off(self, reg, slot, extra): return (slot - self.b[reg]) * SLOT + extra
    def ensure(self, reg, slot):
        if not (0 <= (slot - self.b[reg]) * SLOT and (slot - self.b[reg] + 1) * SLOT <= 65536):
            nb = {0: 0, 5: 1, 9: 7, 6: 6}.get(slot, slot)
            d = (nb - self.b[reg]) * SLOT
            if d > 0: e(f"v_add_u32 v{reg}, {d}, v{reg}")
            else: e(f"v_subrev_u32 v{reg}, {-d}, v{reg}")
            self.b[reg] = nb
AD = Addr()
def f1_reads(slot):
    AD.ensure(vA1, slot)
    return [f"ds_read_b64_tr_b16 {vr(vF1+4*s+2*t,2)}, v{vA1} offset:{AD.off(vA1, slot, (16*s+4*t)*64)}" for s in range(6) for t in range(2)]
def f2_reads(slot):
    AD.ensure(vA2, slot)
    return [f"ds_read_b64_tr_b16 {vr(vF2+12*s+4*T+2*t,2)}, v{vA2} offset:{AD.off(vA2, slot, 6144+(16*s+4*t)*192+64*T)}" for s in range(2) for T in range(3) for t in range(2)]
def g1(h, x):
    return [f"v_mfma_f32_32x32x16_bf16 {vr(h,16)}, {vr(vF1+4*s,4)}, {vr(x+4*s,4)}, {vr(h,16) if s else 0}" for s in range(6)]
def g2(zero=False):
    return [f"v_mfma_f32_32x32x16_bf16 {vr(vO+16*T,16)}, {vr(vF2+12*s+4*T,4)}, {vr(vY+4*s,4)}, {0 if (zero and s==0) else vr(vO+16*T,16)}" for s in range(2) for T in range(3)]
def cvts(lo, hi): return [f"v_cvt_pk_bf16_f32 v{vY+i}, v{vU+2*i}, v{vU+2*i+1}" for i in range(lo, hi)]
def pz(h):
    a = [f"v_pk_fma_f32 {vr(vT+2*i,2)}, {vr(h+2*i,2)}, {vr(h+2*i,2)}, {sr(sC0)}" for i in range(8)]
    b = [f"v_pk_mul_f32 {vr(vT+2*i,2)}, {vr(vT+2*i,2)}, {vr(h+2*i,2)} neg_lo:[1,0] neg_hi:[1,0]" for i in range(8)]
    return a + b
PEND = []
def pphase(ops, ds, nst=1):
    for r in ds: e(r)
    for i in range(nst):
        if PEND: e(PEND.pop(0))
    for o in ops: e(o)
def mphase(mf, fill):
    for i in range(6):
        if mf: e(mf[i])
        for o in fill[i]: e(o)
def res_unpack(src):
    for i in range(24):
        e(f"v_lshlrev_b32 v{vO+2*i}, 16, v{src+i}")
        e(f"v_and_b32 v{vO+2*i+1}, 0xffff0000, v{src+i}")
def out_pack(dst, sbase):
    for i in range(24): e(f"v_cvt_pk_bf16_f32 v{dst+i}, v{vO+2*i}, v{vO+2*i+1}")
    for i in range(6):
        PEND.append(f"buffer_store_dwordx4 {vr(dst+4*i,4)}, v{vPX}, {sr(sO,4)}, s{sbase} offen offset:{32*i} {OPT['store_mod']}")

def ffn_chain(steps, hooks):
    N = len(steps)
    def hook(p, j):
        for f in hooks.get((p, j), []): f()
    for r in f1_reads(steps[0][0]): e(r)
    hook("pre", 0)
    e("s_waitcnt lgkmcnt(0)")
    for m in g1(vH[0], steps[0][1]): e(m)
    for r in f1_reads(steps[1][0]): e(r)
    hook("pre2", 0)
    e("s_nop 3")
    for o in pz(vH[0]): e(o)
    for j in range(N):
        cm(f"ustep {j}")
        ex = [f"v_exp_f32 v{vT+i}, v{vT+i}" for i in range(16)]
        rc = [f"v_rcp_f32 v{vT+i}, v{vT+i}" for i in range(16)]
        c = cvts(0, 8) if j >= 1 else []
        hook("m1", j)
        if j + 1 < N: e(f"s_waitcnt lgkmcnt({12 if j >= 1 else 0})")
        mphase(g1(vH[(j+1) & 1], steps[j+1][1]) if j + 1 < N else [],
               [ex[0:3], ex[3:6], ex[6:9], ex[9:12], ex[12:14] + c[0:2], ex[14:16] + c[2:4]])
        hook("f1", j + 2)
        d = [f"v_pk_fma_f32 {vr(vT+2*i,2)}, {vr(vT+2*i,2)}, {sr(sSC)}, {sr(sSC)}" for i in range(8)]
        nst = 2 if j >= 24 else 1
        pphase(d, f1_reads(steps[j+2][0]) if j + 2 < N else [], nst)
        hook("m2", j)
        if j >= 1: e(f"s_waitcnt lgkmcnt({12 if j + 2 < N else 0})")
        mphase(g2(steps[j-1][2]) if j >= 1 else [],
               [rc[0:2] + c[4:6], rc[2:4] + c[6:8], rc[4:7], rc[7:10], rc[10:13], rc[13:16]])
        h = vH[j & 1]
        y = [f"v_pk_mul_f32 {vr(vU+2*i,2)}, {vr(h+2*i,2)}, {vr(vT+2*i,2)}" for i in range(8)]
        hook("f2", j)
        pphase(y + (pz(vH[(j+1) & 1]) if j + 1 < N else []), f2_reads(steps[j][0]), nst)
        hook("post", j)
        if OPT["fine"] == 9 and j % 2 == 1 and j < 24: stamp(1 + j // 2, True)
    assert not PEND
    for o in cvts(0, 8): e(o)
    e("s_waitcnt lgkmcnt(0)")
    e("s_nop 0")
    for m in g2(steps[N-1][2]): e(m)

sKA = 64
e("s_cmp_ge_u32 s2, 256")
e("s_cbranch_scc1 L_end")
e(f"s_load_dwordx2 s[{sX}:{sX+1}], s[0:1], 0")
e("s_load_dwordx4 s[24:27], s[0:1], 8")
e("s_load_dwordx4 s[96:99], s[0:1], 24")
e(f"s_load_dwordx2 s[{sO}:{sO+1}], s[0:1], 40")
if OPT["stamp"]:
    e(f"s_load_dwordx2 s[{sDBG}:{sDBG+1}], s[0:1], 56")
    e(f"s_mov_b32 s{sDBG+2}, {1 << 20}")
    e(f"s_mov_b32 s{sDBG+3}, 0x20000")
    e(f"s_memrealtime s[{sTS+28}:{sTS+29}]")
    stamp(0)
e(f"s_mov_b32 s{sX+2}, {XBYTES}")
e(f"s_mov_b32 s{sX+3}, 0x20000")
e(f"s_mov_b32 s{sO+2}, {XBYTES}")
e(f"s_mov_b32 s{sO+3}, 0x20000")
e(f"v_lshrrev_b32 v{vT0}, 6, v0")
e(f"v_and_b32 v{vT1}, 63, v0")
e(f"v_readfirstlane_b32 s{sW}, v{vT0}")
e(f"v_lshlrev_b32 v{vLIN}, 4, v{vT1}")
e(f"s_lshr_b32 s{sCU}, s2, 3")
e(f"s_and_b32 s3, s2, 7")
e(f"s_mul_i32 s3, s3, 6")
e(f"s_and_b32 s{sI4}, s{sW}, 3")
e(f"s_lshl_b32 s{sI1K}, s{sI4}, 10")
e(f"v_mov_b32 v{vFL}, 0")
e(f"v_mov_b32 v{vCW}, 0")
e(f"v_mov_b32 v{vCW+1}, 0")
block_base(0)
e(f"s_cmp_ge_u32 s{sW}, 4")
e(f"s_cbranch_scc1 L_grpB")

def start_common(grp):
    calc_rel([0, 1] if grp == 0 else [2, 3])
    e("s_waitcnt lgkmcnt(0)")
    if grp == 0:
        srd(sDS, 26, 4800)
        e(f"s_add_u32 m0, s{sI1K}, {DW}")
        e("s_nop 0")
        e(f"buffer_load_dwordx4 v{vLIN}, {sr(sDS,4)}, s{sI1K} offen lds")
    else:
        e(f"s_cmp_eq_u32 s{sI4}, 0")
        e(f"s_cselect_b32 s{sDS}, s26, s24")
        e(f"s_cselect_b32 s{sDS+1}, s27, s25")
        e(f"s_movk_i32 s{sDS+2}, 1728")
        e(f"s_cselect_b32 s{sDS+2}, 4800, s{sDS+2}")
        e(f"s_mov_b32 s{sDS+3}, 0x20000")
        e(f"s_cselect_b32 s{sT0}, 5120, 0")
        e(f"s_add_u32 s{sT0}, s{sT0}, s{sI1K}")
        e(f"s_sub_u32 s{sT0}, s{sT0}, 1024")
        e(f"s_add_u32 m0, s{sI1K}, {DW + 4096}")
        e("s_nop 0")
        e(f"buffer_load_dwordx4 v{vLIN}, {sr(sDS,4)}, s{sT0} offen lds")
    n = dma_block(0, [(g, j) for g in range(3) for j in ((0, 1) if grp == 0 else (2, 3))])
    stamp(1)
    for a in (vCW + 2, vCW + 18, vCW + 34, vCW + 50, vRES1, vRES1 + 16, vRES1 + 32, vACC, vACC + 16, vACC + 32): zero16(a)
    z = vr(vCW, 2)
    e(f"v_mfma_f32_16x16x16_bf16 {vr(vCW+66,4)}, {z}, {z}, 0")
    e(f"v_mfma_f32_16x16x16_bf16 {vr(vCW+70,4)}, {z}, {z}, 0")
    e(f"v_bfe_u32 v{vT0}, v0, 4, 2")
    e(f"v_lshlrev_b32 v{vT0}, 1, v{vT0}")
    e(f"v_bfe_u32 v{vT2}, v0, 2, 2")
    e(f"v_sub_u32 v{vT0}, v{vT0}, v{vT2}")
    e(f"v_cmp_gt_u32 s[{sMSK}:{sMSK+1}], 5, v{vT0}")
    e(f"v_add_u32 v{vT2}, 1, v{vT0}")
    e(f"v_cmp_gt_u32 s[{sMSK+2}:{sMSK+3}], 5, v{vT2}")
    e(f"v_subrev_u32 v{vT2}, 1, v{vT0}")
    e(f"v_cmp_gt_u32 s[{sMSK+4}:{sMSK+5}], 3, v{vT2}")
    e(f"v_cmp_gt_u32 s[{sMSK+6}:{sMSK+7}], 3, v{vT0}")
    e(f"v_mul_i32_i24 v{vT0}, 192, v{vT0}")
    e(f"v_and_b32 v{vT2}, 3, v0")
    e(f"v_lshl_add_u32 v{vT0}, v{vT2}, 1, v{vT0}")
    e(f"s_mul_i32 s{sT0}, s{sI4}, 48")
    e(f"s_add_u32 s{sT0}, s{sT0}, {DW}")
    e(f"v_add_u32 v{vS}, s{sT0}, v{vT0}")
    e(f"v_mul_u32_u24 v{vIDX}, 0x5555, v{vT2}")
    return n

def bar(i):
    e("s_barrier"); stamp(i)

n = start_common(0)
e(f"s_waitcnt vmcnt({n})")
bar(2)
load_cw()
setup_conv(); conv_addr(0)
merge_cw()
e("s_waitcnt vmcnt(0)")
bar(3)
conv(0)
bar(4)
norm(0, lambda: [block_base(k) for k in (2, 3, 4)])
calc_rel([2, 3])
dma_block(3, [(0, 0), (0, 1), (0, 2), (0, 3), (1, 0), (1, 1), (1, 2)])
norm_end(2)
bar(5)
conv(2, gamma=True)
e("s_waitcnt vmcnt(0)")
bar(6)
norm(2)
setup_ffn(0)
dma_w([0])
norm_end(4)
bar(7)
conv(4)
e("s_waitcnt vmcnt(0)")
bar(8)
norm(4, lambda: dma_w([1, 2, 3]))
norm_end(None)
e("s_branch L_ffn")
lab("L_grpB")
n = start_common(1)
block_base(1)
calc_rel([0, 1])
e(f"s_waitcnt vmcnt({n})")
bar(2)
n1 = dma_block(1)
setup_conv(); conv_addr(1)
for k in (2, 3, 4): block_base(k)
e(f"s_waitcnt vmcnt({n1})")
bar(3)
load_cw()
n2 = dma_block(2)
merge_cw()
e(f"s_waitcnt vmcnt({n2})")
bar(4)
conv(1)
e("s_waitcnt vmcnt(0)")
bar(5)
norm(1)
e("s_barrier")
dma_block(3, [(1, 3), (2, 0), (2, 1), (2, 2), (2, 3)])
n4 = dma_block(4)
norm_end(3)
e(f"s_waitcnt vmcnt({n4})")
bar(6)
conv(3)
e("s_waitcnt vmcnt(0)")
bar(7)
setup_ffn(1)
norm(3, lambda: dma_w([4, 5]))
norm_end(None)
e("s_waitcnt vmcnt(0)")
bar(8)
q = LQ()
pickup(3, q)
dma_w([9, 10, 11])
lab("L_ffn")
stamp(9)

steps = [(j, vX, False) for j in ORDER] + [(j, vXP, False) for j in ORDER] + [(12 + j, vX, j == 0) for j in range(3)]
hooks = {}
def addhook(p, j, f): hooks.setdefault((p, j), []).append(f)
addhook("pre2", 0, lambda: res_unpack(vRES1))
def h_bar():
    e("s_waitcnt vmcnt(0)")
    e("s_barrier")
def h_bar1():
    h_bar()
    sk = newlab("w678")
    e(f"s_cmp_ge_u32 s{sW}, 4")
    e(f"s_cbranch_scc1 {sk}")
    dma_w([6, 7, 8])
    lab(sk)
addhook("f1", 3, h_bar1)
addhook("f1", OPT["bar"], h_bar)
def setprio_b(p):
    sk = newlab("prio")
    e(f"s_cmp_lt_u32 s{sW}, 4")
    e(f"s_cbranch_scc1 {sk}")
    e(f"s_setprio {p}")
    lab(sk)
def h_out1():
    out_pack(vX, sJ1)
    res_unpack(vRES)
    stamp(10)
addhook("post", 12, h_out1)
if OPT["prio"]:
    P = OPT["prio"]
    for j in range(-1 + P - P // 2 if False else P - 1, 26, P):
        addhook("post", j, (lambda p: (lambda: setprio_b(p)))(((j + 1) // P) & 1))
def h_x4():
    e(f"s_lshr_b32 s{sT0}, s{sW}, 2")
    e(f"s_mul_i32 s{sT0}, s{sT0}, 6144")
    e(f"s_add_u32 s{sT0}, s{sT0}, {XB[4]}")
    e(f"v_add_u32 v{vT0}, s{sT0}, v{vLIN}")
    for s in range(6): e(f"ds_read_b128 {vr(vX+4*s,4)}, v{vT0} offset:{1024*s}")
    e(f"v_bfe_u32 v{vT1}, v{vTID}, 1, 3")
    e(f"s_mov_b32 s{sT0}, {ROWB}")
    e(f"v_mul_lo_u32 v{vT1}, v{vT1}, s{sT0}")
    e(f"v_sub_u32 v{vIN}, v{vPX}, v{vT1}")
    e(f"s_lshr_b32 s{sT0}, s{sW}, 2")
    e(f"s_mul_i32 s{sT0}, s{sT0}, 384")
    e(f"s_add_u32 s{sT0}, s{sT0}, s{sBASE+4}")
    for t in range(3):
        e(f"s_and_b32 s{sT1}, s{sW}, 3")
        e(f"s_mul_i32 s{sT1}, s{sT1}, 3")
        e(f"s_add_u32 s{sT1}, s{sT1}, {t}")
        e(f"s_lshr_b32 s{sT2}, s{sT1}, 1")
        e(f"s_lshl_b32 s{sT2}, s{sT2}, 5")
        e(f"s_and_b32 s{sT1}, s{sT1}, 1")
        e(f"s_lshl_b32 s{sT1}, s{sT1}, 3")
        e(f"s_add_u32 s{sT1}, s{sT1}, s{sT2}")
        e(f"s_add_u32 s{sMSK+t}, s{sT1}, s{sT0}")
        e(f"buffer_load_dwordx2 {vr(vRES+2*t,2)}, v{vIN}, {sr(sX,4)}, s{sMSK+t} offen")
addhook("m2", 20, h_x4)
def rebase(reg):
    def f():
        e(f"s_and_b32 s{sT0}, s{sW}, 3")
        e(f"s_mul_i32 s{sT0}, s{sT0}, {3*SLOT}")
        e(f"s_sub_u32 s{sT0}, s{sT0}, {AD.b[reg]*SLOT}")
        e(f"v_add_u32 v{reg}, s{sT0}, v{reg}")
        AD.b[reg] = 12
    return f
addhook("f1", 24, rebase(vA1))
addhook("f2", 24, rebase(vA2))
addhook("post", 24, lambda: out_pack(vXP, sJ2))
ffn_chain(steps, hooks)
stamp(11)
e(f"s_mul_i32 s{sT0}, s{sW}, 12288")
e(f"v_add_u32 v{vT0}, s{sT0}, v{vLIN}")
e(f"s_and_b32 s{sT0}, s{sW}, 4")
e(f"s_mul_i32 s{sT0}, s{sT0}, 12288")
e(f"s_and_b32 s{sT1}, s{sW}, 3")
e(f"s_mul_i32 s{sT1}, s{sT1}, 3072")
e(f"s_add_u32 s{sT0}, s{sT0}, s{sT1}")
e(f"v_add_u32 v{vT1}, s{sT0}, v{vLIN}")
vR = 112
vQ = 160
e("s_waitcnt vmcnt(6)")
for t in range(3):
    for i in range(2):
        e(f"v_lshlrev_b32 v{vQ+4*t+2*i}, 16, v{vRES+2*t+i}")
        e(f"v_and_b32 v{vQ+4*t+2*i+1}, 0xffff0000, v{vRES+2*t+i}")
e("s_barrier")
for u in range(12): e(f"ds_write_b128 v{vT0}, {vr(vO+4*u,4)} offset:{1024*u}")
e("s_waitcnt lgkmcnt(0)")
e("s_barrier")
stamp(12)
for t in range(3):
    for p in range(4):
        e(f"ds_read_b128 {vr(vR+16*t+4*p,4)}, v{vT1} offset:{12288*p + 1024*t}")
for t in range(3):
    e(f"s_waitcnt lgkmcnt({8-4*t})")
    for p in range(4):
        for i in range(2):
            e(f"v_pk_add_f32 {vr(vQ+4*t+2*i,2)}, {vr(vQ+4*t+2*i,2)}, {vr(vR+16*t+4*p+2*i,2)}")
    e(f"v_cvt_pk_bf16_f32 v{vO+2*t}, v{vQ+4*t}, v{vQ+4*t+1}")
    e(f"v_cvt_pk_bf16_f32 v{vO+2*t+1}, v{vQ+4*t+2}, v{vQ+4*t+3}")
    e(f"buffer_store_dwordx2 {vr(vO+2*t,2)}, v{vIN}, {sr(sO,4)}, s{sMSK+t} offen {OPT['store_mod']}")
if OPT["stamp"]:
    e("s_waitcnt vmcnt(0)")
    stamp(13)
    e(f"s_memrealtime s[{sTS+30}:{sTS+31}]")
    e("s_waitcnt lgkmcnt(0)")
    e(f"s_lshl_b32 s{sT0}, s2, 3")
    e(f"s_add_u32 s{sT0}, s{sT0}, s{sW}")
    e(f"s_lshl_b32 s{sT0}, s{sT0}, 6")
    e(f"v_mov_b32 v{vT0}, 0")
    for i in range(16):
        e(f"v_mov_b32 v{vT1}, s{sTS+2*i}")
        e(f"buffer_store_dword v{vT1}, v{vT0}, {sr(sDBG,4)}, s{sT0} offen offset:{4*i}")
lab("L_end")
e("s_endpgm")

ref = open(f"cdna_kernels/{NAME}.s.ref").read().splitlines()
head = [l for l in ref if l.startswith(";") and "@launch" not in l]
out = "\n".join(head) + f"\n; @launch grid=(256,1,1) block=(512,1,1) lds={LDS_TOTAL}\n"
out += f""".amdgcn_target "amdgcn-amd-amdhsa--gfx950"
.text
.globl {NAME}_kernel
.p2align 8
.type {NAME}_kernel,@function
{NAME}_kernel:
""" + "\n".join(L) + f"""
.section .rodata,"a"
.p2align 6
.amdhsa_kernel {NAME}_kernel
  .amdhsa_next_free_vgpr 256
  .amdhsa_next_free_sgpr 102
  .amdhsa_accum_offset 256
  .amdhsa_group_segment_fixed_size 0
  .amdhsa_kernarg_size 64
  .amdhsa_user_sgpr_count 2
  .amdhsa_user_sgpr_kernarg_segment_ptr 1
  .amdhsa_system_sgpr_workgroup_id_x 1
.end_amdhsa_kernel
"""
open(sys.argv[1], "w").write(out)
```

```python
import sys, struct, math
NAME = "standalone__modern_conv_block_replknet__vision"
OPT = dict(store_mod="", stamp=0, ld_mod="", w_mod="", prio=2, fine=-1, bar=9, gam=6, pre=0, cf=-1, pad=0)
for a in sys.argv[2:]:
    k, v = a.split("=")
    OPT[k] = int(v) if v.lstrip("-").isdigit() else v.replace("+", " ")

def f2u(x): return struct.unpack("<I", struct.pack("<f", x))[0]
K0 = 2.0 * math.sqrt(2.0 / math.pi) * math.log2(math.e)
K1 = K0 * 0.044715
SC = K1 ** (1.0 / 3.0)
C0 = K0 / SC

L = []
def e(s): L.append("  " + s)
def lab(s): L.append(s + ":")
def cm(s): L.append("  ; " + s)
def vr(b, n): return f"v[{b}:{b+n-1}]"
def sr(b, n=2): return f"s[{b}:{b+n-1}]"

SLOT = 12288
SB = [47104, 116736, 0, 47104, 108544]
XB = [75776, 139264, 22528, 75776, 151552]
DW = 108544
STB = [100352 + 4096 * (k & 1) for k in range(5)]
ROWP = 145 * 16
LDS_TOTAL = 163840
XBYTES = 384 * 384 * 192
ROWB = 384 * 192
ORDER = [0, 4, 5, 1, 2, 3, 9, 10, 11, 6, 7, 8]

sX, sO, sWS, sDS, sDL = 4, 8, 12, 20, 24
sWB, sWP, sWJ = 16, 17, 18
sI4 = 19
sW = 28
sCU = 29
sT0, sT1, sT2, sT3 = 30, 31, 32, 33
sBASE = 34
sBFL = 39
sC0 = 44
sSC = 46
sMSK = 48
sJ1, sJ2 = 56, 57
sI1K = 58
sI3K = 59
sDBG = 60
sTS = 64

vTID = 0
vA1, vA2 = 1, 2
vPX = 3
vLIN = 4
vT0, vT1, vT2, vT3 = 5, 6, 7, 8
vIN = 9
vXW = 10
vWO = 11
vPK = 12
vIDX = 13
vFL = 14
vRD = 15
vX = 16
vXP = 40
vO = 64
vH = [112, 128]
vT = 144
vU = 160
vY = 176
vF1 = 184
vF2 = 208
vRES = 232
vCW = 64
vREL = 138
vCA = 142
vSTA = 143
vACC = 144
vS = 192
vD = 200
vRES1 = 208

def stamp(i, fine=False):
    if OPT["fine"] >= 0 and not fine and 1 <= i <= 12: return
    if OPT["stamp"]:
        e(f"{'s_memtime' if OPT['stamp'] == 1 else 's_memrealtime'} s[{sTS+2*i}:{sTS+2*i+1}]")

def srd(d, ptr, nbytes):
    e(f"s_mov_b32 s{d}, s{ptr}")
    e(f"s_mov_b32 s{d+1}, s{ptr+1}")
    e(f"s_mov_b32 s{d+2}, {nbytes}")
    e(f"s_mov_b32 s{d+3}, 0x20000")

uid = [0]
def newlab(p):
    uid[0] += 1
    return f"L_{p}_{uid[0]}"

class LQ:
    def __init__(self): self.q = []
    def op(self, s, tag=None):
        e(s); self.q.append(tag)
    def wait(self, tag):
        idx = [i for i, t in enumerate(self.q) if t == tag]
        if not idx: return
        n = len(self.q) - 1 - max(idx)
        e(f"s_waitcnt lgkmcnt({min(n, 14)})")
        self.q = self.q[max(idx) + 1:]
    def waitall(self):
        e("s_waitcnt lgkmcnt(0)"); self.q = []

def block_base(k):
    if k == 0: e(f"s_mov_b32 s{sT0}, s{sCU}")
    elif k < 4: e(f"s_add_u32 s{sT0}, s{sCU}, {32*k}")
    else:
        e(f"s_lshr_b32 s{sT0}, s{sCU}, 1")
        e(f"s_add_u32 s{sT0}, s{sT0}, 128")
    e(f"s_mul_i32 s{sT1}, s{sT0}, 171")
    e(f"s_lshr_b32 s{sT1}, s{sT1}, 10")
    e(f"s_mul_i32 s{sT2}, s{sT1}, 6")
    e(f"s_sub_u32 s{sT2}, s{sT0}, s{sT2}")
    e(f"s_add_u32 s{sT2}, s{sT2}, s3")
    e(f"s_mul_i32 s{sBASE+k}, s{sT1}, {16*ROWB}")
    e(f"s_mul_i32 s{sT3}, s{sT2}, {8*192}")
    e(f"s_add_u32 s{sBASE+k}, s{sBASE+k}, s{sT3}")
    if k == 4:
        e(f"s_and_b32 s{sT3}, s{sCU}, 1")
        e(f"s_mul_i32 s{sT3}, s{sT3}, {8*ROWB}")
        e(f"s_add_u32 s{sBASE+k}, s{sBASE+k}, s{sT3}")
    e(f"s_cmp_eq_u32 s{sT2}, 0")
    e(f"s_cselect_b32 s{sBFL+k}, 0, 8")
    e(f"s_cmp_eq_u32 s{sT2}, 47")
    e(f"s_cselect_b32 s{sBFL+k}, 4, s{sBFL+k}")

def calc_rel(js):
    e(f"s_mov_b32 s{sT0}, {ROWB - 145*16}")
    for j in js:
        e(f"v_and_b32 v{vT0}, 255, v0")
        if j: e(f"v_add_u32 v{vT0}, {256*j}, v{vT0}")
        e(f"v_mul_u32_u24 v{vT2}, 7232, v{vT0}")
        e(f"v_lshrrev_b32 v{vT2}, 20, v{vT2}")
        e(f"v_mul_u32_u24 v{vT3}, 145, v{vT2}")
        e(f"v_sub_u32 v{vT3}, v{vT0}, v{vT3}")
        e(f"v_lshlrev_b32 v{vT0}, 4, v{vT0}")
        e(f"v_mad_u32_u24 v{vREL+j}, v{vT2}, s{sT0}, v{vT0}")
        e(f"v_add_u32 v{vT2}, 1, v{vT3}")
        e(f"v_mul_u32_u24 v{vT2}, 1338, v{vT2}")
        e(f"v_lshrrev_b32 v{vT2}, 16, v{vT2}")
        e(f"v_mad_i32_i24 v{vREL+j}, v{vT2}, -8, v{vREL+j}")
        e(f"v_subrev_u32 v{vT2}, 24, v{vT3}")
        e(f"v_lshrrev_b32 v{vT2}, 31, v{vT2}")
        e(f"v_lshl_or_b32 v{vFL}, v{vT2}, {j}, v{vFL}")
        e(f"v_sub_u32 v{vT2}, 120, v{vT3}")
        e(f"v_lshrrev_b32 v{vT2}, 31, v{vT2}")
        e(f"v_lshl_or_b32 v{vFL}, v{vT2}, {4+j}, v{vFL}")
for x in range(1024): assert (x * 7232) >> 20 == x // 145
for x in range(145): assert ((x + 1) * 1338) >> 16 == (x >= 48) + (x >= 97)

def dma_block(k, parts=None):
    ng = 3 if k < 4 else 2
    if parts is None: parts = [(g, j) for g in range(ng) for j in range(4)]
    cm(f"input DMA block {k} parts {parts}")
    js = sorted(set(j for g, j in parts))
    e(f"s_sub_u32 s{sT0}, s{sBASE+k}, {2*ROWB + 2*192}")
    e(f"v_lshrrev_b32 v{vT3}, s{sBFL+k}, v{vFL}")
    for j in js: e(f"v_bfe_i32 v{vD+j}, v{vT3}, {j}, 1")
    n = 0
    for g, j in parts:
        if g: continue
        e(f"v_add_u32 v{vD+4+j}, s{sT0}, v{vREL+j}")
        e(f"s_add_u32 m0, s{sI1K}, {SB[k] + 4096*j}")
        e(f"v_or_b32 v{vD+4+j}, v{vD+4+j}, v{vD+j}")
        e(f"buffer_load_dwordx4 v{vD+4+j}, {sr(sX,4)}, 0 offen {OPT['ld_mod']} lds")
        n += 1
    for j in js: e(f"v_or_b32 v{vD+j}, v{vD+j}, v{vREL+j}")
    for g, j in parts:
        if g == 0: continue
        skip = None
        if g == ng - 1 and j == 3:
            skip = newlab("skipdma")
            e(f"s_cmp_ge_u32 s{sI4}, 2")
            e(f"s_cbranch_scc1 {skip}")
        else: n += 1
        e(f"s_add_u32 m0, s{sI1K}, {SB[k] + 7*g*ROWP + 4096*j}")
        e(f"s_add_u32 s{sT1}, s{sT0}, {7*g*ROWB}")
        e(f"buffer_load_dwordx4 v{vD+j}, {sr(sX,4)}, s{sT1} offen {OPT['ld_mod']} lds")
        if skip: lab(skip)
    return n

def dma_w(slots):
    cm(f"weight DMA slots {list(slots)}")
    for j in slots:
        e(f"s_mul_i32 s{sT0}, s{sWJ}, {j}")
        e(f"s_add_u32 s{sT0}, s{sT0}, s{sWB}")
        for t in range(3):
            e(f"s_add_u32 m0, s{sI3K}, {j*SLOT + 1024*t}")
            if t: e(f"s_add_u32 s{sT0}, s{sT0}, s{sWP}")
            else: e("s_nop 0")
            e(f"buffer_load_dwordx4 v{vWO}, {sr(sWS,4)}, s{sT0} offen {OPT['w_mod']} lds")
    return 3 * len(slots)

def zero16(a):
    z = vr(vCW, 2)
    e(f"v_mfma_f32_32x32x8_bf16 {vr(a,16)}, {z}, {z}, 0")

def pickup(k, q):
    e(f"v_add_u32 v{vT3}, {XB[k]}, v{vPK}")
    d = vX if k < 2 else vXP
    for s in range(6): q.op(f"ds_read_b128 {vr(d+4*s,4)}, v{vT3} offset:{1024*s}", "pk")

def conv_addr(k):
    if k < 4: e(f"v_add_u32 v{vCA}, {SB[k]}, v{vIN}")
    else:
        e(f"v_bfe_u32 v{vT1}, v{vTID}, 1, 3")
        e(f"v_mul_u32_u24 v{vT1}, {ROWP}, v{vT1}")
        e(f"v_sub_u32 v{vCA}, v{vIN}, v{vT1}")
        e(f"v_add_u32 v{vCA}, {SB[k]}, v{vCA}")

def conv(k, gamma=False):
    q = LQ()
    cm(f"======== conv {k}")
    R = 2 if k < 4 else 1
    ring = [vXP, vXP + 8, vXP + 16] + ([vRES, vRES + 8, vRES + 16] if k < 4 else [vACC + 24, vACC + 32, vACC + 40])
    reads = []
    for qq in range(6):
        for f in range(3):
            for rp in range(4):
                d = ring[(qq * 3 + f) % 6] + 2 * rp
                reads.append((f"ds_read_b64 {vr(d,2)}, v{vCA} offset:{2*f*ROWP + (rp>>1)*776 + (rp&1)*192 + 8*qq}", ("B", qq * 3 + f)))
    for r, t in reads[:12]: q.op(r, t)
    if k in (2, 3): pickup(k - 2, q)
    nxt = 12
    cfs = (lambda i: stamp(i, True)) if OPT["cf"] == k else (lambda i: None)
    cfs(1)
    for idx in range(18):
        qq, f = divmod(idx, 3)
        q.wait(("B", idx))
        if idx % 3 == 0: cfs(2 + idx // 3)
        for rho in range(R):
            a = vCW + 12 * qq + 4 * f + (2 if rho == 0 else 0)
            e(f"v_smfmac_f32_16x16x64_bf16 {vr(vACC + rho*24 + 4*qq, 4)}, {vr(a,4)}, {vr(ring[idx % 6], 8)}, v{vIDX}")
            h = (2 if rho == 0 else 4) if R == 2 else 4
            lo = nxt + (h - 2 if R == 2 else 0)
            for r, t in reads[lo:nxt+h]: q.op(r, t)
        nxt += 4
        if gamma and idx == OPT["gam"]: e("s_barrier")
    if k < 4:
        e(f"v_add_u32 v{vT3}, {SB[k]}, v{vRD}")
        d = vRES1 if k < 2 else vRES
        for i in range(12): e(f"ds_read_b64 {vr(d+2*i,2)}, v{vT3} offset:{32*(i>>1) + 8*(i&1)}")
    else:
        pickup(2, q)
    cfs(8)
    e(f"v_add_u32 v{vSTA}, {STB[k]}, v{vLIN}")
    e(f"v_add_u32 v{vT0}, s{sI1K}, v{vSTA}")
    for rho in range(R):
        a = vACC + rho * 24
        s2, q2 = vS + 4 * rho, vS + 4 * rho + 2
        e(f"v_pk_add_f32 {vr(s2,2)}, {vr(a,2)}, {vr(a+2,2)}")
        e(f"v_pk_mul_f32 {vr(q2,2)}, {vr(a,2)}, {vr(a,2)}")
        for i in range(1, 12):
            if i >= 2: e(f"v_pk_add_f32 {vr(s2,2)}, {vr(s2,2)}, {vr(a+2*i,2)}")
            e(f"v_pk_fma_f32 {vr(q2,2)}, {vr(a+2*i,2)}, {vr(a+2*i,2)}, {vr(q2,2)}")
    e(f"v_add_f32 v{vS}, v{vS}, v{vS+1}")
    e(f"v_add_f32 v{vS+1}, v{vS+2}, v{vS+3}")
    if R == 2:
        e(f"v_add_f32 v{vS+2}, v{vS+4}, v{vS+5}")
        e(f"v_add_f32 v{vS+3}, v{vS+6}, v{vS+7}")
    cfs(9)
    e(f"ds_write_b128 v{vT0}, {vr(vS,4)}")
    e("s_waitcnt lgkmcnt(0)")
    cfs(10)

def norm(k, pre=None):
    q = LQ()
    cm(f"======== norm {k}")
    R = 2 if k < 4 else 1
    tb = vXP if k < 4 else vACC + 24
    for w in range(4): q.op(f"ds_read_b128 {vr(tb+4*w,4)}, v{vSTA} offset:{1024*w}", "st")
    e(f"v_add_u32 v{vT0}, {XB[k]}, v{vXW}")
    if pre: pre()
    q.wait("st")
    for i in range(2 * R): e(f"v_add_f32 v{tb+i}, v{tb+i}, v{tb+4+i}")
    for i in range(2 * R): e(f"v_add_f32 v{tb+8+i}, v{tb+8+i}, v{tb+12+i}")
    for i in range(2 * R): e(f"v_add_f32 v{tb+i}, v{tb+i}, v{tb+8+i}")
    rr = range(R)
    sm = [tb + 2 * r for r in rr]; sq = [tb + 2 * r + 1 for r in rr]
    for r in rr: e(f"v_mul_f32 v{sm[r]}, {hex(f2u(1.0/96))}, v{sm[r]}")
    for r in rr: e(f"v_mul_f32 v{sq[r]}, {hex(f2u(1.0/96))}, v{sq[r]}")
    for r in rr: e(f"v_fma_f32 v{sq[r]}, -v{sm[r]}, v{sm[r]}, v{sq[r]}")
    for r in rr: e(f"v_max_f32 v{sq[r]}, 0, v{sq[r]}")
    for r in rr: e(f"v_add_f32 v{sq[r]}, {hex(f2u(1e-5))}, v{sq[r]}")
    for r in rr: e(f"v_rsq_f32 v{sq[r]}, v{sq[r]}")
    e("s_nop 0")
    for r in rr: e(f"v_mul_f32 v{sq[r]}, {hex(f2u(SC))}, v{sq[r]}")
    for r in rr: e(f"v_mul_f32 v{sm[r]}, v{sm[r]}, v{sq[r]}")
    for rho in rr:
        a = vACC + rho * 24
        for o in range(3):
            for i in range(8): e(f"v_fma_f32 v{a+8*o+i}, v{a+8*o+i}, v{sq[rho]}, -v{sm[rho]}")
            for i in range(4): e(f"v_cvt_pk_bf16_f32 v{a+4*o+i}, v{a+8*o+2*i}, v{a+8*o+2*i+1}")
        for o in range(3): e(f"ds_write_b128 v{vT0}, {vr(a+4*o,4)} offset:{rho*12288 + 512*o}")

def norm_end(nextk):
    e("s_waitcnt lgkmcnt(0)")
    if nextk is not None:
        for i in range(3 if nextk < 4 else 2): zero16(vACC + 16 * i)
        conv_addr(nextk)

def load_cw():
    for ab in range(2):
        e(f"s_mov_b64 exec, s[{sMSK+2*ab}:{sMSK+2*ab+1}]")
        for q in range(6):
            for i in range(5):
                e(f"ds_read_u16 v{vCW+12*q+2+2*i+ab}, v{vS} offset:{(5*i+ab)*192 + 8*q}")
        e(f"s_mov_b64 exec, s[{sMSK+4+2*ab}:{sMSK+4+2*ab+1}]")
        for q in range(6):
            for i in range(3):
                e(f"ds_read_u16 v{vRES1+18*ab+3*q+i}, v{vS} offset:{5120 + (3*i+ab-1)*192 + 8*q}")
    e("s_mov_b64 exec, -1")
def merge_cw():
    e("s_waitcnt lgkmcnt(0)")
    for ab in range(2):
        for q in range(6):
            for i in range(3):
                r = vCW + 12*q + 2 + 2*(i+1) + ab
                e(f"v_lshl_or_b32 v{r}, v{vRES1+18*ab+3*q+i}, 16, v{r}")

def setup_conv():
    e(f"v_and_b32 v{vT0}, 14, v0")
    e(f"v_mul_u32_u24 v{vRD}, {ROWP}, v{vT0}")
    e(f"v_and_b32 v{vT0}, 1, v0")
    e(f"v_mul_u32_u24 v{vT0}, 776, v{vT0}")
    e(f"v_add_u32 v{vRD}, v{vRD}, v{vT0}")
    e(f"v_bfe_u32 v{vT2}, v0, 4, 1")
    e(f"v_mul_u32_u24 v{vT0}, {ROWP}, v{vT2}")
    e(f"v_bfe_u32 v{vT3}, v0, 5, 1")
    e(f"v_mul_u32_u24 v{vT1}, 384, v{vT3}")
    e(f"v_add3_u32 v{vIN}, v{vRD}, v{vT0}, v{vT1}")
    e(f"s_mul_i32 s{sT0}, s{sI4}, 48")
    e(f"v_add_u32 v{vIN}, s{sT0}, v{vIN}")
    e(f"v_mul_u32_u24 v{vT0}, 192, v{vT2}")
    e(f"v_lshl_add_u32 v{vPX}, v{vT3}, 4, v{vT0}")
    e(f"s_lshr_b32 s{sT0}, s{sI4}, 1")
    e(f"s_mul_i32 s{sT1}, s{sT0}, {ROWP}")
    e(f"s_and_b32 s{sT2}, s{sI4}, 1")
    e(f"s_mul_i32 s{sT3}, s{sT2}, 392")
    e(f"s_add_u32 s{sT1}, s{sT1}, s{sT3}")
    e(f"s_add_u32 s{sT1}, s{sT1}, {2*ROWP + 384}")
    e(f"v_add3_u32 v{vRD}, v{vRD}, v{vPX}, s{sT1}")
    e(f"v_mul_u32_u24 v{vT0}, 6144, v{vT3}")
    e(f"v_and_b32 v{vT2}, 31, v0")
    e(f"v_lshl_add_u32 v{vT0}, v{vT2}, 4, v{vT0}")
    e(f"s_mul_i32 s{sT0}, s{sI4}, 1536")
    e(f"v_add_u32 v{vXW}, s{sT0}, v{vT0}")
    e(f"s_mul_i32 s{sT0}, s{sI4}, 6144")
    e(f"v_add_u32 v{vPK}, s{sT0}, v{vLIN}")

def setup_ffn(grp):
    e(f"s_cmp_lt_u32 s{sI4}, 2")
    e(f"s_cselect_b32 s{sWS}, s96, s98")
    e(f"s_cselect_b32 s{sWS+1}, s97, s99")
    e(f"s_mov_b32 s{sWS+2}, 73728")
    e(f"s_mov_b32 s{sWS+3}, 0x20000")
    e(f"s_movk_i32 s{sWP}, 1024")
    e(f"s_cselect_b32 s{sWP}, 12288, s{sWP}")
    e(f"s_cselect_b32 s{sWJ}, 64, 6144")
    e(f"s_cselect_b32 s{sT0}, 768, 64")
    e(f"s_and_b32 s{sT1}, s{sI4}, 1")
    e(f"s_mul_i32 s{sWB}, s{sWP}, 3")
    e(f"s_mul_i32 s{sWB}, s{sWB}, s{sT1}")
    e(f"s_mul_i32 s{sI3K}, s{sI4}, 3072")
    e(f"v_bfe_u32 v{vT0}, v0, 2, 4")
    e(f"v_mul_u32_u24 v{vT0}, s{sT0}, v{vT0}")
    e(f"v_and_b32 v{vT2}, 3, v0")
    e(f"v_lshl_add_u32 v{vWO}, v{vT2}, 4, v{vT0}")
    e(f"v_and_b32 v{vT1}, 14, v0")
    e(f"s_mov_b32 s{sT3}, {ROWB}")
    e(f"v_mul_lo_u32 v{vT0}, v{vT1}, s{sT3}")
    e(f"v_and_b32 v{vT1}, 1, v0")
    e(f"v_mul_u32_u24 v{vT1}, 768, v{vT1}")
    e(f"v_add3_u32 v{vPX}, v{vPX}, v{vT0}, v{vT1}")
    e(f"s_lshr_b32 s{sT0}, s{sI4}, 1")
    e(f"s_mul_i32 s{sT0}, s{sT0}, {ROWB}")
    e(f"s_and_b32 s{sT2}, s{sI4}, 1")
    e(f"s_mul_i32 s{sT2}, s{sT2}, 384")
    e(f"s_add_u32 s{sT0}, s{sT0}, s{sT2}")
    e(f"s_add_u32 s{sJ1}, s{sBASE+grp}, s{sT0}")
    e(f"s_add_u32 s{sJ2}, s{sBASE+2+grp}, s{sT0}")
    e(f"v_bfe_u32 v{vT0}, v0, 4, 1")
    e(f"v_lshlrev_b32 v{vT0}, 5, v{vT0}")
    e(f"v_and_b32 v{vT2}, 1, v0")
    e(f"v_lshl_add_u32 v{vT0}, v{vT2}, 4, v{vT0}")
    e(f"v_bfe_u32 v{vT2}, v0, 1, 1")
    e(f"v_lshl_add_u32 v{vT0}, v{vT2}, 3, v{vT0}")
    e(f"v_bfe_u32 v{vT2}, v0, 2, 2")
    e(f"v_bfe_u32 v{vT3}, v0, 5, 1")
    e(f"v_lshl_add_u32 v{vT2}, v{vT3}, 3, v{vT2}")
    e(f"v_lshl_add_u32 v{vA1}, v{vT2}, 6, v{vT0}")
    e(f"v_mul_u32_u24 v{vT2}, 192, v{vT2}")
    e(f"v_add_u32 v{vA2}, v{vT2}, v{vT0}")
    for r, v in ((sC0, C0), (sSC, SC)):
        e(f"s_mov_b32 s{r}, {hex(f2u(v))}")
        e(f"s_mov_b32 s{r+1}, {hex(f2u(v))}")

class Addr:
    def __init__(self): self.b = {vA1: 0, vA2: 0}
    def off(self, reg, slot, extra): return (slot - self.b[reg]) * SLOT + extra
    def ensure(self, reg, slot):
        if not (0 <= (slot - self.b[reg]) * SLOT and (slot - self.b[reg] + 1) * SLOT <= 65536):
            nb = {0: 0, 5: 1, 9: 7, 6: 6}.get(slot, slot)
            d = (nb - self.b[reg]) * SLOT
            if d > 0: e(f"v_add_u32 v{reg}, {d}, v{reg}")
            else: e(f"v_subrev_u32 v{reg}, {-d}, v{reg}")
            self.b[reg] = nb
AD = Addr()
def f1_reads(slot):
    AD.ensure(vA1, slot)
    return [f"ds_read_b64_tr_b16 {vr(vF1+4*s+2*t,2)}, v{vA1} offset:{AD.off(vA1, slot, (16*s+4*t)*64)}" for s in range(6) for t in range(2)]
def f2_reads(slot):
    AD.ensure(vA2, slot)
    return [f"ds_read_b64_tr_b16 {vr(vF2+12*s+4*T+2*t,2)}, v{vA2} offset:{AD.off(vA2, slot, 6144+(16*s+4*t)*192+64*T)}" for s in range(2) for T in range(3) for t in range(2)]
def g1(h, x):
    return [f"v_mfma_f32_32x32x16_bf16 {vr(h,16)}, {vr(vF1+4*s,4)}, {vr(x+4*s,4)}, {vr(h,16) if s else 0}" for s in range(6)]
def g2(zero=False):
    return [f"v_mfma_f32_32x32x16_bf16 {vr(vO+16*T,16)}, {vr(vF2+12*s+4*T,4)}, {vr(vY+4*s,4)}, {0 if (zero and s==0) else vr(vO+16*T,16)}" for s in range(2) for T in range(3)]
def cvts(lo, hi): return [f"v_cvt_pk_bf16_f32 v{vY+i}, v{vU+2*i}, v{vU+2*i+1}" for i in range(lo, hi)]
def pz(h):
    a = [f"v_pk_fma_f32 {vr(vT+2*i,2)}, {vr(h+2*i,2)}, {vr(h+2*i,2)}, {sr(sC0)}" for i in range(8)]
    b = [f"v_pk_mul_f32 {vr(vT+2*i,2)}, {vr(vT+2*i,2)}, {vr(h+2*i,2)} neg_lo:[1,0] neg_hi:[1,0]" for i in range(8)]
    return a + b
PEND = []
def pphase(ops, ds, nst=1):
    for r in ds: e(r)
    for i in range(nst):
        if PEND: e(PEND.pop(0))
    for o in ops: e(o)
def mphase(mf, fill):
    for i in range(6):
        if mf: e(mf[i])
        for o in fill[i]: e(o)
def res_unpack(src):
    for i in range(24):
        e(f"v_lshlrev_b32 v{vO+2*i}, 16, v{src+i}")
        e(f"v_and_b32 v{vO+2*i+1}, 0xffff0000, v{src+i}")
def out_pack(dst, sbase):
    for i in range(24): e(f"v_cvt_pk_bf16_f32 v{dst+i}, v{vO+2*i}, v{vO+2*i+1}")
    for i in range(6):
        PEND.append(f"buffer_store_dwordx4 {vr(dst+4*i,4)}, v{vPX}, {sr(sO,4)}, s{sbase} offen offset:{32*i} {OPT['store_mod']}")

def ffn_chain(steps, hooks):
    N = len(steps)
    def hook(p, j):
        for f in hooks.get((p, j), []): f()
    for r in f1_reads(steps[0][0]): e(r)
    hook("pre", 0)
    e("s_waitcnt lgkmcnt(0)")
    for m in g1(vH[0], steps[0][1]): e(m)
    for r in f1_reads(steps[1][0]): e(r)
    hook("pre2", 0)
    e("s_nop 3")
    for o in pz(vH[0]): e(o)
    for j in range(N):
        cm(f"ustep {j}")
        ex = [f"v_exp_f32 v{vT+i}, v{vT+i}" for i in range(16)]
        rc = [f"v_rcp_f32 v{vT+i}, v{vT+i}" for i in range(16)]
        c = cvts(0, 8) if j >= 1 else []
        hook("m1", j)
        if j + 1 < N: e(f"s_waitcnt lgkmcnt({12 if j >= 1 else 0})")
        mphase(g1(vH[(j+1) & 1], steps[j+1][1]) if j + 1 < N else [],
               [ex[0:3], ex[3:6], ex[6:9], ex[9:12], ex[12:14] + c[0:2], ex[14:16] + c[2:4]])
        hook("f1", j + 2)
        d = [f"v_pk_fma_f32 {vr(vT+2*i,2)}, {vr(vT+2*i,2)}, {sr(sSC)}, {sr(sSC)}" for i in range(8)]
        nst = 2 if j >= 24 else 1
        pphase(d, f1_reads(steps[j+2][0]) if j + 2 < N else [], nst)
        hook("m2", j)
        if j >= 1: e(f"s_waitcnt lgkmcnt({12 if j + 2 < N else 0})")
        mphase(g2(steps[j-1][2]) if j >= 1 else [],
               [rc[0:2] + c[4:6], rc[2:4] + c[6:8], rc[4:7], rc[7:10], rc[10:13], rc[13:16]])
        h = vH[j & 1]
        y = [f"v_pk_mul_f32 {vr(vU+2*i,2)}, {vr(h+2*i,2)}, {vr(vT+2*i,2)}" for i in range(8)]
        hook("f2", j)
        pphase(y + (pz(vH[(j+1) & 1]) if j + 1 < N else []), f2_reads(steps[j][0]), nst)
        hook("post", j)
        if OPT["fine"] == 9 and j % 2 == 1 and j < 24: stamp(1 + j // 2, True)
    assert not PEND
    for o in cvts(0, 8): e(o)
    e("s_waitcnt lgkmcnt(0)")
    e("s_nop 0")
    for m in g2(steps[N-1][2]): e(m)

sKA = 64
e("s_cmp_ge_u32 s2, 256")
e("s_cbranch_scc1 L_end")
e(f"s_load_dwordx2 s[{sX}:{sX+1}], s[0:1], 0")
e("s_load_dwordx4 s[24:27], s[0:1], 8")
e("s_load_dwordx4 s[96:99], s[0:1], 24")
e(f"s_load_dwordx2 s[{sO}:{sO+1}], s[0:1], 40")
if OPT["stamp"]:
    e(f"s_load_dwordx2 s[{sDBG}:{sDBG+1}], s[0:1], 56")
    e(f"s_mov_b32 s{sDBG+2}, {1 << 20}")
    e(f"s_mov_b32 s{sDBG+3}, 0x20000")
    e(f"s_memrealtime s[{sTS+28}:{sTS+29}]")
    stamp(0)
if OPT["pad"]: e("s_memrealtime s[64:65]")
e(f"s_mov_b32 s{sX+2}, {XBYTES}")
e(f"s_mov_b32 s{sX+3}, 0x20000")
e(f"s_mov_b32 s{sO+2}, {XBYTES}")
e(f"s_mov_b32 s{sO+3}, 0x20000")
e(f"v_lshrrev_b32 v{vT0}, 6, v0")
e(f"v_and_b32 v{vT1}, 63, v0")
e(f"v_readfirstlane_b32 s{sW}, v{vT0}")
e(f"v_lshlrev_b32 v{vLIN}, 4, v{vT1}")
e(f"s_lshr_b32 s{sCU}, s2, 3")
e(f"s_and_b32 s3, s2, 7")
e(f"s_mul_i32 s3, s3, 6")
e(f"s_and_b32 s{sI4}, s{sW}, 3")
e(f"s_lshl_b32 s{sI1K}, s{sI4}, 10")
e(f"v_mov_b32 v{vFL}, 0")
e(f"v_mov_b32 v{vCW}, 0")
e(f"v_mov_b32 v{vCW+1}, 0")
block_base(0)
e(f"s_cmp_ge_u32 s{sW}, 4")
e(f"s_cbranch_scc1 L_grpB")

def start_common(grp):
    calc_rel([0, 1] if grp == 0 else [2, 3])
    e("s_waitcnt lgkmcnt(0)")
    if grp == 0:
        srd(sDS, 26, 4800)
        e(f"s_add_u32 m0, s{sI1K}, {DW}")
        e("s_nop 0")
        e(f"buffer_load_dwordx4 v{vLIN}, {sr(sDS,4)}, s{sI1K} offen lds")
    else:
        e(f"s_cmp_eq_u32 s{sI4}, 0")
        e(f"s_cselect_b32 s{sDS}, s26, s24")
        e(f"s_cselect_b32 s{sDS+1}, s27, s25")
        e(f"s_movk_i32 s{sDS+2}, 1728")
        e(f"s_cselect_b32 s{sDS+2}, 4800, s{sDS+2}")
        e(f"s_mov_b32 s{sDS+3}, 0x20000")
        e(f"s_cselect_b32 s{sT0}, 5120, 0")
        e(f"s_add_u32 s{sT0}, s{sT0}, s{sI1K}")
        e(f"s_sub_u32 s{sT0}, s{sT0}, 1024")
        e(f"s_add_u32 m0, s{sI1K}, {DW + 4096}")
        e("s_nop 0")
        e(f"buffer_load_dwordx4 v{vLIN}, {sr(sDS,4)}, s{sT0} offen lds")
    n = dma_block(0, [(g, j) for g in range(3) for j in ((0, 1) if grp == 0 else (2, 3))])
    stamp(1)
    for a in (vCW + 2, vCW + 18, vCW + 34, vCW + 50, vRES1, vRES1 + 16, vRES1 + 32, vACC, vACC + 16, vACC + 32): zero16(a)
    z = vr(vCW, 2)
    e(f"v_mfma_f32_16x16x16_bf16 {vr(vCW+66,4)}, {z}, {z}, 0")
    e(f"v_mfma_f32_16x16x16_bf16 {vr(vCW+70,4)}, {z}, {z}, 0")
    e(f"v_bfe_u32 v{vT0}, v0, 4, 2")
    e(f"v_lshlrev_b32 v{vT0}, 1, v{vT0}")
    e(f"v_bfe_u32 v{vT2}, v0, 2, 2")
    e(f"v_sub_u32 v{vT0}, v{vT0}, v{vT2}")
    e(f"v_cmp_gt_u32 s[{sMSK}:{sMSK+1}], 5, v{vT0}")
    e(f"v_add_u32 v{vT2}, 1, v{vT0}")
    e(f"v_cmp_gt_u32 s[{sMSK+2}:{sMSK+3}], 5, v{vT2}")
    e(f"v_subrev_u32 v{vT2}, 1, v{vT0}")
    e(f"v_cmp_gt_u32 s[{sMSK+4}:{sMSK+5}], 3, v{vT2}")
    e(f"v_cmp_gt_u32 s[{sMSK+6}:{sMSK+7}], 3, v{vT0}")
    e(f"v_mul_i32_i24 v{vT0}, 192, v{vT0}")
    e(f"v_and_b32 v{vT2}, 3, v0")
    e(f"v_lshl_add_u32 v{vT0}, v{vT2}, 1, v{vT0}")
    e(f"s_mul_i32 s{sT0}, s{sI4}, 48")
    e(f"s_add_u32 s{sT0}, s{sT0}, {DW}")
    e(f"v_add_u32 v{vS}, s{sT0}, v{vT0}")
    e(f"v_mul_u32_u24 v{vIDX}, 0x5555, v{vT2}")
    return n

def bar(i):
    if OPT["pre"]: stamp(i)
    e("s_barrier")
    if not OPT["pre"]: stamp(i)

n = start_common(0)
e(f"s_waitcnt vmcnt({n})")
bar(2)
load_cw()
setup_conv(); conv_addr(0)
merge_cw()
e("s_waitcnt vmcnt(0)")
bar(3)
conv(0)
bar(4)
norm(0, lambda: [block_base(k) for k in (2, 3, 4)])
calc_rel([2, 3])
dma_block(3, [(0, 0), (0, 1), (0, 2), (0, 3), (1, 0), (1, 1), (1, 2)])
norm_end(2)
bar(5)
conv(2, gamma=True)
e("s_waitcnt vmcnt(0)")
bar(6)
norm(2)
setup_ffn(0)
dma_w([0])
norm_end(4)
bar(7)
conv(4)
e("s_waitcnt vmcnt(0)")
bar(8)
norm(4, lambda: dma_w([1, 2, 3]))
norm_end(None)
e("s_branch L_ffn")
lab("L_grpB")
n = start_common(1)
block_base(1)
calc_rel([0, 1])
e(f"s_waitcnt vmcnt({n})")
bar(2)
n1 = dma_block(1)
setup_conv(); conv_addr(1)
for k in (2, 3, 4): block_base(k)
e(f"s_waitcnt vmcnt({n1})")
bar(3)
load_cw()
n2 = dma_block(2)
merge_cw()
e(f"s_waitcnt vmcnt({n2})")
bar(4)
conv(1)
e("s_waitcnt vmcnt(0)")
bar(5)
norm(1)
e("s_barrier")
dma_block(3, [(1, 3), (2, 0), (2, 1), (2, 2), (2, 3)])
n4 = dma_block(4)
norm_end(3)
e(f"s_waitcnt vmcnt({n4})")
bar(6)
conv(3)
e("s_waitcnt vmcnt(0)")
bar(7)
setup_ffn(1)
norm(3, lambda: dma_w([4, 5]))
norm_end(None)
e("s_waitcnt vmcnt(0)")
bar(8)
q = LQ()
pickup(3, q)
dma_w([9, 10, 11])
lab("L_ffn")
stamp(9)

steps = [(j, vX, False) for j in ORDER] + [(j, vXP, False) for j in ORDER] + [(12 + j, vX, j == 0) for j in range(3)]
hooks = {}
def addhook(p, j, f): hooks.setdefault((p, j), []).append(f)
addhook("pre2", 0, lambda: res_unpack(vRES1))
def h_bar():
    e("s_waitcnt vmcnt(0)")
    e("s_barrier")
def h_bar1():
    h_bar()
    sk = newlab("w678")
    e(f"s_cmp_ge_u32 s{sW}, 4")
    e(f"s_cbranch_scc1 {sk}")
    dma_w([6, 7, 8])
    lab(sk)
addhook("f1", 3, h_bar1)
addhook("f1", OPT["bar"], h_bar)
def setprio_b(p):
    sk = newlab("prio")
    e(f"s_cmp_lt_u32 s{sW}, 4")
    e(f"s_cbranch_scc1 {sk}")
    e(f"s_setprio {p}")
    lab(sk)
def h_out1():
    out_pack(vX, sJ1)
    res_unpack(vRES)
    stamp(10)
addhook("post", 12, h_out1)
if OPT["prio"]:
    P = OPT["prio"]
    for j in range(-1 + P - P // 2 if False else P - 1, 26, P):
        addhook("post", j, (lambda p: (lambda: setprio_b(p)))(((j + 1) // P) & 1))
def h_x4():
    e(f"s_lshr_b32 s{sT0}, s{sW}, 2")
    e(f"s_mul_i32 s{sT0}, s{sT0}, 6144")
    e(f"s_add_u32 s{sT0}, s{sT0}, {XB[4]}")
    e(f"v_add_u32 v{vT0}, s{sT0}, v{vLIN}")
    for s in range(6): e(f"ds_read_b128 {vr(vX+4*s,4)}, v{vT0} offset:{1024*s}")
    e(f"v_bfe_u32 v{vT1}, v{vTID}, 1, 3")
    e(f"s_mov_b32 s{sT0}, {ROWB}")
    e(f"v_mul_lo_u32 v{vT1}, v{vT1}, s{sT0}")
    e(f"v_sub_u32 v{vIN}, v{vPX}, v{vT1}")
    e(f"s_lshr_b32 s{sT0}, s{sW}, 2")
    e(f"s_mul_i32 s{sT0}, s{sT0}, 384")
    e(f"s_add_u32 s{sT0}, s{sT0}, s{sBASE+4}")
    for t in range(3):
        e(f"s_and_b32 s{sT1}, s{sW}, 3")
        e(f"s_mul_i32 s{sT1}, s{sT1}, 3")
        e(f"s_add_u32 s{sT1}, s{sT1}, {t}")
        e(f"s_lshr_b32 s{sT2}, s{sT1}, 1")
        e(f"s_lshl_b32 s{sT2}, s{sT2}, 5")
        e(f"s_and_b32 s{sT1}, s{sT1}, 1")
        e(f"s_lshl_b32 s{sT1}, s{sT1}, 3")
        e(f"s_add_u32 s{sT1}, s{sT1}, s{sT2}")
        e(f"s_add_u32 s{sMSK+t}, s{sT1}, s{sT0}")
        e(f"buffer_load_dwordx2 {vr(vRES+2*t,2)}, v{vIN}, {sr(sX,4)}, s{sMSK+t} offen")
addhook("m2", 20, h_x4)
def rebase(reg):
    def f():
        e(f"s_and_b32 s{sT0}, s{sW}, 3")
        e(f"s_mul_i32 s{sT0}, s{sT0}, {3*SLOT}")
        e(f"s_sub_u32 s{sT0}, s{sT0}, {AD.b[reg]*SLOT}")
        e(f"v_add_u32 v{reg}, s{sT0}, v{reg}")
        AD.b[reg] = 12
    return f
addhook("f1", 24, rebase(vA1))
addhook("f2", 24, rebase(vA2))
addhook("post", 24, lambda: out_pack(vXP, sJ2))
ffn_chain(steps, hooks)
stamp(11)
e(f"s_mul_i32 s{sT0}, s{sW}, 12288")
e(f"v_add_u32 v{vT0}, s{sT0}, v{vLIN}")
e(f"s_and_b32 s{sT0}, s{sW}, 4")
e(f"s_mul_i32 s{sT0}, s{sT0}, 12288")
e(f"s_and_b32 s{sT1}, s{sW}, 3")
e(f"s_mul_i32 s{sT1}, s{sT1}, 3072")
e(f"s_add_u32 s{sT0}, s{sT0}, s{sT1}")
e(f"v_add_u32 v{vT1}, s{sT0}, v{vLIN}")
vR = 112
vQ = 160
e("s_waitcnt vmcnt(6)")
for t in range(3):
    for i in range(2):
        e(f"v_lshlrev_b32 v{vQ+4*t+2*i}, 16, v{vRES+2*t+i}")
        e(f"v_and_b32 v{vQ+4*t+2*i+1}, 0xffff0000, v{vRES+2*t+i}")
e("s_barrier")
for u in range(12): e(f"ds_write_b128 v{vT0}, {vr(vO+4*u,4)} offset:{1024*u}")
e("s_waitcnt lgkmcnt(0)")
e("s_barrier")
stamp(12)
for t in range(3):
    for p in range(4):
        e(f"ds_read_b128 {vr(vR+16*t+4*p,4)}, v{vT1} offset:{12288*p + 1024*t}")
for t in range(3):
    e(f"s_waitcnt lgkmcnt({8-4*t})")
    for p in range(4):
        for i in range(2):
            e(f"v_pk_add_f32 {vr(vQ+4*t+2*i,2)}, {vr(vQ+4*t+2*i,2)}, {vr(vR+16*t+4*p+2*i,2)}")
    e(f"v_cvt_pk_bf16_f32 v{vO+2*t}, v{vQ+4*t}, v{vQ+4*t+1}")
    e(f"v_cvt_pk_bf16_f32 v{vO+2*t+1}, v{vQ+4*t+2}, v{vQ+4*t+3}")
    e(f"buffer_store_dwordx2 {vr(vO+2*t,2)}, v{vIN}, {sr(sO,4)}, s{sMSK+t} offen {OPT['store_mod']}")
if OPT["stamp"]:
    e("s_waitcnt vmcnt(0)")
    stamp(13)
    e(f"s_memrealtime s[{sTS+30}:{sTS+31}]")
    e("s_waitcnt lgkmcnt(0)")
    e(f"s_lshl_b32 s{sT0}, s2, 3")
    e(f"s_add_u32 s{sT0}, s{sT0}, s{sW}")
    e(f"s_lshl_b32 s{sT0}, s{sT0}, 6")
    e(f"v_mov_b32 v{vT0}, 0")
    for i in range(16):
        e(f"v_mov_b32 v{vT1}, s{sTS+2*i}")
        e(f"buffer_store_dword v{vT1}, v{vT0}, {sr(sDBG,4)}, s{sT0} offen offset:{4*i}")
if OPT["pad"]:
    lab("L_pad")
    e("s_sleep 4")
    e("s_memrealtime s[66:67]")
    e("s_waitcnt lgkmcnt(0)")
    e("s_sub_u32 s66, s66, s64")
    e(f"s_cmp_lt_u32 s66, {OPT['pad']}")
    e("s_cbranch_scc1 L_pad")
lab("L_end")
e("s_endpgm")

ref = open(f"cdna_kernels/{NAME}.s.ref").read().splitlines()
head = [l for l in ref if l.startswith(";") and "@launch" not in l]
out = "\n".join(head) + f"\n; @launch grid=(256,1,1) block=(512,1,1) lds={LDS_TOTAL}\n"
out += f""".amdgcn_target "amdgcn-amd-amdhsa--gfx950"
.text
.globl {NAME}_kernel
.p2align 8
.type {NAME}_kernel,@function
{NAME}_kernel:
""" + "\n".join(L) + f"""
.section .rodata,"a"
.p2align 6
.amdhsa_kernel {NAME}_kernel
  .amdhsa_next_free_vgpr 256
  .amdhsa_next_free_sgpr 102
  .amdhsa_accum_offset 256
  .amdhsa_group_segment_fixed_size 0
  .amdhsa_kernarg_size 64
  .amdhsa_user_sgpr_count 2
  .amdhsa_user_sgpr_kernarg_segment_ptr 1
  .amdhsa_system_sgpr_workgroup_id_x 1
.end_amdhsa_kernel
"""
open(sys.argv[1], "w").write(out)
```

```python
import sys, struct, math
NAME = "standalone__modern_conv_block_replknet__vision"
OPT = dict(stamp=0, fine=-1, pre=0, prio=2, pfix=10, st1="", st2="", cpf=1, wpf=1, gam=3, cp=1, b1a=6, nm=5)
for a in sys.argv[2:]:
    k, v = a.split("=")
    assert k in OPT, k
    OPT[k] = int(v) if v.lstrip("-").isdigit() else v.replace("+", " ")

def f2u(x): return struct.unpack("<I", struct.pack("<f", x))[0]
K0 = 2.0 * math.sqrt(2.0 / math.pi) * math.log2(math.e)
K1 = K0 * 0.044715
SC = K1 ** (1.0 / 3.0)
C0 = K0 / SC

L = []
def e(s): L.append("  " + s)
def lab(s): L.append(s + ":")
def cm(s): L.append("  ; " + s)
def vr(b, n): return f"v[{b}:{b+n-1}]"
def sr(b, n=2): return f"s[{b}:{b+n-1}]"

SLOT = 12288
SB = [47104, 116736, 0, 47104, 108544]
XB = [75776, 139264, 22528, 75776, 151552]
DWS = 106496
DWL = DWS + 5120
STB = [100352 + 4096 * (k & 1) for k in range(5)]
ROWP = 145 * 16
LDS_TOTAL = 163840
XBYTES = 384 * 384 * 192
ROWB = 384 * 192
ORDER = [0, 4, 5, 1, 2, 3, 9, 10, 11, 6, 7, 8]

sG = 3
sX, sO, sWS, sDS = 4, 8, 12, 20
sWB, sWP, sWJ = 16, 17, 18
sI4 = 19
sRET = 24
sFLG = 26
sDM = 27
sW = 28
sCU = 29
sT0, sT1, sT2, sT3 = 30, 31, 32, 33
sBASE = 34
sBFL = 39
sC0 = 44
sSC = 46
sDB, sDL = 48, 49
sSH = 50
sPC = 52
sJ1, sJ2 = 56, 57
sI1K = 58
sI3K = 59
sDBG = 60
sTS = 64
sWA, sWM = 100, 101

vTID = 0
vA1, vA2 = 1, 2
vPX = 3
vLIN = 4
vT0, vT1, vT2, vT3 = 5, 6, 7, 8
vIN = 9
vXW = 10
vWO = 11
vPK = 12
vIDX = 13
vFL = 14
vRD = 15
vX = 16
vXP = 40
vO = 64
vH = [112, 128]
vT = 144
vU = 160
vY = 176
vF1 = 184
vF2 = 208
vRES = 232
vCW = 64
vREL = 138
vCA = 142
vSTA = 143
vACC = 144
vS = 192
vD = 200
vRES1 = 208

def stamp(i, fine=False):
    if OPT["fine"] >= 0 and not fine and 1 <= i <= 12: return
    if OPT["stamp"]:
        e(f"{'s_memtime' if OPT['stamp'] == 1 else 's_memrealtime'} s[{sTS+2*i}:{sTS+2*i+1}]")
def bar(i=None):
    if i is not None and OPT["pre"]: stamp(i)
    e("s_barrier")
    if i is not None and not OPT["pre"]: stamp(i)
uid = [0]
def newlab(p):
    uid[0] += 1
    return f"L_{p}_{uid[0]}"
def call(name): e(f"s_call_b64 {sr(sRET)}, {name}")
def ret(): e(f"s_setpc_b64 {sr(sRET)}")

class LQ:
    def __init__(self): self.q = []
    def op(self, s, tag=None):
        e(s); self.q.append(tag)
    def wait(self, tag):
        idx = [i for i, t in enumerate(self.q) if t == tag]
        if not idx: return
        n = len(self.q) - 1 - max(idx)
        e(f"s_waitcnt lgkmcnt({min(n, 14)})")
        self.q = self.q[max(idx) + 1:]

def block_base(k):
    if k == 0: t = sCU
    else:
        t = sT0
        if k < 4: e(f"s_add_u32 s{sT0}, s{sCU}, {32*k}")
        else:
            e(f"s_lshr_b32 s{sT0}, s{sCU}, 1")
            e(f"s_add_u32 s{sT0}, s{sT0}, 128")
    e(f"s_mul_i32 s{sT1}, s{t}, 171")
    e(f"s_lshr_b32 s{sT1}, s{sT1}, 10")
    e(f"s_mul_i32 s{sT2}, s{sT1}, 6")
    e(f"s_sub_u32 s{sT2}, s{t}, s{sT2}")
    e(f"s_add_u32 s{sT2}, s{sT2}, s3")
    e(f"s_mul_i32 s{sBASE+k}, s{sT1}, {16*ROWB}")
    e(f"s_mul_i32 s{sT3}, s{sT2}, {8*192}")
    e(f"s_add_u32 s{sBASE+k}, s{sBASE+k}, s{sT3}")
    if k == 4:
        e(f"s_and_b32 s{sT3}, s{sCU}, 1")
        e(f"s_mul_i32 s{sT3}, s{sT3}, {8*ROWB}")
        e(f"s_add_u32 s{sBASE+k}, s{sBASE+k}, s{sT3}")
    e(f"s_cmp_eq_u32 s{sT2}, 0")
    e(f"s_cselect_b32 s{sBFL+k}, 0, 8")
    e(f"s_cmp_eq_u32 s{sT2}, 47")
    e(f"s_cselect_b32 s{sBFL+k}, 4, s{sBFL+k}")

def calc_rel(js):
    e(f"s_mov_b32 s{sT0}, {ROWB - 145*16}")
    e(f"s_movk_i32 s{sT1}, 1338")
    for j in js:
        e(f"v_and_b32 v{vT0}, 255, v0")
        if j: e(f"v_add_u32 v{vT0}, {256*j}, v{vT0}")
        e(f"v_mul_u32_u24 v{vT2}, 7232, v{vT0}")
        e(f"v_lshrrev_b32 v{vT2}, 20, v{vT2}")
        e(f"v_mul_u32_u24 v{vT3}, 145, v{vT2}")
        e(f"v_sub_u32 v{vT3}, v{vT0}, v{vT3}")
        e(f"v_lshlrev_b32 v{vT0}, 4, v{vT0}")
        e(f"v_mad_u32_u24 v{vREL+j}, v{vT2}, s{sT0}, v{vT0}")
        e(f"v_mad_u32_u24 v{vT2}, v{vT3}, s{sT1}, s{sT1}")
        e(f"v_lshrrev_b32 v{vT2}, 16, v{vT2}")
        e(f"v_mad_i32_i24 v{vREL+j}, v{vT2}, -8, v{vREL+j}")
        e(f"v_subrev_u32 v{vT2}, 24, v{vT3}")
        e(f"v_lshrrev_b32 v{vT2}, 31, v{vT2}")
        e(f"v_lshl_or_b32 v{vFL}, v{vT2}, {j}, v{vFL}")
        e(f"v_sub_u32 v{vT2}, 120, v{vT3}")
        e(f"v_lshrrev_b32 v{vT2}, 31, v{vT2}")
        e(f"v_lshl_or_b32 v{vFL}, v{vT2}, {4+j}, v{vFL}")
for x in range(1024): assert (x * 7232) >> 20 == x // 145
for x in range(145): assert ((x + 1) * 1338) >> 16 == (x >= 48) + (x >= 97)

def dma_prep(k, js=(0, 1, 2, 3), g0=True):
    e(f"s_sub_u32 s{sDB}, s{sBASE+k}, {2*ROWB + 2*192}")
    e(f"s_add_u32 s{sDL}, s{sI1K}, {SB[k]}")
    e(f"v_lshrrev_b32 v{vT3}, s{sBFL+k}, v{vFL}")
    for j in js:
        e(f"v_bfe_i32 v{vD+j}, v{vT3}, {j}, 1")
        if g0:
            e(f"v_add_u32 v{vD+4+j}, s{sDB}, v{vREL+j}")
            e(f"v_or_b32 v{vD+4+j}, v{vD+4+j}, v{vD+j}")
        e(f"v_or_b32 v{vD+j}, v{vD+j}, v{vREL+j}")
def dma_packet(g, j):
    p = [f"s_add_u32 m0, s{sDL}, {7*g*ROWP + 4096*j}"]
    if g == 0: p += ["s_nop 0", f"buffer_load_dwordx4 v{vD+4+j}, {sr(sX,4)}, 0 offen lds"]
    else: p += [f"s_add_u32 s{sT1}, s{sDB}, {7*g*ROWB}", f"buffer_load_dwordx4 v{vD+j}, {sr(sX,4)}, s{sT1} offen lds"]
    return p
def dma_now(parts, last):
    n = 0
    for g, j in parts:
        sk = None
        if (g, j) == last:
            sk = newlab("sk")
            e(f"s_cmp_ge_u32 s{sI4}, 2")
            e(f"s_cbranch_scc1 {sk}")
        else: n += 1
        for x in dma_packet(g, j): e(x)
        if sk: lab(sk)
    return n
def set_mask(parts, last):
    m = sum(1 << (4 * g + j) for g, j in parts)
    if last in parts:
        e(f"s_cmp_ge_u32 s{sI4}, 2")
        e(f"s_movk_i32 s{sDM}, {m}")
        e(f"s_cselect_b32 s{sDM}, {m & ~(1 << (4*last[0] + last[1]))}, s{sDM}")
        return len(parts) - 1
    e(f"s_movk_i32 s{sDM}, {m}")
    return len(parts)
ALLP = [(g, j) for g in range(3) for j in range(4)]

def dma_w(slots):
    for j in slots:
        e(f"s_mul_i32 s{sT0}, s{sWJ}, {j}")
        e(f"s_add_u32 s{sT0}, s{sT0}, s{sWB}")
        for t in range(3):
            e(f"s_add_u32 m0, s{sI3K}, {j*SLOT + 1024*t}")
            if t: e(f"s_add_u32 s{sT0}, s{sT0}, s{sWP}")
            else: e("s_nop 0")
            e(f"buffer_load_dwordx4 v{vWO}, {sr(sWS,4)}, s{sT0} offen lds")
def w_packets(ja, jb):
    pk = []
    for t in range(3):
        p = []
        if t == 0:
            p += [f"s_mul_i32 s{sWA}, s{sG}, {jb - ja}", f"s_add_u32 s{sWA}, s{sWA}, {ja}",
                  f"s_mul_i32 s{sWM}, s{sWA}, {SLOT}", f"s_add_u32 s{sWM}, s{sWM}, s{sI3K}",
                  f"s_mul_i32 s{sWA}, s{sWA}, s{sWJ}", f"s_mov_b32 m0, s{sWM}", f"s_add_u32 s{sWA}, s{sWA}, s{sWB}"]
        else:
            p += [f"s_add_u32 m0, s{sWM}, {1024*t}", f"s_add_u32 s{sWA}, s{sWA}, s{sWP}"]
        p.append(f"buffer_load_dwordx4 v{vWO}, {sr(sWS,4)}, s{sWA} offen lds")
        pk.append(p)
    return pk

def zero16(a):
    z = vr(vCW, 2)
    e(f"v_mfma_f32_32x32x8_bf16 {vr(a,16)}, {z}, {z}, 0")
def pickup(k):
    e(f"v_add_u32 v{vT3}, {XB[k]}, v{vPK}")
    d = vX if k < 2 else vXP
    for s in range(6): e(f"ds_read_b128 {vr(d+4*s,4)}, v{vT3} offset:{1024*s}")
def conv_addr(k):
    if k < 4: e(f"v_add_u32 v{vCA}, {SB[k]}, v{vIN}")
    else:
        e(f"v_bfe_u32 v{vT1}, v{vTID}, 1, 3")
        e(f"v_mul_u32_u24 v{vT1}, {ROWP}, v{vT1}")
        e(f"v_sub_u32 v{vCA}, v{vIN}, v{vT1}")
        e(f"v_add_u32 v{vCA}, {SB[k]}, v{vCA}")

def conv_core(R):
    q = LQ()
    ring = [vXP, vXP + 8, vXP + 16] + ([vRES, vRES + 8, vRES + 16] if R == 2 else [vACC + 24, vACC + 32, vACC + 40])
    reads = []
    for qq in range(6):
        for f in range(3):
            for rp in range(4):
                d = ring[(qq * 3 + f) % 6] + 2 * rp
                reads.append((f"ds_read_b64 {vr(d,2)}, v{vCA} offset:{2*f*ROWP + (rp>>1)*776 + (rp&1)*192 + 8*qq}", qq * 3 + f))
    if OPT["cp"]: e("s_setprio 1")
    for r, t in reads[:14]: q.op(r, t)
    nxt = 14
    for idx in range(18):
        qq, f = divmod(idx, 3)
        q.wait(idx)
        for rho in range(R):
            a = vCW + 12 * qq + 4 * f + (2 if rho == 0 else 0)
            e(f"v_smfmac_f32_16x16x64_bf16 {vr(vACC + rho*24 + 4*qq, 4)}, {vr(a,4)}, {vr(ring[idx % 6], 8)}, v{vIDX}")
            lo, hi = (nxt + 2 * rho, nxt + 2 * rho + 2) if R == 2 else (nxt, nxt + 4)
            for r, t in reads[lo:hi]: q.op(r, t)
        nxt += 4
        if R == 2 and idx == OPT["gam"]:
            sk = newlab("gam")
            e(f"s_cmp_eq_u32 s{sFLG}, 0")
            e(f"s_cbranch_scc1 {sk}")
            e("s_barrier")
            lab(sk)
def conv_stats(R):
    e(f"v_add_u32 v{vT0}, s{sI1K}, v{vSTA}")
    for rho in range(R):
        a = vACC + rho * 24
        s2, q2 = vS + 4 * rho, vS + 4 * rho + 2
        e(f"v_pk_add_f32 {vr(s2,2)}, {vr(a,2)}, {vr(a+2,2)}")
        e(f"v_pk_mul_f32 {vr(q2,2)}, {vr(a,2)}, {vr(a,2)}")
        for i in range(1, 12):
            if i >= 2: e(f"v_pk_add_f32 {vr(s2,2)}, {vr(s2,2)}, {vr(a+2*i,2)}")
            e(f"v_pk_fma_f32 {vr(q2,2)}, {vr(a+2*i,2)}, {vr(a+2*i,2)}, {vr(q2,2)}")
    e(f"v_add_f32 v{vS}, v{vS}, v{vS+1}")
    e(f"v_add_f32 v{vS+1}, v{vS+2}, v{vS+3}")
    if R == 2:
        e(f"v_add_f32 v{vS+2}, v{vS+4}, v{vS+5}")
        e(f"v_add_f32 v{vS+3}, v{vS+6}, v{vS+7}")
    e(f"ds_write_b128 v{vT0}, {vr(vS,4)}")
    if OPT["cp"]: e("s_setprio 0")
    e("s_waitcnt lgkmcnt(0)")
def conv(k):
    cm(f"======== conv {k}")
    if k in (2, 3): pickup(k - 2)
    if k < 4:
        call("L_core")
        e(f"v_add_u32 v{vT3}, {SB[k]}, v{vRD}")
        d = vRES1 if k < 2 else vRES
        for i in range(12): e(f"ds_read_b64 {vr(d+2*i,2)}, v{vT3} offset:{32*(i>>1) + 8*(i&1)}")
        call("L_stats")
    else:
        conv_core(1)
        pickup(2)
        conv_stats(1)

def norm_reads(R):
    tb = vXP if R == 2 else vACC + 24
    for w in range(4): e(f"ds_read_b128 {vr(tb+4*w,4)}, v{vSTA} offset:{1024*w}")
def norm_body(R, packets):
    tb = vXP if R == 2 else vACC + 24
    ops = []
    o = ops.append
    for i in range(2 * R): o(f"v_add_f32 v{tb+i}, v{tb+i}, v{tb+4+i}")
    for i in range(2 * R): o(f"v_add_f32 v{tb+8+i}, v{tb+8+i}, v{tb+12+i}")
    for i in range(2 * R): o(f"v_add_f32 v{tb+i}, v{tb+i}, v{tb+8+i}")
    rr = range(R)
    sm = [tb + 2 * r for r in rr]; sq = [tb + 2 * r + 1 for r in rr]
    for r in rr: o(f"v_mul_f32 v{sm[r]}, {hex(f2u(1.0/96))}, v{sm[r]}")
    for r in rr: o(f"v_mul_f32 v{sq[r]}, {hex(f2u(1.0/96))}, v{sq[r]}")
    for r in rr: o(f"v_fma_f32 v{sq[r]}, -v{sm[r]}, v{sm[r]}, v{sq[r]}")
    for r in rr: o(f"v_max_f32 v{sq[r]}, 0, v{sq[r]}")
    for r in rr: o(f"v_add_f32 v{sq[r]}, {hex(f2u(1e-5))}, v{sq[r]}")
    for r in rr: o(f"v_rsq_f32 v{sq[r]}, v{sq[r]}")
    o("s_nop 0")
    for r in rr: o(f"v_mul_f32 v{sq[r]}, {hex(f2u(SC))}, v{sq[r]}")
    for r in rr: o(f"v_mul_f32 v{sm[r]}, v{sm[r]}, v{sq[r]}")
    for rho in rr:
        a = vACC + rho * 24
        for oc in range(3):
            for i in range(8): o(f"v_fma_f32 v{a+8*oc+i}, v{a+8*oc+i}, v{sq[rho]}, -v{sm[rho]}")
            for i in range(4): o(f"v_cvt_pk_bf16_f32 v{a+4*oc+i}, v{a+8*oc+2*i}, v{a+8*oc+2*i+1}")
            o(f"ds_write_b128 v{vT0}, {vr(a+4*oc,4)} offset:{rho*12288 + 512*oc}")
    pk = list(packets)
    if OPT["nm"] & 1:
        ops = [x for x in ops if not x.startswith("ds_write")] + [x for x in ops if x.startswith("ds_write")]
    if OPT["nm"] & 2:
        o2 = []
        for x in ops:
            o2 += ["s_setprio 2", x, "s_setprio 0"] if x.startswith("ds_write") else [x]
        ops = o2
        pk = [["s_setprio 2"] + p + ["s_setprio 0"] for p in pk]
    def emit_pk():
        if pk:
            for x in pk.pop(0): (lab(x[:-1]) if x.endswith(":") else e(x))
    fs = (lambda i: stamp(i, True)) if (OPT["fine"] == 7 and R == 2 and not pk) or (OPT["fine"] == 6 and R == 2 and pk) else (lambda i: None)
    fs(2)
    if not OPT["nm"] & 1:
        emit_pk(); emit_pk()
    e("s_waitcnt lgkmcnt(0)")
    fs(3)
    step = max(1, len(ops) // max(1, len(pk))) if pk and not OPT["nm"] & 1 else 0
    nw = 0
    for i, x in enumerate(ops):
        e(x)
        if i == 28: fs(4)
        if x.startswith("ds_write"):
            fs(5 + nw); nw += 1
        if step and (i + 1) % step == 0: emit_pk()
    while pk: emit_pk()
    e("s_waitcnt lgkmcnt(0)")
    fs(11)
def guarded():
    out = [dma_packet(g, j) for g, j in ALLP[:7]]
    sk = newlab("gd")
    out.append([f"s_cmp_eq_u32 s{sDM}, 0", f"s_cbranch_scc1 {sk}"] + dma_packet(1, 3) + [sk + ":"])
    return out
def norm(k, prep, nextk):
    cm(f"======== norm {k}")
    if (OPT["fine"] == 7 and k >= 2) or (OPT["fine"] == 6 and k < 2): stamp(1, True)
    if OPT["nm"] & 6: e("s_setprio 2")
    norm_reads(2)
    late = (OPT["nm"] & 1) and (k == 2 or (k == 3 and not OPT["nm"] & 4))
    if not late: prep()
    if OPT["nm"] & 6: e("s_setprio 0")
    e(f"v_add_u32 v{vT0}, {XB[k]}, v{vXW}")
    call("L_normd" if k < 2 else "L_norm")
    if late: prep()
    if nextk is not None:
        for i in range(3 if nextk < 4 else 2): zero16(vACC + 16 * i)
        conv_addr(nextk)
    if (OPT["fine"] == 7 and k >= 2) or (OPT["fine"] == 6 and k < 2): stamp(12, True)

def load_cw():
    for q in range(6):
        for i in range(5):
            e(f"ds_read_b64_tr_b16 {vr(vCW+12*q+2+2*i,2)}, v{vS} offset:{960*i + 8*q}")

def setup_conv(grp):
    e(f"v_and_b32 v{vT0}, 14, v0")
    e(f"v_mul_u32_u24 v{vRD}, {ROWP}, v{vT0}")
    e(f"v_and_b32 v{vT0}, 1, v0")
    e(f"v_mul_u32_u24 v{vT0}, 776, v{vT0}")
    e(f"v_add_u32 v{vRD}, v{vRD}, v{vT0}")
    e(f"v_bfe_u32 v{vT2}, v0, 4, 1")
    e(f"v_mul_u32_u24 v{vT0}, {ROWP}, v{vT2}")
    e(f"v_bfe_u32 v{vT3}, v0, 5, 1")
    e(f"v_mul_u32_u24 v{vT1}, 384, v{vT3}")
    e(f"v_add3_u32 v{vIN}, v{vRD}, v{vT0}, v{vT1}")
    e(f"s_mul_i32 s{sT0}, s{sI4}, 48")
    e(f"v_add_u32 v{vIN}, s{sT0}, v{vIN}")
    e(f"v_mul_u32_u24 v{vT0}, 192, v{vT2}")
    e(f"v_lshl_add_u32 v{vPX}, v{vT3}, 4, v{vT0}")
    e(f"s_lshr_b32 s{sT0}, s{sI4}, 1")
    e(f"s_mul_i32 s{sT1}, s{sT0}, {ROWP}")
    e(f"s_and_b32 s{sT2}, s{sI4}, 1")
    e(f"s_mul_i32 s{sT3}, s{sT2}, 392")
    e(f"s_add_u32 s{sT1}, s{sT1}, s{sT3}")
    e(f"s_add_u32 s{sT1}, s{sT1}, {2*ROWP + 384}")
    e(f"v_add3_u32 v{vRD}, v{vRD}, v{vPX}, s{sT1}")
    e(f"v_mul_u32_u24 v{vT0}, 6144, v{vT3}")
    e(f"v_and_b32 v{vT2}, 31, v0")
    e(f"v_lshl_add_u32 v{vT0}, v{vT2}, 4, v{vT0}")
    e(f"s_mul_i32 s{sT0}, s{sI4}, 1536")
    e(f"v_add_u32 v{vXW}, s{sT0}, v{vT0}")
    e(f"s_mul_i32 s{sT0}, s{sI4}, 6144")
    e(f"v_add_u32 v{vPK}, s{sT0}, v{vLIN}")
    e(f"v_and_b32 v{vT2}, 3, v0")
    e(f"v_mul_u32_u24 v{vIDX}, 0x5555, v{vT2}")
    e(f"s_mov_b32 s{sFLG}, 0")

def setup_ffn():
    e(f"s_lshr_b32 s{sG}, s{sW}, 2")
    e(f"s_cmp_lt_u32 s{sI4}, 2")
    e(f"s_cselect_b32 s{sWS}, s96, s98")
    e(f"s_cselect_b32 s{sWS+1}, s97, s99")
    e(f"s_mov_b32 s{sWS+2}, 73728")
    e(f"s_mov_b32 s{sWS+3}, 0x20000")
    e(f"s_movk_i32 s{sWP}, 1024")
    e(f"s_cselect_b32 s{sWP}, 12288, s{sWP}")
    e(f"s_cselect_b32 s{sWJ}, 64, 6144")
    e(f"s_cselect_b32 s{sT0}, 768, 64")
    e(f"s_and_b32 s{sT1}, s{sI4}, 1")
    e(f"s_mul_i32 s{sWB}, s{sWP}, 3")
    e(f"s_mul_i32 s{sWB}, s{sWB}, s{sT1}")
    e(f"s_mul_i32 s{sI3K}, s{sI4}, 3072")
    e(f"v_bfe_u32 v{vT0}, v0, 2, 4")
    e(f"v_mul_u32_u24 v{vT0}, s{sT0}, v{vT0}")
    e(f"v_and_b32 v{vT2}, 3, v0")
    e(f"v_lshl_add_u32 v{vWO}, v{vT2}, 4, v{vT0}")
    e(f"s_mov_b32 s{sO+2}, {XBYTES}")
    e(f"s_mov_b32 s{sO+3}, 0x20000")
    e(f"v_and_b32 v{vT1}, 14, v0")
    e(f"s_mov_b32 s{sT3}, {ROWB}")
    e(f"v_mul_lo_u32 v{vT0}, v{vT1}, s{sT3}")
    e(f"v_and_b32 v{vT1}, 1, v0")
    e(f"v_mul_u32_u24 v{vT1}, 768, v{vT1}")
    e(f"v_add3_u32 v{vPX}, v{vPX}, v{vT0}, v{vT1}")
    e(f"s_lshr_b32 s{sT0}, s{sI4}, 1")
    e(f"s_mul_i32 s{sT0}, s{sT0}, {ROWB}")
    e(f"s_and_b32 s{sT2}, s{sI4}, 1")
    e(f"s_mul_i32 s{sT2}, s{sT2}, 384")
    e(f"s_add_u32 s{sT0}, s{sT0}, s{sT2}")
    e(f"s_cmp_eq_u32 s{sG}, 0")
    e(f"s_cselect_b32 s{sJ1}, s{sBASE}, s{sBASE+1}")
    e(f"s_cselect_b32 s{sJ2}, s{sBASE+2}, s{sBASE+3}")
    e(f"s_add_u32 s{sJ1}, s{sJ1}, s{sT0}")
    e(f"s_add_u32 s{sJ2}, s{sJ2}, s{sT0}")
    e(f"v_bfe_u32 v{vT0}, v0, 4, 1")
    e(f"v_lshlrev_b32 v{vT0}, 5, v{vT0}")
    e(f"v_and_b32 v{vT2}, 1, v0")
    e(f"v_lshl_add_u32 v{vT0}, v{vT2}, 4, v{vT0}")
    e(f"v_bfe_u32 v{vT2}, v0, 1, 1")
    e(f"v_lshl_add_u32 v{vT0}, v{vT2}, 3, v{vT0}")
    e(f"v_bfe_u32 v{vT2}, v0, 2, 2")
    e(f"v_bfe_u32 v{vT3}, v0, 5, 1")
    e(f"v_lshl_add_u32 v{vT2}, v{vT3}, 3, v{vT2}")
    e(f"v_lshl_add_u32 v{vA1}, v{vT2}, 6, v{vT0}")
    e(f"v_mul_u32_u24 v{vT2}, 192, v{vT2}")
    e(f"v_add_u32 v{vA2}, v{vT2}, v{vT0}")
    for r, v in ((sC0, C0), (sSC, SC)):
        e(f"s_mov_b32 s{r}, {hex(f2u(v))}")
        e(f"s_mov_b32 s{r+1}, {hex(f2u(v))}")

class Addr:
    def __init__(self): self.b = {vA1: 0, vA2: 0}
    def off(self, reg, slot, extra): return (slot - self.b[reg]) * SLOT + extra
    def ensure(self, reg, slot):
        if not (0 <= (slot - self.b[reg]) * SLOT and (slot - self.b[reg] + 1) * SLOT <= 65536):
            nb = {0: 0, 5: 1, 9: 7, 6: 6}.get(slot, slot)
            d = (nb - self.b[reg]) * SLOT
            if d > 0: e(f"v_add_u32 v{reg}, {d}, v{reg}")
            else: e(f"v_subrev_u32 v{reg}, {-d}, v{reg}")
            self.b[reg] = nb
AD = Addr()
def f1_reads(slot):
    AD.ensure(vA1, slot)
    return [f"ds_read_b64_tr_b16 {vr(vF1+4*s+2*t,2)}, v{vA1} offset:{AD.off(vA1, slot, (16*s+4*t)*64)}" for s in range(6) for t in range(2)]
def f2_reads(slot):
    AD.ensure(vA2, slot)
    return [f"ds_read_b64_tr_b16 {vr(vF2+12*s+4*T+2*t,2)}, v{vA2} offset:{AD.off(vA2, slot, 6144+(16*s+4*t)*192+64*T)}" for s in range(2) for T in range(3) for t in range(2)]
def g1(h, x):
    return [f"v_mfma_f32_32x32x16_bf16 {vr(h,16)}, {vr(vF1+4*s,4)}, {vr(x+4*s,4)}, {vr(h,16) if s else 0}" for s in range(6)]
def g2(zero=False):
    return [f"v_mfma_f32_32x32x16_bf16 {vr(vO+16*T,16)}, {vr(vF2+12*s+4*T,4)}, {vr(vY+4*s,4)}, {0 if (zero and s==0) else vr(vO+16*T,16)}" for s in range(2) for T in range(3)]
def cvts(lo, hi): return [f"v_cvt_pk_bf16_f32 v{vY+i}, v{vU+2*i}, v{vU+2*i+1}" for i in range(lo, hi)]
def pz(h):
    a = [f"v_pk_fma_f32 {vr(vT+2*i,2)}, {vr(h+2*i,2)}, {vr(h+2*i,2)}, {sr(sC0)}" for i in range(8)]
    b = [f"v_pk_mul_f32 {vr(vT+2*i,2)}, {vr(vT+2*i,2)}, {vr(h+2*i,2)} neg_lo:[1,0] neg_hi:[1,0]" for i in range(8)]
    return a + b
PEND = []
def pphase(ops, ds, nst=1):
    for r in ds: e(r)
    for i in range(nst):
        if PEND:
            p = PEND.pop(0)
            for x in (p if isinstance(p, list) else [p]): e(x)
    for o in ops: e(o)
def mphase(mf, fill):
    for i in range(6):
        if mf: e(mf[i])
        for o in fill[i]: e(o)
def res_unpack(src):
    for i in range(24):
        e(f"v_lshlrev_b32 v{vO+2*i}, 16, v{src+i}")
        e(f"v_and_b32 v{vO+2*i+1}, 0xffff0000, v{src+i}")
def out_pack(dst, sbase, mod):
    for i in range(24): e(f"v_cvt_pk_bf16_f32 v{dst+i}, v{vO+2*i}, v{vO+2*i+1}")
    for i in range(6):
        PEND.append(f"buffer_store_dwordx4 {vr(dst+4*i,4)}, v{vPX}, {sr(sO,4)}, s{sbase} offen offset:{32*i} {mod}")
def hook(hooks, p, j):
    for f in hooks.get((p, j), []): f()
def ffn_prologue(steps, hooks):
    for r in f1_reads(steps[0][0]): e(r)
    hook(hooks, "pre", 0)
    e("s_waitcnt lgkmcnt(0)")
    for m in g1(vH[0], steps[0][1]): e(m)
    for r in f1_reads(steps[1][0]): e(r)
    hook(hooks, "pre2", 0)
    e("s_nop 3")
    for o in pz(vH[0]): e(o)
def ffn_step(steps, hooks, j, nst=1):
    N = len(steps)
    cm(f"ustep {j}")
    ex = [f"v_exp_f32 v{vT+i}, v{vT+i}" for i in range(16)]
    rc = [f"v_rcp_f32 v{vT+i}, v{vT+i}" for i in range(16)]
    c = cvts(0, 8) if j >= 1 else []
    hook(hooks, "m1", j)
    if j + 1 < N: e(f"s_waitcnt lgkmcnt({12 if j >= 1 else 0})")
    mphase(g1(vH[(j+1) & 1], steps[j+1][1]) if j + 1 < N else [],
           [ex[0:3], ex[3:6], ex[6:9], ex[9:12], ex[12:14] + c[0:2], ex[14:16] + c[2:4]])
    hook(hooks, "f1", j + 2)
    d = [f"v_pk_fma_f32 {vr(vT+2*i,2)}, {vr(vT+2*i,2)}, {sr(sSC)}, {sr(sSC)}" for i in range(8)]
    pphase(d, f1_reads(steps[j+2][0]) if j + 2 < N else [], nst)
    hook(hooks, "m2", j)
    if j >= 1: e(f"s_waitcnt lgkmcnt({12 if j + 2 < N else 0})")
    mphase(g2(steps[j-1][2]) if j >= 1 else [],
           [rc[0:2] + c[4:6], rc[2:4] + c[6:8], rc[4:7], rc[7:10], rc[10:13], rc[13:16]])
    h = vH[j & 1]
    y = [f"v_pk_mul_f32 {vr(vU+2*i,2)}, {vr(h+2*i,2)}, {vr(vT+2*i,2)}" for i in range(8)]
    hook(hooks, "f2", j)
    pphase(y + (pz(vH[(j+1) & 1]) if j + 1 < N else []), f2_reads(steps[j][0]), nst)
    hook(hooks, "post", j)
    if OPT["fine"] == 9 and j % 2 == 1 and j < 24: stamp(1 + j // 2, True)
def ffn_epilogue(steps):
    assert not PEND
    for o in cvts(0, 8): e(o)
    e("s_waitcnt lgkmcnt(0)")
    e("s_nop 0")
    for m in g2(steps[-1][2]): e(m)

e("s_cmp_ge_u32 s2, 256")
e("s_cbranch_scc1 L_end")
e(f"s_load_dwordx2 s[{sX}:{sX+1}], s[0:1], 0")
e("s_load_dwordx4 s[24:27], s[0:1], 8")
e("s_load_dwordx4 s[96:99], s[0:1], 24")
e(f"s_load_dwordx2 s[{sO}:{sO+1}], s[0:1], 40")
if OPT["stamp"]:
    e(f"s_load_dwordx2 s[{sDBG}:{sDBG+1}], s[0:1], 56")
    e(f"s_mov_b32 s{sDBG+2}, {1 << 20}")
    e(f"s_mov_b32 s{sDBG+3}, 0x20000")
    e(f"s_memrealtime s[{sTS+28}:{sTS+29}]")
    stamp(0)
npf = 0
if OPT["cpf"]:
    e(f"s_getpc_b64 {sr(sPC)}")
    lab("L_pc")
    e(f"v_lshlrev_b32 v{vT0}, 7, v0")
    e(f"v_min_u32 v{vT0}, L_end-L_pc, v{vT0}")
    e(f"global_load_dword v255, v{vT0}, {sr(sPC)}")
e(f"s_mov_b32 s{sX+2}, {XBYTES}")
e(f"s_mov_b32 s{sX+3}, 0x20000")
e(f"v_lshrrev_b32 v{vT0}, 6, v0")
e(f"v_and_b32 v{vT1}, 63, v0")
e(f"v_readfirstlane_b32 s{sW}, v{vT0}")
e(f"v_lshlrev_b32 v{vLIN}, 4, v{vT1}")
e(f"s_lshr_b32 s{sCU}, s2, 3")
e(f"s_and_b32 s3, s2, 7")
e(f"s_mul_i32 s3, s3, 6")
e(f"s_and_b32 s{sI4}, s{sW}, 3")
e(f"s_lshl_b32 s{sI1K}, s{sI4}, 10")
e(f"v_mov_b32 v{vFL}, 0")
block_base(0)
e(f"s_cmp_ge_u32 s{sW}, 4")
e(f"s_cbranch_scc1 L_grpB")

def cw_addr():
    for i in range(7): e(f"v_pk_mov_b32 {vr(vCW+12*i,2)}, 0, 0")
    e(f"v_bfe_u32 v{vT0}, v0, 3, 3")
    e(f"v_and_b32 v{vT2}, 3, v0")
    e(f"v_sub_u32 v{vT0}, v{vT0}, v{vT2}")
    e(f"v_cmp_gt_u32 {sr(sT2)}, 5, v{vT0}")
    e(f"v_mul_u32_u24 v{vT0}, 192, v{vT0}")
    e(f"v_bfe_u32 v{vT2}, v0, 2, 1")
    e(f"s_movk_i32 s{sT0}, 5120")
    e(f"v_mad_u32_u24 v{vT0}, v{vT2}, s{sT0}, v{vT0}")
    e(f"v_mov_b32 v{vT2}, s{sT0}")
    e(f"v_cndmask_b32 v{vT0}, v{vT2}, v{vT0}, {sr(sT2)}")
    e(f"s_mul_i32 s{sT0}, s{sI4}, 48")
    e(f"s_add_u32 s{sT0}, s{sT0}, {DWS}")
    e(f"v_add_u32 v{vS}, s{sT0}, v{vT0}")
    for i in range(3): zero16(vACC + 16 * i)

e(f"v_subrev_u32 v{vT1}, 192, v{vLIN}")
e(f"s_movk_i32 s{sT0}, 576")
e(f"v_cmp_gt_u32 {sr(sT2)}, s{sT0}, v{vT1}")
e(f"s_cmp_eq_u32 s{sW}, 0")
e(f"s_cselect_b64 {sr(sT0)}, -1, 0")
e(f"v_cndmask_b32 v{vT1}, -1, v{vT1}, {sr(sT2)}")
e(f"v_cndmask_b32 v{vT1}, v{vT1}, v{vLIN}, {sr(sT0)}")
e("s_waitcnt lgkmcnt(0)")
e(f"s_mov_b32 s{sDS}, s26")
e(f"s_mov_b32 s{sDS+1}, s27")
e(f"s_movk_i32 s{sDS+2}, 4800")
e(f"s_mov_b32 s{sDS+3}, 0x20000")
e(f"s_add_u32 m0, s{sI1K}, {DWS}")
e(f"s_mul_i32 s{sT0}, s{sI4}, 576")
e(f"buffer_load_dwordx4 v{vLIN}, {sr(sDS,4)}, s{sI1K} offen lds")
e(f"s_mul_i32 s{sT1}, s{sI4}, 960")
e(f"s_sub_u32 s{sT0}, s{sT0}, 576")
e(f"s_add_u32 s{sT1}, s{sT1}, {DWL}")
e(f"s_cmp_eq_u32 s{sW}, 0")
e(f"s_cselect_b32 s{sDS}, s26, s24")
e(f"s_cselect_b32 s{sDS+1}, s27, s25")
e(f"s_cselect_b32 s{sDS+2}, s{sDS+2}, 1728")
e(f"s_cselect_b32 m0, {DWS + 4096}, s{sT1}")
e(f"s_cselect_b32 s{sT0}, 4096, s{sT0}")
e(f"buffer_load_dwordx4 v{vT1}, {sr(sDS,4)}, s{sT0} offen lds")
calc_rel([0, 1])
dma_prep(0, (0, 1))
n = dma_now([(g, j) for g in range(3) for j in (0, 1)], None)
stamp(1)
cw_addr()
e(f"v_add_u32 v{vSTA}, {STB[0]}, v{vLIN}")
e(f"s_waitcnt vmcnt({n})")
bar(2)
call("L_setup")
conv_addr(0)
calc_rel([2, 3])
e("s_waitcnt vmcnt(0) lgkmcnt(0)")
bar(3)
conv(0)
bar(4)
B3LO = [(0, 0), (0, 1), (0, 2), (0, 3), (1, 0), (1, 1), (1, 2)]
B3HI = [(1, 3), (2, 0), (2, 1), (2, 2), (2, 3)]
norm(0, lambda: (dma_prep(3), e(f"s_mov_b32 s{sDM}, 0")), 2)
e(f"s_mov_b32 s{sFLG}, 1")
bar(5)
conv(2)
e("s_waitcnt vmcnt(0)")
bar(6)
norm(2, lambda: dma_w([0]), 4)
bar(7)
conv(4)
e("s_waitcnt vmcnt(0)")
bar(8)
norm_reads(1)
e(f"v_add_u32 v{vT0}, {XB[4]}, v{vXW}")
norm_body(1, w_packets(1, 1) + w_packets(2, 2) + w_packets(3, 3))
e("s_branch L_ffn")
lab("L_setup")
load_cw(); setup_conv(0)
for k in (1, 2, 3, 4): block_base(k)
setup_ffn(); ret()
lab("L_core"); conv_core(2); ret()
lab("L_stats"); conv_stats(2); ret()
lab("L_normd"); norm_body(2, guarded()); ret()
lab("L_norm"); norm_body(2, []); ret()
lab("L_grpB")
calc_rel([2, 3])
dma_prep(0, (2, 3))
e("s_waitcnt lgkmcnt(0)")
n = dma_now([(g, j) for g in range(3) for j in (2, 3)], (2, 3))
stamp(1)
if OPT["wpf"]:
    sk = newlab("wpf")
    e(f"s_cmp_lg_u32 s{sW}, 7")
    e(f"s_cbranch_scc1 {sk}")
    e(f"s_cmp_ge_u32 s{sCU}, 18")
    e(f"s_cbranch_scc1 {sk}")
    e(f"s_cmp_lt_u32 s{sCU}, 9")
    e(f"s_cselect_b32 s{sT0}, s96, s98")
    e(f"s_cselect_b32 s{sT1}, s97, s99")
    e(f"s_cselect_b32 s{sT2}, 0, 9")
    e(f"s_sub_u32 s{sT2}, s{sCU}, s{sT2}")
    e(f"s_lshl_b32 s{sT2}, s{sT2}, 13")
    e(f"v_lshl_add_u32 v{vT0}, v{vLIN}, 3, s{sT2}")
    e(f"global_load_dword v{vS+7}, v{vT0}, {sr(sT0)}")
    lab(sk)
cw_addr()
e(f"v_pk_mov_b32 {vr(vCW+2,2)}, 0, 0")
sk = newlab("zr")
e(f"s_cmp_ge_u32 s{sI4}, 2")
e(f"s_cbranch_scc1 {sk}")
e(f"s_mul_i32 s{sT0}, s{sI4}, 3840")
e(f"s_add_u32 s{sT0}, s{sT0}, {DWL}")
e(f"v_add_u32 v{vT0}, s{sT0}, v{vLIN}")
e(f"ds_write_b128 v{vT0}, {vr(vCW,4)}")
lab(sk)
e(f"v_add_u32 v{vSTA}, {STB[1]}, v{vLIN}")
calc_rel([0, 1])
e("s_waitcnt lgkmcnt(0)")
bar(2)
call("L_setup")
conv_addr(1)
dma_prep(1)
n1 = dma_now(ALLP[:OPT["b1a"]], (2, 3))
e(f"s_waitcnt vmcnt({n1}) lgkmcnt(0)")
bar(3)
dma_now(ALLP[OPT["b1a"]:], (2, 3))
dma_prep(2)
n2 = dma_now(ALLP, (2, 3))
e(f"s_waitcnt vmcnt({n2})")
bar(4)
conv(1)
e("s_waitcnt vmcnt(0)")
bar(5)
n4 = [0]
def prep1():
    dma_prep(3, g0=False)
    e("s_barrier")
    dma_now(B3HI, (2, 3))
    dma_prep(4)
    e(f"s_cmp_lt_u32 s{sI4}, 2")
    e(f"s_cselect_b32 s{sDM}, 1, 0")
    n4[0] = 7
norm(1, prep1, 3)
e(f"s_waitcnt vmcnt({n4[0]})")
bar(6)
conv(3)
e("s_waitcnt vmcnt(0)")
bar(7)
norm(3, lambda: dma_w([4, 5]), None)
e("s_waitcnt vmcnt(0)")
bar(8)
pickup(3)
lab("L_ffn")
stamp(9)

steps24 = [(j, vX, False) for j in ORDER] + [(j, vXP, False) for j in ORDER]
steps30 = steps24 + [(12 + j, vX, j == 0) for j in range(6)]
hooks = {}
def addhook(p, j, f): hooks.setdefault((p, j), []).append(f)
addhook("pre2", 0, lambda: res_unpack(vRES1))
def h_bar(n, more=()):
    def f():
        e(f"s_waitcnt vmcnt({n})")
        e("s_barrier")
        for m in more: PEND.extend(w_packets(*m))
    return f
PEND.extend(w_packets(9, 10))
addhook("f1", 3, h_bar(3, [(11, 6), (7, 8)]))
addhook("f1", 6, h_bar(0))
def setprio_b(p):
    sk = newlab("prio")
    e(f"s_cmp_lt_u32 s{sW}, 4")
    e(f"s_cbranch_scc1 {sk}")
    e(f"s_setprio {p}")
    lab(sk)
def h_out1():
    out_pack(vX, sJ1, OPT["st1"])
    res_unpack(vRES)
    stamp(10)
addhook("post", 12, h_out1)
P = OPT["prio"]
for j in range(0, 20):
    if j < OPT["pfix"]:
        if P and (j + 1) % P == 0: addhook("post", j, (lambda p: (lambda: setprio_b(p)))(((j + 1) // P) & 1))
    elif j == OPT["pfix"]: addhook("post", j, lambda: setprio_b(1))
ffn_prologue(steps24, hooks)
for j in range(20): ffn_step(steps24, hooks, j, 2 if j < 3 else 1)
e(f"s_cmp_ge_u32 s{sW}, 4")
e("s_cbranch_scc1 L_tailB")
save = dict(AD.b)
for j in range(20, 24): ffn_step(steps24, hooks, j)
ffn_epilogue(steps24)
e("s_nop 10")
out_pack(vXP, sJ2, OPT["st2"])
while PEND: e(PEND.pop(0))
stamp(11)
e("s_barrier"); e("s_barrier")
stamp(12)
e("s_branch L_fin")
lab("L_tailB")
AD.b = save
def h_x4():
    e(f"s_lshr_b32 s{sT0}, s{sI4}, 1")
    e(f"s_mul_i32 s{sT1}, s{sT0}, 6144")
    e(f"s_add_u32 s{sT1}, s{sT1}, {XB[4]}")
    e(f"v_add_u32 v{vT0}, s{sT1}, v{vLIN}")
    for s_ in range(6): e(f"ds_read_b128 {vr(vX+4*s_,4)}, v{vT0} offset:{1024*s_}")
    e(f"v_bfe_u32 v{vT1}, v{vTID}, 1, 3")
    e(f"s_mov_b32 s{sT1}, {ROWB}")
    e(f"v_mul_lo_u32 v{vT1}, v{vT1}, s{sT1}")
    e(f"v_sub_u32 v{vIN}, v{vPX}, v{vT1}")
    e(f"s_mul_i32 s{sT0}, s{sT0}, 384")
    e(f"s_add_u32 s{sT0}, s{sT0}, s{sBASE+4}")
    e(f"s_and_b32 s{sT1}, s{sI4}, 1")
    e(f"s_mul_i32 s{sT1}, s{sT1}, 96")
    e(f"s_add_u32 s{sSH}, s{sT0}, s{sT1}")
    for t in range(3):
        PEND.append(f"buffer_load_dwordx4 {vr(vRES+4*t,4)}, v{vIN}, {sr(sX,4)}, s{sSH} offen offset:{32*t}")
addhook("m2", 20, h_x4)
def rebase(reg):
    def f():
        e(f"s_and_b32 s{sT0}, s{sW}, 1")
        e(f"s_mul_i32 s{sT0}, s{sT0}, {6*SLOT}")
        e(f"s_sub_u32 s{sT0}, s{sT0}, {AD.b[reg]*SLOT}")
        e(f"v_add_u32 v{reg}, s{sT0}, v{reg}")
        AD.b[reg] = 12
    return f
addhook("f1", 24, rebase(vA1))
addhook("f2", 24, rebase(vA2))
addhook("post", 24, lambda: out_pack(vXP, sJ2, OPT["st2"]))
for j in range(20, 30): ffn_step(steps30, hooks, j)
ffn_epilogue(steps30)
stamp(11)
vQ = 112
vR = 144
e(f"s_mul_i32 s{sT0}, s{sI4}, 6144")
e(f"v_add_u32 v{vT0}, s{sT0}, v{vLIN}")
e(f"s_xor_b32 s{sT0}, s{sI4}, 1")
e(f"s_mul_i32 s{sT0}, s{sT0}, 6144")
e(f"v_add_u32 v{vT1}, s{sT0}, v{vLIN}")
e("s_waitcnt vmcnt(6)")
for i in range(12):
    e(f"v_lshlrev_b32 v{vQ+2*i}, 16, v{vRES+i}")
    e(f"v_and_b32 v{vQ+2*i+1}, 0xffff0000, v{vRES+i}")
e("s_barrier")
e(f"s_bitcmp1_b32 s{sI4}, 0")
e("s_cbranch_scc1 L_odd")
for half, lb in ((0, None), (1, "L_odd")):
    if lb: lab(lb)
    keep, send = vO + 24 * half, vO + 24 * (1 - half)
    for u in range(6): e(f"ds_write_b128 v{vT0}, {vr(send+4*u,4)} offset:{1024*u}")
    for i in range(12): e(f"v_pk_add_f32 {vr(vQ+2*i,2)}, {vr(vQ+2*i,2)}, {vr(keep+2*i,2)}")
    if half == 0: e("s_branch L_join")
lab("L_join")
e("s_waitcnt lgkmcnt(0)")
e("s_barrier")
stamp(12)
for u in range(6): e(f"ds_read_b128 {vr(vR+4*u,4)}, v{vT1} offset:{1024*u}")
for t in range(3):
    e(f"s_waitcnt lgkmcnt({4-2*t})")
    for i in range(4): e(f"v_pk_add_f32 {vr(vQ+8*t+2*i,2)}, {vr(vQ+8*t+2*i,2)}, {vr(vR+8*t+2*i,2)}")
    for i in range(4): e(f"v_cvt_pk_bf16_f32 v{vO+4*t+i}, v{vQ+8*t+2*i}, v{vQ+8*t+2*i+1}")
    e(f"buffer_store_dwordx4 {vr(vO+4*t,4)}, v{vIN}, {sr(sO,4)}, s{sSH} offen offset:{32*t} {OPT['st2']}")
lab("L_fin")
if OPT["stamp"]:
    e("s_waitcnt vmcnt(0)")
    stamp(13)
    e(f"s_memrealtime s[{sTS+30}:{sTS+31}]")
    e("s_waitcnt lgkmcnt(0)")
    e(f"s_lshl_b32 s{sT0}, s2, 3")
    e(f"s_add_u32 s{sT0}, s{sT0}, s{sW}")
    e(f"s_lshl_b32 s{sT0}, s{sT0}, 6")
    e(f"v_mov_b32 v{vT0}, 0")
    for i in range(16):
        e(f"v_mov_b32 v{vT1}, s{sTS+2*i}")
        e(f"buffer_store_dword v{vT1}, v{vT0}, {sr(sDBG,4)}, s{sT0} offen offset:{4*i}")
lab("L_end")
e("s_endpgm")

ref = open(f"cdna_kernels/{NAME}.s.ref").read().splitlines()
head = [l for l in ref if l.startswith(";") and "@launch" not in l]
out = "\n".join(head) + f"\n; @launch grid=(256,1,1) block=(512,1,1) lds={LDS_TOTAL}\n"
out += f""".amdgcn_target "amdgcn-amd-amdhsa--gfx950"
.text
.globl {NAME}_kernel
.p2align 8
.type {NAME}_kernel,@function
{NAME}_kernel:
""" + "\n".join(L) + f"""
.section .rodata,"a"
.p2align 6
.amdhsa_kernel {NAME}_kernel
  .amdhsa_next_free_vgpr 256
  .amdhsa_next_free_sgpr 102
  .amdhsa_accum_offset 256
  .amdhsa_group_segment_fixed_size 0
  .amdhsa_kernarg_size 64
  .amdhsa_user_sgpr_count 2
  .amdhsa_user_sgpr_kernarg_segment_ptr 1
  .amdhsa_system_sgpr_workgroup_id_x 1
.end_amdhsa_kernel
"""
open(sys.argv[1], "w").write(out)
```

```python
import sys, struct, math
NAME = "standalone__modern_conv_block_replknet__vision"
OPT = dict(stamp=0, fine=-1, pre=0, prio=2, pfix=11, st1="", st2="", cpf=1, wpf=1, gam=3, cp=1, b1a=6, nm=5, padat=-1, padt=2000, p64=1, st3="")
for a in sys.argv[2:]:
    k, v = a.split("=")
    assert k in OPT, k
    OPT[k] = int(v) if v.lstrip("-").isdigit() else v.replace("+", " ")

def f2u(x): return struct.unpack("<I", struct.pack("<f", x))[0]
K0 = 2.0 * math.sqrt(2.0 / math.pi) * math.log2(math.e)
K1 = K0 * 0.044715
SC = K1 ** (1.0 / 3.0)
C0 = K0 / SC

L = []
def e(s): L.append("  " + s)
def lab(s): L.append(s + ":")
def cm(s): L.append("  ; " + s)
def vr(b, n): return f"v[{b}:{b+n-1}]"
def sr(b, n=2): return f"s[{b}:{b+n-1}]"

SLOT = 12288
SB = [47104, 116736, 0, 47104, 108544]
XB = [75776, 139264, 22528, 75776, 151552]
DWS = 106496
DWL = DWS + 5120
STB = [100352 + 4096 * (k & 1) for k in range(5)]
ROWP = 145 * 16
LDS_TOTAL = 163840
XBYTES = 384 * 384 * 192
ROWB = 384 * 192
ORDER = [0, 4, 5, 1, 2, 3, 9, 10, 11, 6, 7, 8]

sG = 3
sX, sO, sWS, sDS = 4, 8, 12, 20
sWB, sWP, sWJ = 16, 17, 18
sI4 = 19
sRET = 24
sFLG = 26
sDM = 27
sW = 28
sCU = 29
sT0, sT1, sT2, sT3 = 30, 31, 32, 33
sBASE = 34
sBFL = 39
sC0 = 44
sSC = 46
sDB, sDL = 48, 49
sSH = 50
sPC = 52
sJ1, sJ2 = 56, 57
sI1K = 58
sI3K = 59
sDBG = 60
sTS = 64
sWA, sWM = 100, 101

vTID = 0
vA1, vA2 = 1, 2
vPX = 3
vLIN = 4
vT0, vT1, vT2, vT3 = 5, 6, 7, 8
vIN = 9
vXW = 10
vWO = 11
vPK = 12
vIDX = 13
vFL = 14
vRD = 15
vPS = 14
vX = 16
vXP = 40
vO = 64
vH = [112, 128]
vT = 144
vU = 160
vY = 176
vF1 = 184
vF2 = 208
vRES = 232
vCW = 64
vREL = 138
vCA = 142
vSTA = 143
vACC = 144
vS = 192
vD = 200
vRES1 = 208

def stamp(i, fine=False):
    if OPT["fine"] >= 0 and not fine and 1 <= i <= 12: return
    if OPT["stamp"]:
        e(f"{'s_memtime' if OPT['stamp'] == 1 else 's_memrealtime'} s[{sTS+2*i}:{sTS+2*i+1}]")
def padpoint(i):
    if OPT["padat"] == i:
        lb = newlab("pad")
        lab(lb)
        e("s_sleep 2")
        e("s_memrealtime s[66:67]")
        e("s_waitcnt lgkmcnt(0)")
        e("s_sub_u32 s66, s66, s64")
        e(f"s_cmp_lt_u32 s66, {OPT['padt']}")
        e(f"s_cbranch_scc1 {lb}")
def bar(i=None):
    if i is not None and OPT["pre"]: stamp(i)
    e("s_barrier")
    if i is not None: padpoint(i)
    if i is not None and not OPT["pre"]: stamp(i)
uid = [0]
def newlab(p):
    uid[0] += 1
    return f"L_{p}_{uid[0]}"
def call(name): e(f"s_call_b64 {sr(sRET)}, {name}")
def ret(): e(f"s_setpc_b64 {sr(sRET)}")

class LQ:
    def __init__(self): self.q = []
    def op(self, s, tag=None):
        e(s); self.q.append(tag)
    def wait(self, tag):
        idx = [i for i, t in enumerate(self.q) if t == tag]
        if not idx: return
        n = len(self.q) - 1 - max(idx)
        e(f"s_waitcnt lgkmcnt({min(n, 14)})")
        self.q = self.q[max(idx) + 1:]

def block_base(k):
    if k == 0: t = sCU
    else:
        t = sT0
        if k < 4: e(f"s_add_u32 s{sT0}, s{sCU}, {32*k}")
        else:
            e(f"s_lshr_b32 s{sT0}, s{sCU}, 1")
            e(f"s_add_u32 s{sT0}, s{sT0}, 128")
    e(f"s_mul_i32 s{sT1}, s{t}, 171")
    e(f"s_lshr_b32 s{sT1}, s{sT1}, 10")
    e(f"s_mul_i32 s{sT2}, s{sT1}, 6")
    e(f"s_sub_u32 s{sT2}, s{t}, s{sT2}")
    e(f"s_add_u32 s{sT2}, s{sT2}, s3")
    e(f"s_mul_i32 s{sBASE+k}, s{sT1}, {16*ROWB}")
    e(f"s_mul_i32 s{sT3}, s{sT2}, {8*192}")
    e(f"s_add_u32 s{sBASE+k}, s{sBASE+k}, s{sT3}")
    if k == 4:
        e(f"s_and_b32 s{sT3}, s{sCU}, 1")
        e(f"s_mul_i32 s{sT3}, s{sT3}, {8*ROWB}")
        e(f"s_add_u32 s{sBASE+k}, s{sBASE+k}, s{sT3}")
    e(f"s_cmp_eq_u32 s{sT2}, 0")
    e(f"s_cselect_b32 s{sBFL+k}, 0, 8")
    e(f"s_cmp_eq_u32 s{sT2}, 47")
    e(f"s_cselect_b32 s{sBFL+k}, 4, s{sBFL+k}")

def calc_rel(js):
    e(f"s_mov_b32 s{sT0}, {ROWB - 145*16}")
    e(f"s_movk_i32 s{sT1}, 1338")
    for j in js:
        e(f"v_and_b32 v{vT0}, 255, v0")
        if j: e(f"v_add_u32 v{vT0}, {256*j}, v{vT0}")
        e(f"v_mul_u32_u24 v{vT2}, 7232, v{vT0}")
        e(f"v_lshrrev_b32 v{vT2}, 20, v{vT2}")
        e(f"v_mul_u32_u24 v{vT3}, 145, v{vT2}")
        e(f"v_sub_u32 v{vT3}, v{vT0}, v{vT3}")
        e(f"v_lshlrev_b32 v{vT0}, 4, v{vT0}")
        e(f"v_mad_u32_u24 v{vREL+j}, v{vT2}, s{sT0}, v{vT0}")
        e(f"v_mad_u32_u24 v{vT2}, v{vT3}, s{sT1}, s{sT1}")
        e(f"v_lshrrev_b32 v{vT2}, 16, v{vT2}")
        e(f"v_mad_i32_i24 v{vREL+j}, v{vT2}, -8, v{vREL+j}")
        e(f"v_subrev_u32 v{vT2}, 24, v{vT3}")
        e(f"v_lshrrev_b32 v{vT2}, 31, v{vT2}")
        e(f"v_lshl_or_b32 v{vFL}, v{vT2}, {j}, v{vFL}")
        e(f"v_sub_u32 v{vT2}, 120, v{vT3}")
        e(f"v_lshrrev_b32 v{vT2}, 31, v{vT2}")
        e(f"v_lshl_or_b32 v{vFL}, v{vT2}, {4+j}, v{vFL}")
for x in range(1024): assert (x * 7232) >> 20 == x // 145
for x in range(145): assert ((x + 1) * 1338) >> 16 == (x >= 48) + (x >= 97)

def dma_prep(k, js=(0, 1, 2, 3), g0=True):
    e(f"s_sub_u32 s{sDB}, s{sBASE+k}, {2*ROWB + 2*192}")
    e(f"s_add_u32 s{sDL}, s{sI1K}, {SB[k]}")
    e(f"v_lshrrev_b32 v{vT3}, s{sBFL+k}, v{vFL}")
    for j in js:
        e(f"v_bfe_i32 v{vD+j}, v{vT3}, {j}, 1")
        if g0:
            e(f"v_add_u32 v{vD+4+j}, s{sDB}, v{vREL+j}")
            e(f"v_or_b32 v{vD+4+j}, v{vD+4+j}, v{vD+j}")
        e(f"v_or_b32 v{vD+j}, v{vD+j}, v{vREL+j}")
def dma_packet(g, j):
    p = [f"s_add_u32 m0, s{sDL}, {7*g*ROWP + 4096*j}"]
    if g == 0: p += ["s_nop 0", f"buffer_load_dwordx4 v{vD+4+j}, {sr(sX,4)}, 0 offen lds"]
    else: p += [f"s_add_u32 s{sT1}, s{sDB}, {7*g*ROWB}", f"buffer_load_dwordx4 v{vD+j}, {sr(sX,4)}, s{sT1} offen lds"]
    return p
def dma_now(parts, last):
    n = 0
    for g, j in parts:
        sk = None
        if (g, j) == last:
            sk = newlab("sk")
            e(f"s_cmp_ge_u32 s{sI4}, 2")
            e(f"s_cbranch_scc1 {sk}")
        else: n += 1
        for x in dma_packet(g, j): e(x)
        if sk: lab(sk)
    return n
def set_mask(parts, last):
    m = sum(1 << (4 * g + j) for g, j in parts)
    if last in parts:
        e(f"s_cmp_ge_u32 s{sI4}, 2")
        e(f"s_movk_i32 s{sDM}, {m}")
        e(f"s_cselect_b32 s{sDM}, {m & ~(1 << (4*last[0] + last[1]))}, s{sDM}")
        return len(parts) - 1
    e(f"s_movk_i32 s{sDM}, {m}")
    return len(parts)
ALLP = [(g, j) for g in range(3) for j in range(4)]

def dma_w(slots):
    for j in slots:
        e(f"s_mul_i32 s{sT0}, s{sWJ}, {j}")
        e(f"s_add_u32 s{sT0}, s{sT0}, s{sWB}")
        for t in range(3):
            e(f"s_add_u32 m0, s{sI3K}, {j*SLOT + 1024*t}")
            if t: e(f"s_add_u32 s{sT0}, s{sT0}, s{sWP}")
            else: e("s_nop 0")
            e(f"buffer_load_dwordx4 v{vWO}, {sr(sWS,4)}, s{sT0} offen lds")
def w_packets(ja, jb):
    pk = []
    for t in range(3):
        p = []
        if t == 0:
            p += [f"s_mul_i32 s{sWA}, s{sG}, {jb - ja}", f"s_add_u32 s{sWA}, s{sWA}, {ja}",
                  f"s_mul_i32 s{sWM}, s{sWA}, {SLOT}", f"s_add_u32 s{sWM}, s{sWM}, s{sI3K}",
                  f"s_mul_i32 s{sWA}, s{sWA}, s{sWJ}", f"s_mov_b32 m0, s{sWM}", f"s_add_u32 s{sWA}, s{sWA}, s{sWB}"]
        else:
            p += [f"s_add_u32 m0, s{sWM}, {1024*t}", f"s_add_u32 s{sWA}, s{sWA}, s{sWP}"]
        p.append(f"buffer_load_dwordx4 v{vWO}, {sr(sWS,4)}, s{sWA} offen lds")
        pk.append(p)
    return pk

def zero16(a):
    z = vr(vCW, 2)
    e(f"v_mfma_f32_32x32x8_bf16 {vr(a,16)}, {z}, {z}, 0")
def pickup(k):
    e(f"v_add_u32 v{vT3}, {XB[k]}, v{vPK}")
    d = vX if k < 2 else vXP
    for s in range(6): e(f"ds_read_b128 {vr(d+4*s,4)}, v{vT3} offset:{1024*s}")
def conv_addr(k):
    if k < 4: e(f"v_add_u32 v{vCA}, {SB[k]}, v{vIN}")
    else:
        e(f"v_bfe_u32 v{vT1}, v{vTID}, 1, 3")
        e(f"v_mul_u32_u24 v{vT1}, {ROWP}, v{vT1}")
        e(f"v_sub_u32 v{vCA}, v{vIN}, v{vT1}")
        e(f"v_add_u32 v{vCA}, {SB[k]}, v{vCA}")

def conv_core(R):
    q = LQ()
    ring = [vXP, vXP + 8, vXP + 16] + ([vRES, vRES + 8, vRES + 16] if R == 2 else [vACC + 24, vACC + 32, vACC + 40])
    reads = []
    for qq in range(6):
        for f in range(3):
            for rp in range(4):
                d = ring[(qq * 3 + f) % 6] + 2 * rp
                reads.append((f"ds_read_b64 {vr(d,2)}, v{vCA} offset:{2*f*ROWP + (rp>>1)*776 + (rp&1)*192 + 8*qq}", qq * 3 + f))
    if OPT["cp"]: e("s_setprio 1")
    for r, t in reads[:14]: q.op(r, t)
    nxt = 14
    for idx in range(18):
        qq, f = divmod(idx, 3)
        q.wait(idx)
        for rho in range(R):
            a = vCW + 12 * qq + 4 * f + (2 if rho == 0 else 0)
            e(f"v_smfmac_f32_16x16x64_bf16 {vr(vACC + rho*24 + 4*qq, 4)}, {vr(a,4)}, {vr(ring[idx % 6], 8)}, v{vIDX}")
            lo, hi = (nxt + 2 * rho, nxt + 2 * rho + 2) if R == 2 else (nxt, nxt + 4)
            for r, t in reads[lo:hi]: q.op(r, t)
        nxt += 4
        if R == 2 and idx == OPT["gam"]:
            sk = newlab("gam")
            e(f"s_cmp_eq_u32 s{sFLG}, 0")
            e(f"s_cbranch_scc1 {sk}")
            e("s_barrier")
            lab(sk)
def conv_stats(R):
    e(f"v_add_u32 v{vT0}, s{sI1K}, v{vSTA}")
    for rho in range(R):
        a = vACC + rho * 24
        s2, q2 = vS + 4 * rho, vS + 4 * rho + 2
        e(f"v_pk_add_f32 {vr(s2,2)}, {vr(a,2)}, {vr(a+2,2)}")
        e(f"v_pk_mul_f32 {vr(q2,2)}, {vr(a,2)}, {vr(a,2)}")
        for i in range(1, 12):
            if i >= 2: e(f"v_pk_add_f32 {vr(s2,2)}, {vr(s2,2)}, {vr(a+2*i,2)}")
            e(f"v_pk_fma_f32 {vr(q2,2)}, {vr(a+2*i,2)}, {vr(a+2*i,2)}, {vr(q2,2)}")
    e(f"v_add_f32 v{vS}, v{vS}, v{vS+1}")
    e(f"v_add_f32 v{vS+1}, v{vS+2}, v{vS+3}")
    if R == 2:
        e(f"v_add_f32 v{vS+2}, v{vS+4}, v{vS+5}")
        e(f"v_add_f32 v{vS+3}, v{vS+6}, v{vS+7}")
    e(f"ds_write_b128 v{vT0}, {vr(vS,4)}")
    if OPT["cp"]: e("s_setprio 0")
    e("s_waitcnt lgkmcnt(0)")
def conv(k):
    cm(f"======== conv {k}")
    if k in (2, 3): pickup(k - 2)
    if k < 4:
        call("L_core")
        e(f"v_add_u32 v{vT3}, {SB[k]}, v{vRD}")
        d = vRES1 if k < 2 else vRES
        for i in range(12): e(f"ds_read_b64 {vr(d+2*i,2)}, v{vT3} offset:{32*(i>>1) + 8*(i&1)}")
        call("L_stats")
    else:
        conv_core(1)
        pickup(2)
        conv_stats(1)

def norm_reads(R):
    tb = vXP if R == 2 else vACC + 24
    for w in range(4): e(f"ds_read_b128 {vr(tb+4*w,4)}, v{vSTA} offset:{1024*w}")
def norm_body(R, packets):
    tb = vXP if R == 2 else vACC + 24
    ops = []
    o = ops.append
    for i in range(2 * R): o(f"v_add_f32 v{tb+i}, v{tb+i}, v{tb+4+i}")
    for i in range(2 * R): o(f"v_add_f32 v{tb+8+i}, v{tb+8+i}, v{tb+12+i}")
    for i in range(2 * R): o(f"v_add_f32 v{tb+i}, v{tb+i}, v{tb+8+i}")
    rr = range(R)
    sm = [tb + 2 * r for r in rr]; sq = [tb + 2 * r + 1 for r in rr]
    for r in rr: o(f"v_mul_f32 v{sm[r]}, {hex(f2u(1.0/96))}, v{sm[r]}")
    for r in rr: o(f"v_mul_f32 v{sq[r]}, {hex(f2u(1.0/96))}, v{sq[r]}")
    for r in rr: o(f"v_fma_f32 v{sq[r]}, -v{sm[r]}, v{sm[r]}, v{sq[r]}")
    for r in rr: o(f"v_max_f32 v{sq[r]}, 0, v{sq[r]}")
    for r in rr: o(f"v_add_f32 v{sq[r]}, {hex(f2u(1e-5))}, v{sq[r]}")
    for r in rr: o(f"v_rsq_f32 v{sq[r]}, v{sq[r]}")
    o("s_nop 0")
    for r in rr: o(f"v_mul_f32 v{sq[r]}, {hex(f2u(SC))}, v{sq[r]}")
    for r in rr: o(f"v_mul_f32 v{sm[r]}, v{sm[r]}, v{sq[r]}")
    for rho in rr:
        a = vACC + rho * 24
        for oc in range(3):
            for i in range(8): o(f"v_fma_f32 v{a+8*oc+i}, v{a+8*oc+i}, v{sq[rho]}, -v{sm[rho]}")
            for i in range(4): o(f"v_cvt_pk_bf16_f32 v{a+4*oc+i}, v{a+8*oc+2*i}, v{a+8*oc+2*i+1}")
            o(f"ds_write_b128 v{vT0}, {vr(a+4*oc,4)} offset:{rho*12288 + 512*oc}")
    pk = list(packets)
    if OPT["nm"] & 1:
        ops = [x for x in ops if not x.startswith("ds_write")] + [x for x in ops if x.startswith("ds_write")]
    if OPT["nm"] & 2:
        o2 = []
        for x in ops:
            o2 += ["s_setprio 2", x, "s_setprio 0"] if x.startswith("ds_write") else [x]
        ops = o2
        pk = [["s_setprio 2"] + p + ["s_setprio 0"] for p in pk]
    def emit_pk():
        if pk:
            for x in pk.pop(0): (lab(x[:-1]) if x.endswith(":") else e(x))
    fs = (lambda i: stamp(i, True)) if (OPT["fine"] == 7 and R == 2 and not pk) or (OPT["fine"] == 6 and R == 2 and pk) else (lambda i: None)
    fs(2)
    if not OPT["nm"] & 1:
        emit_pk(); emit_pk()
    e("s_waitcnt lgkmcnt(0)")
    fs(3)
    step = max(1, len(ops) // max(1, len(pk))) if pk and not OPT["nm"] & 1 else 0
    nw = 0
    for i, x in enumerate(ops):
        e(x)
        if i == 28: fs(4)
        if x.startswith("ds_write"):
            fs(5 + nw); nw += 1
        if step and (i + 1) % step == 0: emit_pk()
    while pk: emit_pk()
    e("s_waitcnt lgkmcnt(0)")
    fs(11)
def guarded():
    out = [dma_packet(g, j) for g, j in ALLP[:7]]
    sk = newlab("gd")
    out.append([f"s_cmp_eq_u32 s{sDM}, 0", f"s_cbranch_scc1 {sk}"] + dma_packet(1, 3) + [sk + ":"])
    return out
def norm(k, prep, nextk):
    cm(f"======== norm {k}")
    if (OPT["fine"] == 7 and k >= 2) or (OPT["fine"] == 6 and k < 2): stamp(1, True)
    if OPT["nm"] & 6: e("s_setprio 2")
    norm_reads(2)
    late = (OPT["nm"] & 1) and (k == 2 or (k == 3 and not OPT["nm"] & 4))
    if not late: prep()
    if OPT["nm"] & 6: e("s_setprio 0")
    e(f"v_add_u32 v{vT0}, {XB[k]}, v{vXW}")
    call("L_normd" if k < 2 else "L_norm")
    if late: prep()
    if nextk is not None:
        for i in range(3 if nextk < 4 else 2): zero16(vACC + 16 * i)
        conv_addr(nextk)
    if (OPT["fine"] == 7 and k >= 2) or (OPT["fine"] == 6 and k < 2): stamp(12, True)

def load_cw():
    for q in range(6):
        for i in range(5):
            e(f"ds_read_b64_tr_b16 {vr(vCW+12*q+2+2*i,2)}, v{vS} offset:{960*i + 8*q}")

def setup_conv(grp):
    e(f"v_and_b32 v{vT0}, 14, v0")
    e(f"v_mul_u32_u24 v{vRD}, {ROWP}, v{vT0}")
    e(f"v_and_b32 v{vT0}, 1, v0")
    e(f"v_mul_u32_u24 v{vT0}, 776, v{vT0}")
    e(f"v_add_u32 v{vRD}, v{vRD}, v{vT0}")
    e(f"v_bfe_u32 v{vT2}, v0, 4, 1")
    e(f"v_mul_u32_u24 v{vT0}, {ROWP}, v{vT2}")
    e(f"v_bfe_u32 v{vT3}, v0, 5, 1")
    e(f"v_mul_u32_u24 v{vT1}, 384, v{vT3}")
    e(f"v_add3_u32 v{vIN}, v{vRD}, v{vT0}, v{vT1}")
    e(f"s_mul_i32 s{sT0}, s{sI4}, 48")
    e(f"v_add_u32 v{vIN}, s{sT0}, v{vIN}")
    e(f"v_mul_u32_u24 v{vT0}, 192, v{vT2}")
    e(f"v_lshl_add_u32 v{vPX}, v{vT3}, 4, v{vT0}")
    e(f"s_lshr_b32 s{sT0}, s{sI4}, 1")
    e(f"s_mul_i32 s{sT1}, s{sT0}, {ROWP}")
    e(f"s_and_b32 s{sT2}, s{sI4}, 1")
    e(f"s_mul_i32 s{sT3}, s{sT2}, 392")
    e(f"s_add_u32 s{sT1}, s{sT1}, s{sT3}")
    e(f"s_add_u32 s{sT1}, s{sT1}, {2*ROWP + 384}")
    e(f"v_add3_u32 v{vRD}, v{vRD}, v{vPX}, s{sT1}")
    e(f"v_mul_u32_u24 v{vT0}, 6144, v{vT3}")
    e(f"v_and_b32 v{vT2}, 31, v0")
    e(f"v_lshl_add_u32 v{vT0}, v{vT2}, 4, v{vT0}")
    e(f"s_mul_i32 s{sT0}, s{sI4}, 1536")
    e(f"v_add_u32 v{vXW}, s{sT0}, v{vT0}")
    e(f"s_mul_i32 s{sT0}, s{sI4}, 6144")
    e(f"v_add_u32 v{vPK}, s{sT0}, v{vLIN}")
    e(f"v_and_b32 v{vT2}, 3, v0")
    e(f"v_mul_u32_u24 v{vIDX}, 0x5555, v{vT2}")
    e(f"s_mov_b32 s{sFLG}, 0")

def setup_ffn():
    e(f"s_lshr_b32 s{sG}, s{sW}, 2")
    e(f"s_cmp_lt_u32 s{sI4}, 2")
    e(f"s_cselect_b32 s{sWS}, s96, s98")
    e(f"s_cselect_b32 s{sWS+1}, s97, s99")
    e(f"s_mov_b32 s{sWS+2}, 73728")
    e(f"s_mov_b32 s{sWS+3}, 0x20000")
    e(f"s_movk_i32 s{sWP}, 1024")
    e(f"s_cselect_b32 s{sWP}, 12288, s{sWP}")
    e(f"s_cselect_b32 s{sWJ}, 64, 6144")
    e(f"s_cselect_b32 s{sT0}, 768, 64")
    e(f"s_and_b32 s{sT1}, s{sI4}, 1")
    e(f"s_mul_i32 s{sWB}, s{sWP}, 3")
    e(f"s_mul_i32 s{sWB}, s{sWB}, s{sT1}")
    e(f"s_mul_i32 s{sI3K}, s{sI4}, 3072")
    e(f"v_bfe_u32 v{vT0}, v0, 2, 4")
    e(f"v_mul_u32_u24 v{vT0}, s{sT0}, v{vT0}")
    e(f"v_and_b32 v{vT2}, 3, v0")
    e(f"v_lshl_add_u32 v{vWO}, v{vT2}, 4, v{vT0}")
    e(f"s_mov_b32 s{sO+2}, {XBYTES}")
    e(f"s_mov_b32 s{sO+3}, 0x20000")
    e(f"v_and_b32 v{vT1}, 14, v0")
    e(f"s_mov_b32 s{sT3}, {ROWB}")
    e(f"v_mul_lo_u32 v{vT0}, v{vT1}, s{sT3}")
    e(f"v_and_b32 v{vT1}, 1, v0")
    e(f"v_mul_u32_u24 v{vT1}, 768, v{vT1}")
    e(f"v_add3_u32 v{vPX}, v{vPX}, v{vT0}, v{vT1}")
    e(f"s_lshr_b32 s{sT0}, s{sI4}, 1")
    e(f"s_mul_i32 s{sT0}, s{sT0}, {ROWB}")
    e(f"s_and_b32 s{sT2}, s{sI4}, 1")
    e(f"s_mul_i32 s{sT2}, s{sT2}, 384")
    e(f"s_add_u32 s{sT0}, s{sT0}, s{sT2}")
    e(f"s_cmp_eq_u32 s{sG}, 0")
    e(f"s_cselect_b32 s{sJ1}, s{sBASE}, s{sBASE+1}")
    e(f"s_cselect_b32 s{sJ2}, s{sBASE+2}, s{sBASE+3}")
    e(f"s_add_u32 s{sJ1}, s{sJ1}, s{sT0}")
    e(f"s_add_u32 s{sJ2}, s{sJ2}, s{sT0}")
    e(f"v_bfe_u32 v{vT0}, v0, 4, 1")
    e(f"v_lshlrev_b32 v{vT0}, 5, v{vT0}")
    e(f"v_and_b32 v{vT2}, 1, v0")
    e(f"v_lshl_add_u32 v{vT0}, v{vT2}, 4, v{vT0}")
    e(f"v_bfe_u32 v{vT2}, v0, 1, 1")
    e(f"v_lshl_add_u32 v{vT0}, v{vT2}, 3, v{vT0}")
    e(f"v_bfe_u32 v{vT2}, v0, 2, 2")
    e(f"v_bfe_u32 v{vT3}, v0, 5, 1")
    e(f"v_lshl_add_u32 v{vT2}, v{vT3}, 3, v{vT2}")
    e(f"v_lshl_add_u32 v{vA1}, v{vT2}, 6, v{vT0}")
    e(f"v_mul_u32_u24 v{vT2}, 192, v{vT2}")
    e(f"v_add_u32 v{vA2}, v{vT2}, v{vT0}")
    for r, v in ((sC0, C0), (sSC, SC)):
        e(f"s_mov_b32 s{r}, {hex(f2u(v))}")
        e(f"s_mov_b32 s{r+1}, {hex(f2u(v))}")

class Addr:
    def __init__(self): self.b = {vA1: 0, vA2: 0}
    def off(self, reg, slot, extra): return (slot - self.b[reg]) * SLOT + extra
    def ensure(self, reg, slot):
        if not (0 <= (slot - self.b[reg]) * SLOT and (slot - self.b[reg] + 1) * SLOT <= 65536):
            nb = {0: 0, 5: 1, 9: 7, 6: 6}.get(slot, slot)
            d = (nb - self.b[reg]) * SLOT
            if d > 0: e(f"v_add_u32 v{reg}, {d}, v{reg}")
            else: e(f"v_subrev_u32 v{reg}, {-d}, v{reg}")
            self.b[reg] = nb
AD = Addr()
def f1_reads(slot):
    AD.ensure(vA1, slot)
    return [f"ds_read_b64_tr_b16 {vr(vF1+4*s+2*t,2)}, v{vA1} offset:{AD.off(vA1, slot, (16*s+4*t)*64)}" for s in range(6) for t in range(2)]
def f2_reads(slot):
    AD.ensure(vA2, slot)
    return [f"ds_read_b64_tr_b16 {vr(vF2+12*s+4*T+2*t,2)}, v{vA2} offset:{AD.off(vA2, slot, 6144+(16*s+4*t)*192+64*T)}" for s in range(2) for T in range(3) for t in range(2)]
def g1(h, x):
    return [f"v_mfma_f32_32x32x16_bf16 {vr(h,16)}, {vr(vF1+4*s,4)}, {vr(x+4*s,4)}, {vr(h,16) if s else 0}" for s in range(6)]
def g2(zero=False):
    return [f"v_mfma_f32_32x32x16_bf16 {vr(vO+16*T,16)}, {vr(vF2+12*s+4*T,4)}, {vr(vY+4*s,4)}, {0 if (zero and s==0) else vr(vO+16*T,16)}" for s in range(2) for T in range(3)]
def cvts(lo, hi): return [f"v_cvt_pk_bf16_f32 v{vY+i}, v{vU+2*i}, v{vU+2*i+1}" for i in range(lo, hi)]
def pz(h):
    a = [f"v_pk_fma_f32 {vr(vT+2*i,2)}, {vr(h+2*i,2)}, {vr(h+2*i,2)}, {sr(sC0)}" for i in range(8)]
    b = [f"v_pk_mul_f32 {vr(vT+2*i,2)}, {vr(vT+2*i,2)}, {vr(h+2*i,2)} neg_lo:[1,0] neg_hi:[1,0]" for i in range(8)]
    return a + b
PEND = []
def pphase(ops, ds, nst=1):
    for r in ds: e(r)
    for i in range(nst):
        if PEND:
            p = PEND.pop(0)
            for x in (p if isinstance(p, list) else [p]): e(x)
    for o in ops: e(o)
def mphase(mf, fill):
    for i in range(6):
        if mf: e(mf[i])
        for o in fill[i]: e(o)
def res_unpack(src):
    for i in range(24):
        e(f"v_lshlrev_b32 v{vO+2*i}, 16, v{src+i}")
        e(f"v_and_b32 v{vO+2*i+1}, 0xffff0000, v{src+i}")
def out_pack(dst, sbase, mod):
    for i in range(24): e(f"v_cvt_pk_bf16_f32 v{dst+i}, v{vO+2*i}, v{vO+2*i+1}")
    if OPT["p64"]:
        for i in (0, 2, 4):
            for r in range(4): e(f"v_permlane16_swap_b32 v{dst+4*i+r}, v{dst+4*i+4+r}")
        for i in range(6):
            PEND.append(f"buffer_store_dwordx4 {vr(dst+4*i,4)}, v{vPS}, {sr(sO,4)}, s{sbase} offen offset:{32*(i&~1) + 192*(i&1)} {mod}")
    else:
        for i in range(6):
            PEND.append(f"buffer_store_dwordx4 {vr(dst+4*i,4)}, v{vPX}, {sr(sO,4)}, s{sbase} offen offset:{32*i} {mod}")
def hook(hooks, p, j):
    for f in hooks.get((p, j), []): f()
def ffn_prologue(steps, hooks):
    for r in f1_reads(steps[0][0]): e(r)
    hook(hooks, "pre", 0)
    e("s_waitcnt lgkmcnt(0)")
    for m in g1(vH[0], steps[0][1]): e(m)
    for r in f1_reads(steps[1][0]): e(r)
    hook(hooks, "pre2", 0)
    e("s_nop 3")
    for o in pz(vH[0]): e(o)
def ffn_step(steps, hooks, j, nst=1):
    N = len(steps)
    cm(f"ustep {j}")
    ex = [f"v_exp_f32 v{vT+i}, v{vT+i}" for i in range(16)]
    rc = [f"v_rcp_f32 v{vT+i}, v{vT+i}" for i in range(16)]
    c = cvts(0, 8) if j >= 1 else []
    hook(hooks, "m1", j)
    if j + 1 < N: e(f"s_waitcnt lgkmcnt({12 if j >= 1 else 0})")
    mphase(g1(vH[(j+1) & 1], steps[j+1][1]) if j + 1 < N else [],
           [ex[0:3], ex[3:6], ex[6:9], ex[9:12], ex[12:14] + c[0:2], ex[14:16] + c[2:4]])
    hook(hooks, "f1", j + 2)
    d = [f"v_pk_fma_f32 {vr(vT+2*i,2)}, {vr(vT+2*i,2)}, {sr(sSC)}, {sr(sSC)}" for i in range(8)]
    pphase(d, f1_reads(steps[j+2][0]) if j + 2 < N else [], nst)
    hook(hooks, "m2", j)
    if j >= 1: e(f"s_waitcnt lgkmcnt({12 if j + 2 < N else 0})")
    mphase(g2(steps[j-1][2]) if j >= 1 else [],
           [rc[0:2] + c[4:6], rc[2:4] + c[6:8], rc[4:7], rc[7:10], rc[10:13], rc[13:16]])
    h = vH[j & 1]
    y = [f"v_pk_mul_f32 {vr(vU+2*i,2)}, {vr(h+2*i,2)}, {vr(vT+2*i,2)}" for i in range(8)]
    hook(hooks, "f2", j)
    pphase(y + (pz(vH[(j+1) & 1]) if j + 1 < N else []), f2_reads(steps[j][0]), nst)
    hook(hooks, "post", j)
    if OPT["fine"] == 9 and j % 2 == 1 and j < 24: stamp(1 + j // 2, True)
def ffn_epilogue(steps):
    assert not PEND
    for o in cvts(0, 8): e(o)
    e("s_waitcnt lgkmcnt(0)")
    e("s_nop 0")
    for m in g2(steps[-1][2]): e(m)

e("s_cmp_ge_u32 s2, 256")
e("s_cbranch_scc1 L_end")
e(f"s_load_dwordx2 s[{sX}:{sX+1}], s[0:1], 0")
e("s_load_dwordx4 s[24:27], s[0:1], 8")
e("s_load_dwordx4 s[96:99], s[0:1], 24")
e(f"s_load_dwordx2 s[{sO}:{sO+1}], s[0:1], 40")
if OPT["stamp"]:
    e(f"s_load_dwordx2 s[{sDBG}:{sDBG+1}], s[0:1], 56")
    e(f"s_mov_b32 s{sDBG+2}, {1 << 20}")
    e(f"s_mov_b32 s{sDBG+3}, 0x20000")
    e(f"s_memrealtime s[{sTS+28}:{sTS+29}]")
    stamp(0)
if OPT["padat"] >= 0: e("s_memrealtime s[64:65]")
if OPT["cpf"]:
    e(f"s_getpc_b64 {sr(sPC)}")
    lab("L_pc")
    e(f"v_lshlrev_b32 v{vT0}, 7, v0")
    e(f"v_min_u32 v{vT0}, L_end-L_pc, v{vT0}")
    e(f"global_load_dword v255, v{vT0}, {sr(sPC)}")
e(f"s_mov_b32 s{sX+2}, {XBYTES}")
e(f"s_mov_b32 s{sX+3}, 0x20000")
e(f"v_lshrrev_b32 v{vT0}, 6, v0")
e(f"v_and_b32 v{vT1}, 63, v0")
e(f"v_readfirstlane_b32 s{sW}, v{vT0}")
e(f"v_lshlrev_b32 v{vLIN}, 4, v{vT1}")
e(f"s_lshr_b32 s{sCU}, s2, 3")
e(f"s_and_b32 s3, s2, 7")
e(f"s_mul_i32 s3, s3, 6")
e(f"s_and_b32 s{sI4}, s{sW}, 3")
e(f"s_lshl_b32 s{sI1K}, s{sI4}, 10")
e(f"v_mov_b32 v{vFL}, 0")
block_base(0)
e(f"s_cmp_ge_u32 s{sW}, 4")
e(f"s_cbranch_scc1 L_grpB")

def cw_addr():
    for i in range(7): e(f"v_pk_mov_b32 {vr(vCW+12*i,2)}, 0, 0")
    e(f"v_bfe_u32 v{vT0}, v0, 3, 3")
    e(f"v_and_b32 v{vT2}, 3, v0")
    e(f"v_sub_u32 v{vT0}, v{vT0}, v{vT2}")
    e(f"v_cmp_gt_u32 {sr(sT2)}, 5, v{vT0}")
    e(f"v_mul_u32_u24 v{vT0}, 192, v{vT0}")
    e(f"v_bfe_u32 v{vT2}, v0, 2, 1")
    e(f"s_movk_i32 s{sT0}, 5120")
    e(f"v_mad_u32_u24 v{vT0}, v{vT2}, s{sT0}, v{vT0}")
    e(f"v_mov_b32 v{vT2}, s{sT0}")
    e(f"v_cndmask_b32 v{vT0}, v{vT2}, v{vT0}, {sr(sT2)}")
    e(f"s_mul_i32 s{sT0}, s{sI4}, 48")
    e(f"s_add_u32 s{sT0}, s{sT0}, {DWS}")
    e(f"v_add_u32 v{vS}, s{sT0}, v{vT0}")
    for i in range(3): zero16(vACC + 16 * i)

e(f"v_subrev_u32 v{vT1}, 192, v{vLIN}")
e(f"s_movk_i32 s{sT0}, 576")
e(f"v_cmp_gt_u32 {sr(sT2)}, s{sT0}, v{vT1}")
e(f"s_cmp_eq_u32 s{sW}, 0")
e(f"s_cselect_b64 {sr(sT0)}, -1, 0")
e(f"v_cndmask_b32 v{vT1}, -1, v{vT1}, {sr(sT2)}")
e(f"v_cndmask_b32 v{vT1}, v{vT1}, v{vLIN}, {sr(sT0)}")
e("s_waitcnt lgkmcnt(0)")
e(f"s_mov_b32 s{sDS}, s26")
e(f"s_mov_b32 s{sDS+1}, s27")
e(f"s_movk_i32 s{sDS+2}, 4800")
e(f"s_mov_b32 s{sDS+3}, 0x20000")
e(f"s_add_u32 m0, s{sI1K}, {DWS}")
e(f"s_mul_i32 s{sT0}, s{sI4}, 576")
e(f"buffer_load_dwordx4 v{vLIN}, {sr(sDS,4)}, s{sI1K} offen lds")
e(f"s_mul_i32 s{sT1}, s{sI4}, 960")
e(f"s_sub_u32 s{sT0}, s{sT0}, 576")
e(f"s_add_u32 s{sT1}, s{sT1}, {DWL}")
e(f"s_cmp_eq_u32 s{sW}, 0")
e(f"s_cselect_b32 s{sDS}, s26, s24")
e(f"s_cselect_b32 s{sDS+1}, s27, s25")
e(f"s_cselect_b32 s{sDS+2}, s{sDS+2}, 1728")
e(f"s_cselect_b32 m0, {DWS + 4096}, s{sT1}")
e(f"s_cselect_b32 s{sT0}, 4096, s{sT0}")
e(f"buffer_load_dwordx4 v{vT1}, {sr(sDS,4)}, s{sT0} offen lds")
calc_rel([0, 1])
dma_prep(0, (0, 1))
n = dma_now([(g, j) for g in range(3) for j in (0, 1)], None)
stamp(1)
cw_addr()
e(f"v_add_u32 v{vSTA}, {STB[0]}, v{vLIN}")
e(f"s_waitcnt vmcnt({n})")
bar(2)
call("L_setup")
conv_addr(0)
calc_rel([2, 3])
e("s_waitcnt vmcnt(0) lgkmcnt(0)")
bar(3)
conv(0)
bar(4)
B3LO = [(0, 0), (0, 1), (0, 2), (0, 3), (1, 0), (1, 1), (1, 2)]
B3HI = [(1, 3), (2, 0), (2, 1), (2, 2), (2, 3)]
norm(0, lambda: (dma_prep(3), e(f"s_mov_b32 s{sDM}, 0")), 2)
e(f"s_mov_b32 s{sFLG}, 1")
bar(5)
conv(2)
e("s_waitcnt vmcnt(0)")
bar(6)
norm(2, lambda: dma_w([0]), 4)
bar(7)
conv(4)
e("s_waitcnt vmcnt(0)")
bar(8)
norm_reads(1)
e(f"v_add_u32 v{vT0}, {XB[4]}, v{vXW}")
norm_body(1, w_packets(1, 1) + w_packets(2, 2) + w_packets(3, 3))
e("s_branch L_ffn")
lab("L_setup")
load_cw(); setup_conv(0)
for k in (1, 2, 3, 4): block_base(k)
setup_ffn(); ret()
lab("L_core"); conv_core(2); ret()
lab("L_stats"); conv_stats(2); ret()
lab("L_normd"); norm_body(2, guarded()); ret()
lab("L_norm"); norm_body(2, []); ret()
lab("L_grpB")
calc_rel([2, 3])
dma_prep(0, (2, 3))
e("s_waitcnt lgkmcnt(0)")
n = dma_now([(g, j) for g in range(3) for j in (2, 3)], (2, 3))
stamp(1)
if OPT["wpf"]:
    sk = newlab("wpf")
    e(f"s_cmp_lg_u32 s{sW}, 7")
    e(f"s_cbranch_scc1 {sk}")
    e(f"s_cmp_ge_u32 s{sCU}, 18")
    e(f"s_cbranch_scc1 {sk}")
    e(f"s_cmp_lt_u32 s{sCU}, 9")
    e(f"s_cselect_b32 s{sT0}, s96, s98")
    e(f"s_cselect_b32 s{sT1}, s97, s99")
    e(f"s_cselect_b32 s{sT2}, 0, 9")
    e(f"s_sub_u32 s{sT2}, s{sCU}, s{sT2}")
    e(f"s_lshl_b32 s{sT2}, s{sT2}, 13")
    e(f"v_lshl_add_u32 v{vT0}, v{vLIN}, 3, s{sT2}")
    e(f"global_load_dword v{vS+7}, v{vT0}, {sr(sT0)}")
    lab(sk)
cw_addr()
e(f"v_pk_mov_b32 {vr(vCW+2,2)}, 0, 0")
sk = newlab("zr")
e(f"s_cmp_ge_u32 s{sI4}, 2")
e(f"s_cbranch_scc1 {sk}")
e(f"s_mul_i32 s{sT0}, s{sI4}, 3840")
e(f"s_add_u32 s{sT0}, s{sT0}, {DWL}")
e(f"v_add_u32 v{vT0}, s{sT0}, v{vLIN}")
e(f"ds_write_b128 v{vT0}, {vr(vCW,4)}")
lab(sk)
e(f"v_add_u32 v{vSTA}, {STB[1]}, v{vLIN}")
calc_rel([0, 1])
e("s_waitcnt lgkmcnt(0)")
bar(2)
call("L_setup")
conv_addr(1)
dma_prep(1)
n1 = dma_now(ALLP[:OPT["b1a"]], (2, 3))
e(f"s_waitcnt vmcnt({n1}) lgkmcnt(0)")
bar(3)
dma_now(ALLP[OPT["b1a"]:], (2, 3))
dma_prep(2)
n2 = dma_now(ALLP, (2, 3))
e(f"s_waitcnt vmcnt({n2})")
bar(4)
conv(1)
e("s_waitcnt vmcnt(0)")
bar(5)
n4 = [0]
def prep1():
    dma_prep(3, g0=False)
    e("s_barrier")
    dma_now(B3HI, (2, 3))
    dma_prep(4)
    e(f"s_cmp_lt_u32 s{sI4}, 2")
    e(f"s_cselect_b32 s{sDM}, 1, 0")
    n4[0] = 7
norm(1, prep1, 3)
e(f"s_waitcnt vmcnt({n4[0]})")
bar(6)
conv(3)
e("s_waitcnt vmcnt(0)")
bar(7)
norm(3, lambda: dma_w([4, 5]), None)
e("s_waitcnt vmcnt(0)")
bar(8)
pickup(3)
lab("L_ffn")
stamp(9)

steps24 = [(j, vX, False) for j in ORDER] + [(j, vXP, False) for j in ORDER]
steps30 = steps24 + [(12 + j, vX, j == 0) for j in range(6)]
hooks = {}
def addhook(p, j, f): hooks.setdefault((p, j), []).append(f)
addhook("pre2", 0, lambda: res_unpack(vRES1))
def h_ps():
    e(f"v_bfe_u32 v{vT0}, v0, 4, 1")
    e(f"v_mul_u32_u24 v{vT0}, 160, v{vT0}")
    e(f"v_sub_u32 v{vPS}, v{vPX}, v{vT0}")
addhook("pre", 0, h_ps)
def h_bar(n, more=()):
    def f():
        e(f"s_waitcnt vmcnt({n})")
        e("s_barrier")
        for m in more: PEND.extend(w_packets(*m))
    return f
PEND.extend(w_packets(9, 10))
addhook("f1", 3, h_bar(3, [(11, 6), (7, 8)]))
addhook("f1", 6, h_bar(0))
def setprio_b(p):
    sk = newlab("prio")
    e(f"s_cmp_lt_u32 s{sW}, 4")
    e(f"s_cbranch_scc1 {sk}")
    e(f"s_setprio {p}")
    lab(sk)
def h_out1():
    out_pack(vX, sJ1, OPT["st1"])
    res_unpack(vRES)
    stamp(10)
addhook("post", 12, h_out1)
P = OPT["prio"]
for j in range(0, 20):
    if j < OPT["pfix"]:
        if P and (j + 1) % P == 0: addhook("post", j, (lambda p: (lambda: setprio_b(p)))(((j + 1) // P) & 1))
    elif j == OPT["pfix"]: addhook("post", j, lambda: setprio_b(1))
ffn_prologue(steps24, hooks)
for j in range(20): ffn_step(steps24, hooks, j, 2 if j < 3 else 1)
e(f"s_cmp_ge_u32 s{sW}, 4")
e("s_cbranch_scc1 L_tailB")
save = dict(AD.b)
for j in range(20, 24): ffn_step(steps24, hooks, j)
ffn_epilogue(steps24)
e("s_nop 10")
out_pack(vXP, sJ2, OPT["st3"])
while PEND: e(PEND.pop(0))
stamp(11)
e("s_barrier"); e("s_barrier")
stamp(12)
e("s_branch L_fin")
lab("L_tailB")
AD.b = save
def h_x4():
    e(f"s_lshr_b32 s{sT0}, s{sI4}, 1")
    e(f"s_mul_i32 s{sT1}, s{sT0}, 6144")
    e(f"s_add_u32 s{sT1}, s{sT1}, {XB[4]}")
    e(f"v_add_u32 v{vT0}, s{sT1}, v{vLIN}")
    for s_ in range(6): e(f"ds_read_b128 {vr(vX+4*s_,4)}, v{vT0} offset:{1024*s_}")
    e(f"v_bfe_u32 v{vT1}, v{vTID}, 1, 3")
    e(f"s_mov_b32 s{sT1}, {ROWB}")
    e(f"v_mul_lo_u32 v{vT1}, v{vT1}, s{sT1}")
    e(f"v_sub_u32 v{vIN}, v{vPX}, v{vT1}")
    e(f"s_mul_i32 s{sT0}, s{sT0}, 384")
    e(f"s_add_u32 s{sT0}, s{sT0}, s{sBASE+4}")
    e(f"s_and_b32 s{sT1}, s{sI4}, 1")
    e(f"s_mul_i32 s{sT1}, s{sT1}, 96")
    e(f"s_add_u32 s{sSH}, s{sT0}, s{sT1}")
    for t in range(3):
        PEND.append(f"buffer_load_dwordx4 {vr(vRES+4*t,4)}, v{vIN}, {sr(sX,4)}, s{sSH} offen offset:{32*t}")
addhook("m2", 20, h_x4)
def rebase(reg):
    def f():
        e(f"s_and_b32 s{sT0}, s{sW}, 1")
        e(f"s_mul_i32 s{sT0}, s{sT0}, {6*SLOT}")
        e(f"s_sub_u32 s{sT0}, s{sT0}, {AD.b[reg]*SLOT}")
        e(f"v_add_u32 v{reg}, s{sT0}, v{reg}")
        AD.b[reg] = 12
    return f
addhook("f1", 24, rebase(vA1))
addhook("f2", 24, rebase(vA2))
addhook("post", 24, lambda: out_pack(vXP, sJ2, OPT["st2"]))
for j in range(20, 30): ffn_step(steps30, hooks, j)
ffn_epilogue(steps30)
stamp(11)
vQ = 112
vR = 144
e(f"s_mul_i32 s{sT0}, s{sI4}, 6144")
e(f"v_add_u32 v{vT0}, s{sT0}, v{vLIN}")
e(f"s_xor_b32 s{sT0}, s{sI4}, 1")
e(f"s_mul_i32 s{sT0}, s{sT0}, 6144")
e(f"v_add_u32 v{vT1}, s{sT0}, v{vLIN}")
e("s_waitcnt vmcnt(6)")
for i in range(12):
    e(f"v_lshlrev_b32 v{vQ+2*i}, 16, v{vRES+i}")
    e(f"v_and_b32 v{vQ+2*i+1}, 0xffff0000, v{vRES+i}")
e("s_barrier")
e(f"s_bitcmp1_b32 s{sI4}, 0")
e("s_cbranch_scc1 L_odd")
for half, lb in ((0, None), (1, "L_odd")):
    if lb: lab(lb)
    keep, send = vO + 24 * half, vO + 24 * (1 - half)
    for u in range(6): e(f"ds_write_b128 v{vT0}, {vr(send+4*u,4)} offset:{1024*u}")
    for i in range(12): e(f"v_pk_add_f32 {vr(vQ+2*i,2)}, {vr(vQ+2*i,2)}, {vr(keep+2*i,2)}")
    if half == 0: e("s_branch L_join")
lab("L_join")
e("s_waitcnt lgkmcnt(0)")
e("s_barrier")
stamp(12)
for u in range(6): e(f"ds_read_b128 {vr(vR+4*u,4)}, v{vT1} offset:{1024*u}")
for t in range(3):
    e(f"s_waitcnt lgkmcnt({4-2*t})")
    for i in range(4): e(f"v_pk_add_f32 {vr(vQ+8*t+2*i,2)}, {vr(vQ+8*t+2*i,2)}, {vr(vR+8*t+2*i,2)}")
    for i in range(4): e(f"v_cvt_pk_bf16_f32 v{vO+4*t+i}, v{vQ+8*t+2*i}, v{vQ+8*t+2*i+1}")
    e(f"buffer_store_dwordx4 {vr(vO+4*t,4)}, v{vIN}, {sr(sO,4)}, s{sSH} offen offset:{32*t} {OPT['st3']}")
lab("L_fin")
if OPT["stamp"]:
    e("s_waitcnt vmcnt(0)")
    stamp(13)
    e(f"s_memrealtime s[{sTS+30}:{sTS+31}]")
    e("s_waitcnt lgkmcnt(0)")
    e(f"s_lshl_b32 s{sT0}, s2, 3")
    e(f"s_add_u32 s{sT0}, s{sT0}, s{sW}")
    e(f"s_lshl_b32 s{sT0}, s{sT0}, 6")
    e(f"v_mov_b32 v{vT0}, 0")
    for i in range(16):
        e(f"v_mov_b32 v{vT1}, s{sTS+2*i}")
        e(f"buffer_store_dword v{vT1}, v{vT0}, {sr(sDBG,4)}, s{sT0} offen offset:{4*i}")
lab("L_end")
e("s_endpgm")

ref = open(f"cdna_kernels/{NAME}.s.ref").read().splitlines()
head = [l for l in ref if l.startswith(";") and "@launch" not in l]
out = "\n".join(head) + f"\n; @launch grid=(256,1,1) block=(512,1,1) lds={LDS_TOTAL}\n"
out += f""".amdgcn_target "amdgcn-amd-amdhsa--gfx950"
.text
.globl {NAME}_kernel
.p2align 8
.type {NAME}_kernel,@function
{NAME}_kernel:
""" + "\n".join(L) + f"""
.section .rodata,"a"
.p2align 6
.amdhsa_kernel {NAME}_kernel
  .amdhsa_next_free_vgpr 256
  .amdhsa_next_free_sgpr 102
  .amdhsa_accum_offset 256
  .amdhsa_group_segment_fixed_size 0
  .amdhsa_kernarg_size 64
  .amdhsa_user_sgpr_count 2
  .amdhsa_user_sgpr_kernarg_segment_ptr 1
  .amdhsa_system_sgpr_workgroup_id_x 1
.end_amdhsa_kernel
"""
open(sys.argv[1], "w").write(out)
```

```python
import sys, struct, math
NAME = "standalone__modern_conv_block_replknet__vision"
OPT = dict(stamp=0, fine=-1, pre=0, prio=2, pfix=11, st1="sc1", st2="sc1", cpf=1, wpf=1, gam=3, cp=1, b1a=6, nm=5, padat=-1, padt=2000, p64=1, st3="sc1", b4a=1, df=0, pat="")
for a in sys.argv[2:]:
    k, v = a.split("=")
    assert k in OPT, k
    OPT[k] = int(v) if v.lstrip("-").isdigit() else v.replace("+", " ")

def f2u(x): return struct.unpack("<I", struct.pack("<f", x))[0]
K0 = 2.0 * math.sqrt(2.0 / math.pi) * math.log2(math.e)
K1 = K0 * 0.044715
SC = K1 ** (1.0 / 3.0)
C0 = K0 / SC

L = []
def e(s): L.append("  " + s)
def lab(s): L.append(s + ":")
def cm(s): L.append("  ; " + s)
def vr(b, n): return f"v[{b}:{b+n-1}]"
def sr(b, n=2): return f"s[{b}:{b+n-1}]"

SLOT = 12288
SB = [47104, 116736, 0, 47104, 108544]
XB = [75776, 139264, 22528, 75776, 151552]
DWS = 106496
DWL = DWS + 5120
STB = [100352 + 4096 * (k & 1) for k in range(5)]
ROWP = 145 * 16
LDS_TOTAL = 163840
XBYTES = 384 * 384 * 192
ROWB = 384 * 192
ORDER = [0, 4, 5, 1, 2, 3, 9, 10, 11, 6, 7, 8]

sG = 3
sX, sO, sWS, sDS = 4, 8, 12, 20
sWB, sWP, sWJ = 16, 17, 18
sI4 = 19
sRET = 24
sFLG = 26
sDM = 27
sW = 28
sCU = 29
sT0, sT1, sT2, sT3 = 30, 31, 32, 33
sBASE = 34
sBFL = 39
sC0 = 44
sSC = 46
sDB, sDL = 48, 49
sSH = 50
sPC = 52
sJ1, sJ2 = 56, 57
sI1K = 58
sI3K = 59
sDBG = 60
sTS = 64
sWA, sWM = 100, 101

vTID = 0
vA1, vA2 = 1, 2
vPX = 3
vLIN = 4
vT0, vT1, vT2, vT3 = 5, 6, 7, 8
vIN = 9
vXW = 10
vWO = 11
vPK = 12
vIDX = 13
vFL = 14
vRD = 15
vPS = 14
vX = 16
vXP = 40
vO = 64
vH = [112, 128]
vT = 144
vU = 160
vY = 176
vF1 = 184
vF2 = 208
vRES = 232
vCW = 64
vREL = 138
vCA = 142
vSTA = 143
vACC = 144
vS = 192
vD = 200
vRES1 = 208

def stamp(i, fine=False):
    if OPT["fine"] >= 0 and not fine and 1 <= i <= 12: return
    if OPT["stamp"]:
        e(f"{'s_memtime' if OPT['stamp'] == 1 else 's_memrealtime'} s[{sTS+2*i}:{sTS+2*i+1}]")
def padpoint(i):
    if OPT["padat"] == i:
        lb = newlab("pad")
        lab(lb)
        e("s_sleep 2")
        e("s_memrealtime s[66:67]")
        e("s_waitcnt lgkmcnt(0)")
        e("s_sub_u32 s66, s66, s64")
        e(f"s_cmp_lt_u32 s66, {OPT['padt']}")
        e(f"s_cbranch_scc1 {lb}")
def bar(i=None):
    if i is not None and OPT["pre"]: stamp(i)
    e("s_barrier")
    if i is not None: padpoint(i)
    if i is not None and not OPT["pre"]: stamp(i)
uid = [0]
def newlab(p):
    uid[0] += 1
    return f"L_{p}_{uid[0]}"
def call(name): e(f"s_call_b64 {sr(sRET)}, {name}")
def ret(): e(f"s_setpc_b64 {sr(sRET)}")

class LQ:
    def __init__(self): self.q = []
    def op(self, s, tag=None):
        e(s); self.q.append(tag)
    def wait(self, tag):
        idx = [i for i, t in enumerate(self.q) if t == tag]
        if not idx: return
        n = len(self.q) - 1 - max(idx)
        e(f"s_waitcnt lgkmcnt({min(n, 14)})")
        self.q = self.q[max(idx) + 1:]

def block_base(k):
    if k == 0: t = sCU
    else:
        t = sT0
        if k < 4: e(f"s_add_u32 s{sT0}, s{sCU}, {32*k}")
        else:
            e(f"s_lshr_b32 s{sT0}, s{sCU}, 1")
            e(f"s_add_u32 s{sT0}, s{sT0}, 128")
    e(f"s_mul_i32 s{sT1}, s{t}, 171")
    e(f"s_lshr_b32 s{sT1}, s{sT1}, 10")
    e(f"s_mul_i32 s{sT2}, s{sT1}, 6")
    e(f"s_sub_u32 s{sT2}, s{t}, s{sT2}")
    e(f"s_add_u32 s{sT2}, s{sT2}, s3")
    e(f"s_mul_i32 s{sBASE+k}, s{sT1}, {16*ROWB}")
    e(f"s_mul_i32 s{sT3}, s{sT2}, {8*192}")
    e(f"s_add_u32 s{sBASE+k}, s{sBASE+k}, s{sT3}")
    if k == 4:
        e(f"s_and_b32 s{sT3}, s{sCU}, 1")
        e(f"s_mul_i32 s{sT3}, s{sT3}, {8*ROWB}")
        e(f"s_add_u32 s{sBASE+k}, s{sBASE+k}, s{sT3}")
    e(f"s_cmp_eq_u32 s{sT2}, 0")
    e(f"s_cselect_b32 s{sBFL+k}, 0, 8")
    e(f"s_cmp_eq_u32 s{sT2}, 47")
    e(f"s_cselect_b32 s{sBFL+k}, 4, s{sBFL+k}")

def calc_rel(js):
    e(f"s_mov_b32 s{sT0}, {ROWB - 145*16}")
    e(f"s_movk_i32 s{sT1}, 1338")
    for j in js:
        e(f"v_and_b32 v{vT0}, 255, v0")
        if j: e(f"v_add_u32 v{vT0}, {256*j}, v{vT0}")
        e(f"v_mul_u32_u24 v{vT2}, 7232, v{vT0}")
        e(f"v_lshrrev_b32 v{vT2}, 20, v{vT2}")
        e(f"v_mul_u32_u24 v{vT3}, 145, v{vT2}")
        e(f"v_sub_u32 v{vT3}, v{vT0}, v{vT3}")
        e(f"v_lshlrev_b32 v{vT0}, 4, v{vT0}")
        e(f"v_mad_u32_u24 v{vREL+j}, v{vT2}, s{sT0}, v{vT0}")
        e(f"v_mad_u32_u24 v{vT2}, v{vT3}, s{sT1}, s{sT1}")
        e(f"v_lshrrev_b32 v{vT2}, 16, v{vT2}")
        e(f"v_mad_i32_i24 v{vREL+j}, v{vT2}, -8, v{vREL+j}")
        e(f"v_subrev_u32 v{vT2}, 24, v{vT3}")
        e(f"v_lshrrev_b32 v{vT2}, 31, v{vT2}")
        e(f"v_lshl_or_b32 v{vFL}, v{vT2}, {j}, v{vFL}")
        e(f"v_sub_u32 v{vT2}, 120, v{vT3}")
        e(f"v_lshrrev_b32 v{vT2}, 31, v{vT2}")
        e(f"v_lshl_or_b32 v{vFL}, v{vT2}, {4+j}, v{vFL}")
for x in range(1024): assert (x * 7232) >> 20 == x // 145
for x in range(145): assert ((x + 1) * 1338) >> 16 == (x >= 48) + (x >= 97)

def dma_prep(k, js=(0, 1, 2, 3), g0=True):
    e(f"s_sub_u32 s{sDB}, s{sBASE+k}, {2*ROWB + 2*192}")
    e(f"s_add_u32 s{sDL}, s{sI1K}, {SB[k]}")
    e(f"v_lshrrev_b32 v{vT3}, s{sBFL+k}, v{vFL}")
    for j in js:
        e(f"v_bfe_i32 v{vD+j}, v{vT3}, {j}, 1")
        if g0:
            e(f"v_add_u32 v{vD+4+j}, s{sDB}, v{vREL+j}")
            e(f"v_or_b32 v{vD+4+j}, v{vD+4+j}, v{vD+j}")
        e(f"v_or_b32 v{vD+j}, v{vD+j}, v{vREL+j}")
def dma_packet(g, j):
    p = [f"s_add_u32 m0, s{sDL}, {7*g*ROWP + 4096*j}"]
    if g == 0: p += ["s_nop 0", f"buffer_load_dwordx4 v{vD+4+j}, {sr(sX,4)}, 0 offen lds"]
    else: p += [f"s_add_u32 s{sT1}, s{sDB}, {7*g*ROWB}", f"buffer_load_dwordx4 v{vD+j}, {sr(sX,4)}, s{sT1} offen lds"]
    return p
def dma_now(parts, last):
    n = 0
    for g, j in parts:
        sk = None
        if (g, j) == last:
            sk = newlab("sk")
            e(f"s_cmp_ge_u32 s{sI4}, 2")
            e(f"s_cbranch_scc1 {sk}")
        else: n += 1
        for x in dma_packet(g, j): e(x)
        if sk: lab(sk)
    return n
def set_mask(parts, last):
    m = sum(1 << (4 * g + j) for g, j in parts)
    if last in parts:
        e(f"s_cmp_ge_u32 s{sI4}, 2")
        e(f"s_movk_i32 s{sDM}, {m}")
        e(f"s_cselect_b32 s{sDM}, {m & ~(1 << (4*last[0] + last[1]))}, s{sDM}")
        return len(parts) - 1
    e(f"s_movk_i32 s{sDM}, {m}")
    return len(parts)
ALLP = [(g, j) for g in range(3) for j in range(4)]

def dma_w(slots):
    for j in slots:
        e(f"s_mul_i32 s{sT0}, s{sWJ}, {j}")
        e(f"s_add_u32 s{sT0}, s{sT0}, s{sWB}")
        for t in range(3):
            e(f"s_add_u32 m0, s{sI3K}, {j*SLOT + 1024*t}")
            if t: e(f"s_add_u32 s{sT0}, s{sT0}, s{sWP}")
            else: e("s_nop 0")
            e(f"buffer_load_dwordx4 v{vWO}, {sr(sWS,4)}, s{sT0} offen lds")
def w_packets(ja, jb):
    pk = []
    for t in range(3):
        p = []
        if t == 0:
            p += [f"s_mul_i32 s{sWA}, s{sG}, {jb - ja}", f"s_add_u32 s{sWA}, s{sWA}, {ja}",
                  f"s_mul_i32 s{sWM}, s{sWA}, {SLOT}", f"s_add_u32 s{sWM}, s{sWM}, s{sI3K}",
                  f"s_mul_i32 s{sWA}, s{sWA}, s{sWJ}", f"s_mov_b32 m0, s{sWM}", f"s_add_u32 s{sWA}, s{sWA}, s{sWB}"]
        else:
            p += [f"s_add_u32 m0, s{sWM}, {1024*t}", f"s_add_u32 s{sWA}, s{sWA}, s{sWP}"]
        p.append(f"buffer_load_dwordx4 v{vWO}, {sr(sWS,4)}, s{sWA} offen lds")
        pk.append(p)
    return pk

def zero16(a):
    z = vr(vCW, 2)
    e(f"v_mfma_f32_32x32x8_bf16 {vr(a,16)}, {z}, {z}, 0")
def pickup(k):
    e(f"v_add_u32 v{vT3}, {XB[k]}, v{vPK}")
    d = vX if k < 2 else vXP
    for s in range(6): e(f"ds_read_b128 {vr(d+4*s,4)}, v{vT3} offset:{1024*s}")
def conv_addr(k):
    if k < 4: e(f"v_add_u32 v{vCA}, {SB[k]}, v{vIN}")
    else:
        e(f"v_bfe_u32 v{vT1}, v{vTID}, 1, 3")
        e(f"v_mul_u32_u24 v{vT1}, {ROWP}, v{vT1}")
        e(f"v_sub_u32 v{vCA}, v{vIN}, v{vT1}")
        e(f"v_add_u32 v{vCA}, {SB[k]}, v{vCA}")

def conv_core(R):
    q = LQ()
    ring = [vXP, vXP + 8, vXP + 16] + ([vRES, vRES + 8, vRES + 16] if R == 2 else [vACC + 24, vACC + 32, vACC + 40])
    reads = []
    for qq in range(6):
        for f in range(3):
            for rp in range(4):
                d = ring[(qq * 3 + f) % 6] + 2 * rp
                reads.append((f"ds_read_b64 {vr(d,2)}, v{vCA} offset:{2*f*ROWP + (rp>>1)*776 + (rp&1)*192 + 8*qq}", qq * 3 + f))
    if OPT["cp"]: e("s_setprio 1")
    for r, t in reads[:14]: q.op(r, t)
    nxt = 14
    for idx in range(18):
        qq, f = divmod(idx, 3)
        q.wait(idx)
        for rho in range(R):
            a = vCW + 12 * qq + 4 * f + (2 if rho == 0 else 0)
            e(f"v_smfmac_f32_16x16x64_bf16 {vr(vACC + rho*24 + 4*qq, 4)}, {vr(a,4)}, {vr(ring[idx % 6], 8)}, v{vIDX}")
            lo, hi = (nxt + 2 * rho, nxt + 2 * rho + 2) if R == 2 else (nxt, nxt + 4)
            for r, t in reads[lo:hi]: q.op(r, t)
        nxt += 4
        if R == 2 and idx == OPT["gam"]:
            sk = newlab("gam")
            e(f"s_cmp_eq_u32 s{sFLG}, 0")
            e(f"s_cbranch_scc1 {sk}")
            e("s_barrier")
            lab(sk)
def conv_stats(R):
    e(f"v_add_u32 v{vT0}, s{sI1K}, v{vSTA}")
    for rho in range(R):
        a = vACC + rho * 24
        s2, q2 = vS + 4 * rho, vS + 4 * rho + 2
        e(f"v_pk_add_f32 {vr(s2,2)}, {vr(a,2)}, {vr(a+2,2)}")
        e(f"v_pk_mul_f32 {vr(q2,2)}, {vr(a,2)}, {vr(a,2)}")
        for i in range(1, 12):
            if i >= 2: e(f"v_pk_add_f32 {vr(s2,2)}, {vr(s2,2)}, {vr(a+2*i,2)}")
            e(f"v_pk_fma_f32 {vr(q2,2)}, {vr(a+2*i,2)}, {vr(a+2*i,2)}, {vr(q2,2)}")
    e(f"v_add_f32 v{vS}, v{vS}, v{vS+1}")
    e(f"v_add_f32 v{vS+1}, v{vS+2}, v{vS+3}")
    if R == 2:
        e(f"v_add_f32 v{vS+2}, v{vS+4}, v{vS+5}")
        e(f"v_add_f32 v{vS+3}, v{vS+6}, v{vS+7}")
    e(f"ds_write_b128 v{vT0}, {vr(vS,4)}")
    if OPT["cp"]: e("s_setprio 0")
    e("s_waitcnt lgkmcnt(0)")
def conv(k):
    cm(f"======== conv {k}")
    if k in (2, 3): pickup(k - 2)
    if k < 4:
        call("L_core")
        e(f"v_add_u32 v{vT3}, {SB[k]}, v{vRD}")
        d = vRES1 if k < 2 else vRES
        for i in range(12): e(f"ds_read_b64 {vr(d+2*i,2)}, v{vT3} offset:{32*(i>>1) + 8*(i&1)}")
        call("L_stats")
    else:
        conv_core(1)
        pickup(2)
        conv_stats(1)

def norm_reads(R):
    tb = vXP if R == 2 else vACC + 24
    for w in range(4): e(f"ds_read_b128 {vr(tb+4*w,4)}, v{vSTA} offset:{1024*w}")
def norm_body(R, packets):
    tb = vXP if R == 2 else vACC + 24
    ops = []
    o = ops.append
    for i in range(2 * R): o(f"v_add_f32 v{tb+i}, v{tb+i}, v{tb+4+i}")
    for i in range(2 * R): o(f"v_add_f32 v{tb+8+i}, v{tb+8+i}, v{tb+12+i}")
    for i in range(2 * R): o(f"v_add_f32 v{tb+i}, v{tb+i}, v{tb+8+i}")
    rr = range(R)
    sm = [tb + 2 * r for r in rr]; sq = [tb + 2 * r + 1 for r in rr]
    for r in rr: o(f"v_mul_f32 v{sm[r]}, {hex(f2u(1.0/96))}, v{sm[r]}")
    for r in rr: o(f"v_mul_f32 v{sq[r]}, {hex(f2u(1.0/96))}, v{sq[r]}")
    for r in rr: o(f"v_fma_f32 v{sq[r]}, -v{sm[r]}, v{sm[r]}, v{sq[r]}")
    for r in rr: o(f"v_max_f32 v{sq[r]}, 0, v{sq[r]}")
    for r in rr: o(f"v_add_f32 v{sq[r]}, {hex(f2u(1e-5))}, v{sq[r]}")
    for r in rr: o(f"v_rsq_f32 v{sq[r]}, v{sq[r]}")
    o("s_nop 0")
    for r in rr: o(f"v_mul_f32 v{sq[r]}, {hex(f2u(SC))}, v{sq[r]}")
    for r in rr: o(f"v_mul_f32 v{sm[r]}, v{sm[r]}, v{sq[r]}")
    for rho in rr:
        a = vACC + rho * 24
        for oc in range(3):
            for i in range(8): o(f"v_fma_f32 v{a+8*oc+i}, v{a+8*oc+i}, v{sq[rho]}, -v{sm[rho]}")
            for i in range(4): o(f"v_cvt_pk_bf16_f32 v{a+4*oc+i}, v{a+8*oc+2*i}, v{a+8*oc+2*i+1}")
            o(f"ds_write_b128 v{vT0}, {vr(a+4*oc,4)} offset:{rho*12288 + 512*oc}")
    pk = list(packets)
    if OPT["nm"] & 1:
        ops = [x for x in ops if not x.startswith("ds_write")] + [x for x in ops if x.startswith("ds_write")]
    if OPT["nm"] & 2:
        o2 = []
        for x in ops:
            o2 += ["s_setprio 2", x, "s_setprio 0"] if x.startswith("ds_write") else [x]
        ops = o2
        pk = [["s_setprio 2"] + p + ["s_setprio 0"] for p in pk]
    def emit_pk():
        if pk:
            for x in pk.pop(0): (lab(x[:-1]) if x.endswith(":") else e(x))
    fs = (lambda i: stamp(i, True)) if (OPT["fine"] == 7 and R == 2 and not pk) or (OPT["fine"] == 6 and R == 2 and pk) else (lambda i: None)
    fs(2)
    if not OPT["nm"] & 1:
        emit_pk(); emit_pk()
    e("s_waitcnt lgkmcnt(0)")
    fs(3)
    step = max(1, len(ops) // max(1, len(pk))) if pk and not OPT["nm"] & 1 else 0
    nw = 0
    for i, x in enumerate(ops):
        e(x)
        if i == 28: fs(4)
        if x.startswith("ds_write"):
            fs(5 + nw); nw += 1
        if step and (i + 1) % step == 0: emit_pk()
    while pk: emit_pk()
    e("s_waitcnt lgkmcnt(0)")
    fs(11)
def guarded():
    out = [dma_packet(g, j) for g, j in ALLP[:7]]
    sk = newlab("gd")
    out.append([f"s_cmp_eq_u32 s{sDM}, 0", f"s_cbranch_scc1 {sk}"] + dma_packet(1, 3) + [sk + ":"])
    return out
def norm(k, prep, nextk):
    cm(f"======== norm {k}")
    if (OPT["fine"] == 7 and k >= 2) or (OPT["fine"] == 6 and k < 2): stamp(1, True)
    if OPT["nm"] & 6: e("s_setprio 2")
    norm_reads(2)
    late = (OPT["nm"] & 1) and (k == 2 or (k == 3 and not OPT["nm"] & 4))
    if not late: prep()
    if OPT["nm"] & 6: e("s_setprio 0")
    e(f"v_add_u32 v{vT0}, {XB[k]}, v{vXW}")
    call("L_normd" if (k == 0 or (k == 1 and not OPT["b4a"])) else "L_norm")
    if late: prep()
    if nextk is not None:
        for i in range(3 if nextk < 4 else 2): zero16(vACC + 16 * i)
        conv_addr(nextk)
    if (OPT["fine"] == 7 and k >= 2) or (OPT["fine"] == 6 and k < 2): stamp(12, True)

def load_cw():
    for q in range(6):
        for i in range(5):
            e(f"ds_read_b64_tr_b16 {vr(vCW+12*q+2+2*i,2)}, v{vS} offset:{960*i + 8*q}")

def setup_conv(grp):
    e(f"v_and_b32 v{vT0}, 14, v0")
    e(f"v_mul_u32_u24 v{vRD}, {ROWP}, v{vT0}")
    e(f"v_and_b32 v{vT0}, 1, v0")
    e(f"v_mul_u32_u24 v{vT0}, 776, v{vT0}")
    e(f"v_add_u32 v{vRD}, v{vRD}, v{vT0}")
    e(f"v_bfe_u32 v{vT2}, v0, 4, 1")
    e(f"v_mul_u32_u24 v{vT0}, {ROWP}, v{vT2}")
    e(f"v_bfe_u32 v{vT3}, v0, 5, 1")
    e(f"v_mul_u32_u24 v{vT1}, 384, v{vT3}")
    e(f"v_add3_u32 v{vIN}, v{vRD}, v{vT0}, v{vT1}")
    e(f"s_mul_i32 s{sT0}, s{sI4}, 48")
    e(f"v_add_u32 v{vIN}, s{sT0}, v{vIN}")
    e(f"v_mul_u32_u24 v{vT0}, 192, v{vT2}")
    e(f"v_lshl_add_u32 v{vPX}, v{vT3}, 4, v{vT0}")
    e(f"s_lshr_b32 s{sT0}, s{sI4}, 1")
    e(f"s_mul_i32 s{sT1}, s{sT0}, {ROWP}")
    e(f"s_and_b32 s{sT2}, s{sI4}, 1")
    e(f"s_mul_i32 s{sT3}, s{sT2}, 392")
    e(f"s_add_u32 s{sT1}, s{sT1}, s{sT3}")
    e(f"s_add_u32 s{sT1}, s{sT1}, {2*ROWP + 384}")
    e(f"v_add3_u32 v{vRD}, v{vRD}, v{vPX}, s{sT1}")
    e(f"v_mul_u32_u24 v{vT0}, 6144, v{vT3}")
    e(f"v_and_b32 v{vT2}, 31, v0")
    e(f"v_lshl_add_u32 v{vT0}, v{vT2}, 4, v{vT0}")
    e(f"s_mul_i32 s{sT0}, s{sI4}, 1536")
    e(f"v_add_u32 v{vXW}, s{sT0}, v{vT0}")
    e(f"s_mul_i32 s{sT0}, s{sI4}, 6144")
    e(f"v_add_u32 v{vPK}, s{sT0}, v{vLIN}")
    e(f"v_and_b32 v{vT2}, 3, v0")
    e(f"v_mul_u32_u24 v{vIDX}, 0x5555, v{vT2}")
    e(f"s_mov_b32 s{sFLG}, 0")

def setup_ffn():
    e(f"s_lshr_b32 s{sG}, s{sW}, 2")
    e(f"s_cmp_lt_u32 s{sI4}, 2")
    e(f"s_cselect_b32 s{sWS}, s96, s98")
    e(f"s_cselect_b32 s{sWS+1}, s97, s99")
    e(f"s_mov_b32 s{sWS+2}, 73728")
    e(f"s_mov_b32 s{sWS+3}, 0x20000")
    e(f"s_movk_i32 s{sWP}, 1024")
    e(f"s_cselect_b32 s{sWP}, 12288, s{sWP}")
    e(f"s_cselect_b32 s{sWJ}, 64, 6144")
    e(f"s_cselect_b32 s{sT0}, 768, 64")
    e(f"s_and_b32 s{sT1}, s{sI4}, 1")
    e(f"s_mul_i32 s{sWB}, s{sWP}, 3")
    e(f"s_mul_i32 s{sWB}, s{sWB}, s{sT1}")
    e(f"s_mul_i32 s{sI3K}, s{sI4}, 3072")
    e(f"v_bfe_u32 v{vT0}, v0, 2, 4")
    e(f"v_mul_u32_u24 v{vT0}, s{sT0}, v{vT0}")
    e(f"v_and_b32 v{vT2}, 3, v0")
    e(f"v_lshl_add_u32 v{vWO}, v{vT2}, 4, v{vT0}")
    e(f"s_mov_b32 s{sO+2}, {XBYTES}")
    e(f"s_mov_b32 s{sO+3}, 0x20000")
    e(f"v_and_b32 v{vT1}, 14, v0")
    e(f"s_mov_b32 s{sT3}, {ROWB}")
    e(f"v_mul_lo_u32 v{vT0}, v{vT1}, s{sT3}")
    e(f"v_and_b32 v{vT1}, 1, v0")
    e(f"v_mul_u32_u24 v{vT1}, 768, v{vT1}")
    e(f"v_add3_u32 v{vPX}, v{vPX}, v{vT0}, v{vT1}")
    e(f"s_lshr_b32 s{sT0}, s{sI4}, 1")
    e(f"s_mul_i32 s{sT0}, s{sT0}, {ROWB}")
    e(f"s_and_b32 s{sT2}, s{sI4}, 1")
    e(f"s_mul_i32 s{sT2}, s{sT2}, 384")
    e(f"s_add_u32 s{sT0}, s{sT0}, s{sT2}")
    e(f"s_cmp_eq_u32 s{sG}, 0")
    e(f"s_cselect_b32 s{sJ1}, s{sBASE}, s{sBASE+1}")
    e(f"s_cselect_b32 s{sJ2}, s{sBASE+2}, s{sBASE+3}")
    e(f"s_add_u32 s{sJ1}, s{sJ1}, s{sT0}")
    e(f"s_add_u32 s{sJ2}, s{sJ2}, s{sT0}")
    e(f"v_bfe_u32 v{vT0}, v0, 4, 1")
    e(f"v_lshlrev_b32 v{vT0}, 5, v{vT0}")
    e(f"v_and_b32 v{vT2}, 1, v0")
    e(f"v_lshl_add_u32 v{vT0}, v{vT2}, 4, v{vT0}")
    e(f"v_bfe_u32 v{vT2}, v0, 1, 1")
    e(f"v_lshl_add_u32 v{vT0}, v{vT2}, 3, v{vT0}")
    e(f"v_bfe_u32 v{vT2}, v0, 2, 2")
    e(f"v_bfe_u32 v{vT3}, v0, 5, 1")
    e(f"v_lshl_add_u32 v{vT2}, v{vT3}, 3, v{vT2}")
    e(f"v_lshl_add_u32 v{vA1}, v{vT2}, 6, v{vT0}")
    e(f"v_mul_u32_u24 v{vT2}, 192, v{vT2}")
    e(f"v_add_u32 v{vA2}, v{vT2}, v{vT0}")
    for r, v in ((sC0, C0), (sSC, SC)):
        e(f"s_mov_b32 s{r}, {hex(f2u(v))}")
        e(f"s_mov_b32 s{r+1}, {hex(f2u(v))}")

class Addr:
    def __init__(self): self.b = {vA1: 0, vA2: 0}
    def off(self, reg, slot, extra): return (slot - self.b[reg]) * SLOT + extra
    def ensure(self, reg, slot):
        if not (0 <= (slot - self.b[reg]) * SLOT and (slot - self.b[reg] + 1) * SLOT <= 65536):
            nb = {0: 0, 5: 1, 9: 7, 6: 6}.get(slot, slot)
            d = (nb - self.b[reg]) * SLOT
            if d > 0: e(f"v_add_u32 v{reg}, {d}, v{reg}")
            else: e(f"v_subrev_u32 v{reg}, {-d}, v{reg}")
            self.b[reg] = nb
AD = Addr()
def f1_reads(slot):
    AD.ensure(vA1, slot)
    return [f"ds_read_b64_tr_b16 {vr(vF1+4*s+2*t,2)}, v{vA1} offset:{AD.off(vA1, slot, (16*s+4*t)*64)}" for s in range(6) for t in range(2)]
def f2_reads(slot):
    AD.ensure(vA2, slot)
    return [f"ds_read_b64_tr_b16 {vr(vF2+12*s+4*T+2*t,2)}, v{vA2} offset:{AD.off(vA2, slot, 6144+(16*s+4*t)*192+64*T)}" for s in range(2) for T in range(3) for t in range(2)]
def g1(h, x):
    return [f"v_mfma_f32_32x32x16_bf16 {vr(h,16)}, {vr(vF1+4*s,4)}, {vr(x+4*s,4)}, {vr(h,16) if s else 0}" for s in range(6)]
def g2(zero=False):
    return [f"v_mfma_f32_32x32x16_bf16 {vr(vO+16*T,16)}, {vr(vF2+12*s+4*T,4)}, {vr(vY+4*s,4)}, {0 if (zero and s==0) else vr(vO+16*T,16)}" for s in range(2) for T in range(3)]
def cvts(lo, hi): return [f"v_cvt_pk_bf16_f32 v{vY+i}, v{vU+2*i}, v{vU+2*i+1}" for i in range(lo, hi)]
def pz(h):
    a = [f"v_pk_fma_f32 {vr(vT+2*i,2)}, {vr(h+2*i,2)}, {vr(h+2*i,2)}, {sr(sC0)}" for i in range(8)]
    b = [f"v_pk_mul_f32 {vr(vT+2*i,2)}, {vr(vT+2*i,2)}, {vr(h+2*i,2)} neg_lo:[1,0] neg_hi:[1,0]" for i in range(8)]
    return a + b
PEND = []
def pphase(ops, ds, nst=1):
    for r in ds: e(r)
    for i in range(nst):
        if PEND:
            p = PEND.pop(0)
            for x in (p if isinstance(p, list) else [p]): e(x)
    for o in ops: e(o)
def mphase(mf, fill):
    for i in range(6):
        if mf: e(mf[i])
        for o in fill[i]: e(o)
def res_unpack(src):
    for i in range(24):
        e(f"v_lshlrev_b32 v{vO+2*i}, 16, v{src+i}")
        e(f"v_and_b32 v{vO+2*i+1}, 0xffff0000, v{src+i}")
def out_pack(dst, sbase, mod):
    for i in range(24): e(f"v_cvt_pk_bf16_f32 v{dst+i}, v{vO+2*i}, v{vO+2*i+1}")
    if OPT["p64"]:
        for i in (0, 2, 4):
            for r in range(4): e(f"v_permlane16_swap_b32 v{dst+4*i+r}, v{dst+4*i+4+r}")
        for i in range(6):
            PEND.append(f"buffer_store_dwordx4 {vr(dst+4*i,4)}, v{vPS}, {sr(sO,4)}, s{sbase} offen offset:{32*(i&~1) + 192*(i&1)} {mod}")
    else:
        for i in range(6):
            PEND.append(f"buffer_store_dwordx4 {vr(dst+4*i,4)}, v{vPX}, {sr(sO,4)}, s{sbase} offen offset:{32*i} {mod}")
def hook(hooks, p, j):
    for f in hooks.get((p, j), []): f()
def ffn_prologue(steps, hooks):
    for r in f1_reads(steps[0][0]): e(r)
    hook(hooks, "pre", 0)
    e("s_waitcnt lgkmcnt(0)")
    for m in g1(vH[0], steps[0][1]): e(m)
    for r in f1_reads(steps[1][0]): e(r)
    hook(hooks, "pre2", 0)
    e("s_nop 3")
    for o in pz(vH[0]): e(o)
def ffn_step(steps, hooks, j, nst=1):
    N = len(steps)
    cm(f"ustep {j}")
    ex = [f"v_exp_f32 v{vT+i}, v{vT+i}" for i in range(16)]
    rc = [f"v_rcp_f32 v{vT+i}, v{vT+i}" for i in range(16)]
    c = cvts(0, 8) if j >= 1 else []
    hook(hooks, "m1", j)
    if j + 1 < N: e(f"s_waitcnt lgkmcnt({12 if j >= 1 else 0})")
    mphase(g1(vH[(j+1) & 1], steps[j+1][1]) if j + 1 < N else [],
           [ex[0:3], ex[3:6], ex[6:9], ex[9:12], ex[12:14] + c[0:2], ex[14:16] + c[2:4]])
    hook(hooks, "f1", j + 2)
    d = [f"v_pk_fma_f32 {vr(vT+2*i,2)}, {vr(vT+2*i,2)}, {sr(sSC)}, {sr(sSC)}" for i in range(8)]
    nf = OPT["df"]
    d = [f"v_fma_f32 v{vT+i}, v{vT+i}, s{sSC}, s{sSC}" for i in range(2 * nf)] + d[nf:]
    pphase(d, f1_reads(steps[j+2][0]) if j + 2 < N else [], nst)
    hook(hooks, "m2", j)
    if j >= 1: e(f"s_waitcnt lgkmcnt({12 if j + 2 < N else 0})")
    mphase(g2(steps[j-1][2]) if j >= 1 else [],
           [rc[0:2] + c[4:6], rc[2:4] + c[6:8], rc[4:7], rc[7:10], rc[10:13], rc[13:16]])
    h = vH[j & 1]
    y = [f"v_pk_mul_f32 {vr(vU+2*i,2)}, {vr(h+2*i,2)}, {vr(vT+2*i,2)}" for i in range(8)]
    y = [f"v_mul_f32 v{vU+i}, v{h+i}, v{vT+i}" for i in range(2 * nf)] + y[nf:]
    hook(hooks, "f2", j)
    pphase(y + (pz(vH[(j+1) & 1]) if j + 1 < N else []), f2_reads(steps[j][0]), nst)
    hook(hooks, "post", j)
    if OPT["fine"] == 9 and j % 2 == 1 and j < 24: stamp(1 + j // 2, True)
def ffn_epilogue(steps):
    assert not PEND
    for o in cvts(0, 8): e(o)
    e("s_waitcnt lgkmcnt(0)")
    e("s_nop 0")
    for m in g2(steps[-1][2]): e(m)

e("s_cmp_ge_u32 s2, 256")
e("s_cbranch_scc1 L_end")
e(f"s_load_dwordx2 s[{sX}:{sX+1}], s[0:1], 0")
e("s_load_dwordx4 s[24:27], s[0:1], 8")
e("s_load_dwordx4 s[96:99], s[0:1], 24")
e(f"s_load_dwordx2 s[{sO}:{sO+1}], s[0:1], 40")
if OPT["stamp"]:
    e(f"s_load_dwordx2 s[{sDBG}:{sDBG+1}], s[0:1], 56")
    e(f"s_mov_b32 s{sDBG+2}, {1 << 20}")
    e(f"s_mov_b32 s{sDBG+3}, 0x20000")
    e(f"s_memrealtime s[{sTS+28}:{sTS+29}]")
    stamp(0)
if OPT["padat"] >= 0: e("s_memrealtime s[64:65]")
if OPT["cpf"]:
    e(f"s_getpc_b64 {sr(sPC)}")
    lab("L_pc")
    e(f"v_lshlrev_b32 v{vT0}, 7, v0")
    e(f"v_min_u32 v{vT0}, L_end-L_pc, v{vT0}")
    e(f"global_load_dword v255, v{vT0}, {sr(sPC)}")
e(f"s_mov_b32 s{sX+2}, {XBYTES}")
e(f"s_mov_b32 s{sX+3}, 0x20000")
e(f"v_lshrrev_b32 v{vT0}, 6, v0")
e(f"v_and_b32 v{vT1}, 63, v0")
e(f"v_readfirstlane_b32 s{sW}, v{vT0}")
e(f"v_lshlrev_b32 v{vLIN}, 4, v{vT1}")
e(f"s_lshr_b32 s{sCU}, s2, 3")
e(f"s_and_b32 s3, s2, 7")
e(f"s_mul_i32 s3, s3, 6")
e(f"s_and_b32 s{sI4}, s{sW}, 3")
e(f"s_lshl_b32 s{sI1K}, s{sI4}, 10")
e(f"v_mov_b32 v{vFL}, 0")
block_base(0)
e(f"s_cmp_ge_u32 s{sW}, 4")
e(f"s_cbranch_scc1 L_grpB")

def cw_addr():
    for i in range(7): e(f"v_pk_mov_b32 {vr(vCW+12*i,2)}, 0, 0")
    e(f"v_bfe_u32 v{vT0}, v0, 3, 3")
    e(f"v_and_b32 v{vT2}, 3, v0")
    e(f"v_sub_u32 v{vT0}, v{vT0}, v{vT2}")
    e(f"v_cmp_gt_u32 {sr(sT2)}, 5, v{vT0}")
    e(f"v_mul_u32_u24 v{vT0}, 192, v{vT0}")
    e(f"v_bfe_u32 v{vT2}, v0, 2, 1")
    e(f"s_movk_i32 s{sT0}, 5120")
    e(f"v_mad_u32_u24 v{vT0}, v{vT2}, s{sT0}, v{vT0}")
    e(f"v_mov_b32 v{vT2}, s{sT0}")
    e(f"v_cndmask_b32 v{vT0}, v{vT2}, v{vT0}, {sr(sT2)}")
    e(f"s_mul_i32 s{sT0}, s{sI4}, 48")
    e(f"s_add_u32 s{sT0}, s{sT0}, {DWS}")
    e(f"v_add_u32 v{vS}, s{sT0}, v{vT0}")
    for i in range(3): zero16(vACC + 16 * i)

e(f"v_subrev_u32 v{vT1}, 192, v{vLIN}")
e(f"s_movk_i32 s{sT0}, 576")
e(f"v_cmp_gt_u32 {sr(sT2)}, s{sT0}, v{vT1}")
e(f"s_cmp_eq_u32 s{sW}, 0")
e(f"s_cselect_b64 {sr(sT0)}, -1, 0")
e(f"v_cndmask_b32 v{vT1}, -1, v{vT1}, {sr(sT2)}")
e(f"v_cndmask_b32 v{vT1}, v{vT1}, v{vLIN}, {sr(sT0)}")
calc_rel([0, 1])
dma_prep(0, (0, 1))
e("s_waitcnt lgkmcnt(0)")
e(f"s_mov_b32 s{sDS}, s26")
e(f"s_mov_b32 s{sDS+1}, s27")
e(f"s_movk_i32 s{sDS+2}, 4800")
e(f"s_mov_b32 s{sDS+3}, 0x20000")
e(f"s_add_u32 m0, s{sI1K}, {DWS}")
e(f"s_mul_i32 s{sT0}, s{sI4}, 576")
e(f"buffer_load_dwordx4 v{vLIN}, {sr(sDS,4)}, s{sI1K} offen lds")
e(f"s_mul_i32 s{sT1}, s{sI4}, 960")
e(f"s_sub_u32 s{sT0}, s{sT0}, 576")
e(f"s_add_u32 s{sT1}, s{sT1}, {DWL}")
e(f"s_cmp_eq_u32 s{sW}, 0")
e(f"s_cselect_b32 s{sDS}, s26, s24")
e(f"s_cselect_b32 s{sDS+1}, s27, s25")
e(f"s_cselect_b32 s{sDS+2}, s{sDS+2}, 1728")
e(f"s_cselect_b32 m0, {DWS + 4096}, s{sT1}")
e(f"s_cselect_b32 s{sT0}, 4096, s{sT0}")
e(f"buffer_load_dwordx4 v{vT1}, {sr(sDS,4)}, s{sT0} offen lds")
n = dma_now([(g, j) for g in range(3) for j in (0, 1)], None)
stamp(1)
cw_addr()
e(f"v_add_u32 v{vSTA}, {STB[0]}, v{vLIN}")
e(f"s_waitcnt vmcnt({n})")
bar(2)
call("L_setup")
conv_addr(0)
calc_rel([2, 3])
e("s_waitcnt vmcnt(0) lgkmcnt(0)")
bar(3)
conv(0)
bar(4)
B3LO = [(0, 0), (0, 1), (0, 2), (0, 3), (1, 0), (1, 1), (1, 2)]
B3HI = [(1, 3), (2, 0), (2, 1), (2, 2), (2, 3)]
norm(0, lambda: (dma_prep(3), e(f"s_mov_b32 s{sDM}, 0")), 2)
e(f"s_mov_b32 s{sFLG}, 1")
bar(5)
conv(2)
if OPT["b4a"]:
    dma_prep(4)
    n4 = dma_now(ALLP[:8], (1, 3))
    e(f"s_waitcnt vmcnt({n4})")
else: e("s_waitcnt vmcnt(0)")
bar(6)
norm(2, lambda: dma_w([0]), 4)
e("s_waitcnt vmcnt(3)")
bar(7)
conv(4)
e("s_waitcnt vmcnt(0)")
bar(8)
norm_reads(1)
e(f"v_add_u32 v{vT0}, {XB[4]}, v{vXW}")
norm_body(1, w_packets(1, 1) + w_packets(2, 2) + w_packets(3, 3))
e("s_branch L_ffn")
lab("L_setup")
load_cw(); setup_conv(0)
for k in (1, 2, 3, 4): block_base(k)
setup_ffn(); ret()
lab("L_core"); conv_core(2); ret()
lab("L_stats"); conv_stats(2); ret()
lab("L_normd"); norm_body(2, guarded()); ret()
lab("L_norm"); norm_body(2, []); ret()
lab("L_grpB")
calc_rel([2, 3])
dma_prep(0, (2, 3))
e("s_waitcnt lgkmcnt(0)")
n = dma_now([(g, j) for g in range(3) for j in (2, 3)], (2, 3))
stamp(1)
if OPT["wpf"]:
    sk = newlab("wpf")
    e(f"s_cmp_lg_u32 s{sW}, 7")
    e(f"s_cbranch_scc1 {sk}")
    e(f"s_cmp_ge_u32 s{sCU}, 18")
    e(f"s_cbranch_scc1 {sk}")
    e(f"s_cmp_lt_u32 s{sCU}, 9")
    e(f"s_cselect_b32 s{sT0}, s96, s98")
    e(f"s_cselect_b32 s{sT1}, s97, s99")
    e(f"s_cselect_b32 s{sT2}, 0, 9")
    e(f"s_sub_u32 s{sT2}, s{sCU}, s{sT2}")
    e(f"s_lshl_b32 s{sT2}, s{sT2}, 13")
    e(f"v_lshl_add_u32 v{vT0}, v{vLIN}, 3, s{sT2}")
    e(f"global_load_dword v{vS+7}, v{vT0}, {sr(sT0)}")
    lab(sk)
cw_addr()
e(f"v_pk_mov_b32 {vr(vCW+2,2)}, 0, 0")
sk = newlab("zr")
e(f"s_cmp_ge_u32 s{sI4}, 2")
e(f"s_cbranch_scc1 {sk}")
e(f"s_mul_i32 s{sT0}, s{sI4}, 3840")
e(f"s_add_u32 s{sT0}, s{sT0}, {DWL}")
e(f"v_add_u32 v{vT0}, s{sT0}, v{vLIN}")
e(f"ds_write_b128 v{vT0}, {vr(vCW,4)}")
lab(sk)
e(f"v_add_u32 v{vSTA}, {STB[1]}, v{vLIN}")
calc_rel([0, 1])
e("s_waitcnt lgkmcnt(0)")
bar(2)
call("L_setup")
conv_addr(1)
dma_prep(1)
n1 = dma_now(ALLP[:OPT["b1a"]], (2, 3))
e(f"s_waitcnt vmcnt({n1}) lgkmcnt(0)")
bar(3)
dma_now(ALLP[OPT["b1a"]:], (2, 3))
dma_prep(2)
n2 = dma_now(ALLP, (2, 3))
e(f"s_waitcnt vmcnt({n2})")
bar(4)
conv(1)
e("s_waitcnt vmcnt(0)")
bar(5)
n4 = [0]
def prep1():
    dma_prep(3, g0=False)
    e("s_barrier")
    dma_now(B3HI, (2, 3))
    if OPT["b4a"]: return
    dma_prep(4)
    e(f"s_cmp_lt_u32 s{sI4}, 2")
    e(f"s_cselect_b32 s{sDM}, 1, 0")
    n4[0] = 7
norm(1, prep1, 3)
e(f"s_waitcnt vmcnt({n4[0]})")
bar(6)
conv(3)
e("s_waitcnt vmcnt(0)")
bar(7)
norm(3, lambda: dma_w([4, 5]), None)
e("s_waitcnt vmcnt(0)")
bar(8)
pickup(3)
lab("L_ffn")
stamp(9)

steps24 = [(j, vX, False) for j in ORDER] + [(j, vXP, False) for j in ORDER]
steps30 = steps24 + [(12 + j, vX, j == 0) for j in range(6)]
hooks = {}
def addhook(p, j, f): hooks.setdefault((p, j), []).append(f)
addhook("pre2", 0, lambda: res_unpack(vRES1))
def h_ps():
    e(f"v_bfe_u32 v{vT0}, v0, 4, 1")
    e(f"v_mul_u32_u24 v{vT0}, 160, v{vT0}")
    e(f"v_sub_u32 v{vPS}, v{vPX}, v{vT0}")
addhook("pre", 0, h_ps)
def h_bar(n, more=()):
    def f():
        e(f"s_waitcnt vmcnt({n})")
        e("s_barrier")
        for m in more: PEND.extend(w_packets(*m))
    return f
PEND.extend(w_packets(9, 10))
addhook("f1", 3, h_bar(3, [(11, 6), (7, 8)]))
addhook("f1", 6, h_bar(0))
def setprio_b(p):
    sk = newlab("prio")
    e(f"s_cmp_lt_u32 s{sW}, 4")
    e(f"s_cbranch_scc1 {sk}")
    e(f"s_setprio {p}")
    lab(sk)
def h_out1():
    out_pack(vX, sJ1, OPT["st1"])
    res_unpack(vRES)
    stamp(10)
addhook("post", 12, h_out1)
P = OPT["prio"]
if OPT["pat"]:
    pat = OPT["pat"][1:]
    cur = "0"
    for j, ch in enumerate(pat):
        if ch != cur:
            addhook("m1", j, (lambda p: (lambda: setprio_b(p)))(int(ch))); cur = ch
else:
  for j in range(0, 20):
    if j < OPT["pfix"]:
        if P and (j + 1) % P == 0: addhook("post", j, (lambda p: (lambda: setprio_b(p)))(((j + 1) // P) & 1))
    elif j == OPT["pfix"]: addhook("post", j, lambda: setprio_b(1))
ffn_prologue(steps24, hooks)
for j in range(20): ffn_step(steps24, hooks, j, 2 if j < 3 else 1)
e(f"s_cmp_ge_u32 s{sW}, 4")
e("s_cbranch_scc1 L_tailB")
save = dict(AD.b)
for j in range(20, 24): ffn_step(steps24, hooks, j)
ffn_epilogue(steps24)
e("s_nop 10")
out_pack(vXP, sJ2, OPT["st3"])
while PEND: e(PEND.pop(0))
stamp(11)
e("s_barrier"); e("s_barrier")
stamp(12)
e("s_branch L_fin")
lab("L_tailB")
AD.b = save
def h_x4():
    e(f"s_lshr_b32 s{sT0}, s{sI4}, 1")
    e(f"s_mul_i32 s{sT1}, s{sT0}, 6144")
    e(f"s_add_u32 s{sT1}, s{sT1}, {XB[4]}")
    e(f"v_add_u32 v{vT0}, s{sT1}, v{vLIN}")
    for s_ in range(6): e(f"ds_read_b128 {vr(vX+4*s_,4)}, v{vT0} offset:{1024*s_}")
    e(f"v_bfe_u32 v{vT1}, v{vTID}, 1, 3")
    e(f"s_mov_b32 s{sT1}, {ROWB}")
    e(f"v_mul_lo_u32 v{vT1}, v{vT1}, s{sT1}")
    e(f"v_sub_u32 v{vIN}, v{vPX}, v{vT1}")
    e(f"s_mul_i32 s{sT0}, s{sT0}, 384")
    e(f"s_add_u32 s{sT0}, s{sT0}, s{sBASE+4}")
    e(f"s_and_b32 s{sT1}, s{sI4}, 1")
    e(f"s_mul_i32 s{sT1}, s{sT1}, 128")
    e(f"s_add_u32 s{sSH}, s{sT0}, s{sT1}")
    e(f"v_sub_u32 v{vRD}, v{vPS}, v{vT1}")
    for t in range(4):
        PEND.append(f"buffer_load_dwordx4 {vr(vRES+4*t,4)}, v{vIN}, {sr(sX,4)}, s{sSH} offen offset:{32*t}")
addhook("m2", 20, h_x4)
def rebase(reg):
    def f():
        e(f"s_and_b32 s{sT0}, s{sW}, 1")
        e(f"s_mul_i32 s{sT0}, s{sT0}, {6*SLOT}")
        e(f"s_sub_u32 s{sT0}, s{sT0}, {AD.b[reg]*SLOT}")
        e(f"v_add_u32 v{reg}, s{sT0}, v{reg}")
        AD.b[reg] = 12
    return f
addhook("f1", 24, rebase(vA1))
addhook("f2", 24, rebase(vA2))
addhook("post", 24, lambda: out_pack(vXP, sJ2, OPT["st2"]))
for j in range(20, 30): ffn_step(steps30, hooks, j)
ffn_epilogue(steps30)
stamp(11)
vQ = 112
vR = 144
e(f"s_mul_i32 s{sT0}, s{sI4}, 8192")
e(f"v_add_u32 v{vT0}, s{sT0}, v{vLIN}")
e(f"v_xor_b32 v{vT1}, 8192, v{vT0}")
e("s_waitcnt vmcnt(6)")
for i in range(16):
    e(f"v_lshlrev_b32 v{vQ+2*i}, 16, v{vRES+i}")
    e(f"v_and_b32 v{vQ+2*i+1}, 0xffff0000, v{vRES+i}")
e("s_barrier")
e(f"s_bitcmp1_b32 s{sI4}, 0")
e("s_cbranch_scc1 L_odd")
for half in range(2):
    if half: lab("L_odd")
    keep, nk, send, nsd = (vO, 32, vO + 32, 16) if half == 0 else (vO + 32, 16, vO, 32)
    for u in range(nsd // 4): e(f"ds_write_b128 v{vT0}, {vr(send+4*u,4)} offset:{1024*u}")
    for i in range(nk // 2): e(f"v_pk_add_f32 {vr(vQ+2*i,2)}, {vr(vQ+2*i,2)}, {vr(keep+2*i,2)}")
    e("s_waitcnt lgkmcnt(0)")
    e("s_barrier")
    stamp(12)
    for u in range(nk // 4): e(f"ds_read_b128 {vr(vR+4*u,4)}, v{vT1} offset:{1024*u}")
    for t in range(nk // 16):
        e(f"s_waitcnt lgkmcnt({nk // 4 - 4*(t+1)})")
        for i in range(8): e(f"v_pk_add_f32 {vr(vQ+16*t+2*i,2)}, {vr(vQ+16*t+2*i,2)}, {vr(vR+16*t+2*i,2)}")
        for i in range(8): e(f"v_cvt_pk_bf16_f32 v{vO+8*t+i}, v{vQ+16*t+2*i}, v{vQ+16*t+2*i+1}")
        e("s_nop 1")
        for r in range(4): e(f"v_permlane16_swap_b32 v{vO+8*t+r}, v{vO+8*t+4+r}")
        for i in range(2):
            e(f"buffer_store_dwordx4 {vr(vO+8*t+4*i,4)}, v{vRD}, {sr(sO,4)}, s{sSH} offen offset:{64*t + 192*i} {OPT['st3']}")
    if half == 0: e("s_branch L_fin")
lab("L_fin")
if OPT["stamp"]:
    e("s_waitcnt vmcnt(0)")
    stamp(13)
    e(f"s_memrealtime s[{sTS+30}:{sTS+31}]")
    e("s_waitcnt lgkmcnt(0)")
    e(f"s_lshl_b32 s{sT0}, s2, 3")
    e(f"s_add_u32 s{sT0}, s{sT0}, s{sW}")
    e(f"s_lshl_b32 s{sT0}, s{sT0}, 6")
    e(f"v_mov_b32 v{vT0}, 0")
    for i in range(16):
        e(f"v_mov_b32 v{vT1}, s{sTS+2*i}")
        e(f"buffer_store_dword v{vT1}, v{vT0}, {sr(sDBG,4)}, s{sT0} offen offset:{4*i}")
lab("L_end")
e("s_endpgm")

ref = open(f"cdna_kernels/{NAME}.s.ref").read().splitlines()
head = [l for l in ref if l.startswith(";") and "@launch" not in l]
out = "\n".join(head) + f"\n; @launch grid=(256,1,1) block=(512,1,1) lds={LDS_TOTAL}\n"
out += f""".amdgcn_target "amdgcn-amd-amdhsa--gfx950"
.text
.globl {NAME}_kernel
.p2align 8
.type {NAME}_kernel,@function
{NAME}_kernel:
""" + "\n".join(L) + f"""
.section .rodata,"a"
.p2align 6
.amdhsa_kernel {NAME}_kernel
  .amdhsa_next_free_vgpr 256
  .amdhsa_next_free_sgpr 102
  .amdhsa_accum_offset 256
  .amdhsa_group_segment_fixed_size 0
  .amdhsa_kernarg_size 64
  .amdhsa_user_sgpr_count 2
  .amdhsa_user_sgpr_kernarg_segment_ptr 1
  .amdhsa_system_sgpr_workgroup_id_x 1
.end_amdhsa_kernel
"""
open(sys.argv[1], "w").write(out)
```

```python
import sys, struct, math
NAME = "standalone__modern_conv_block_replknet__vision"
OPT = dict(stamp=0, fine=-1, pre=0, prio=2, pfix=11, st1="sc1", st2="sc1", cpf=1, wpf=1, gam=3, cp=1, b1a=6, nm=5, padat=-1, padt=2000, p64=1, st3="sc1", b4a=1, df=2, pat="", ba1=2, bb1=2, ba2=10, bb2=8, ks=4)
for a in sys.argv[2:]:
    k, v = a.split("=")
    assert k in OPT, k
    OPT[k] = int(v) if v.lstrip("-").isdigit() else v.replace("+", " ")

def f2u(x): return struct.unpack("<I", struct.pack("<f", x))[0]
K0 = 2.0 * math.sqrt(2.0 / math.pi) * math.log2(math.e)
K1 = K0 * 0.044715
SC = K1 ** (1.0 / 3.0)
C0 = K0 / SC

L = []
def e(s): L.append("  " + s)
def lab(s): L.append(s + ":")
def cm(s): L.append("  ; " + s)
def vr(b, n): return f"v[{b}:{b+n-1}]"
def sr(b, n=2): return f"s[{b}:{b+n-1}]"

SLOT = 12288
SB = [47104, 116736, 0, 47104, 108544]
XB = [75776, 139264, 22528, 75776, 151552]
DWS = 106496
DWL = DWS + 5120
STB = [100352 + 4096 * (k & 1) for k in range(5)]
ROWP = 145 * 16
LDS_TOTAL = 163840
XBYTES = 384 * 384 * 192
ROWB = 384 * 192
ORDER = [0, 4, 5, 1, 2, 3, 9, 10, 11, 6, 7, 8]

sG = 3
sX, sO, sWS, sDS = 4, 8, 12, 20
sWB, sWP, sWJ = 16, 17, 18
sI4 = 19
sRET = 24
sFLG = 26
sDM = 27
sW = 28
sCU = 29
sT0, sT1, sT2, sT3 = 30, 31, 32, 33
sBASE = 34
sBFL = 39
sC0 = 44
sSC = 46
sDB, sDL = 48, 49
sSH = 50
sPC = 52
sJ1, sJ2 = 56, 57
sI1K = 58
sI3K = 59
sDBG = 60
sTS = 64
sWA, sWM = 100, 101

vTID = 0
vA1, vA2 = 1, 2
vPX = 3
vLIN = 4
vT0, vT1, vT2, vT3 = 5, 6, 7, 8
vIN = 9
vXW = 10
vWO = 11
vPK = 12
vIDX = 13
vFL = 14
vRD = 15
vPS = 14
vX = 16
vXP = 40
vO = 64
vO2 = 112
vH = [160, 176]
vT = 192
vF1 = 208
vF2 = 232
vRES = 232
vCW = 64
vREL = 138
vCA = 142
vSTA = 143
vACC = 144
vS = 192
vD = 200
vRES1 = 208

def stamp(i, fine=False):
    if OPT["fine"] >= 0 and not fine and 1 <= i <= 12: return
    if OPT["stamp"]:
        e(f"{'s_memtime' if OPT['stamp'] == 1 else 's_memrealtime'} s[{sTS+2*i}:{sTS+2*i+1}]")
def padpoint(i):
    if OPT["padat"] == i:
        lb = newlab("pad")
        lab(lb)
        e("s_sleep 2")
        e("s_memrealtime s[66:67]")
        e("s_waitcnt lgkmcnt(0)")
        e("s_sub_u32 s66, s66, s64")
        e(f"s_cmp_lt_u32 s66, {OPT['padt']}")
        e(f"s_cbranch_scc1 {lb}")
def bar(i=None):
    if i is not None and OPT["pre"]: stamp(i)
    e("s_barrier")
    if i is not None: padpoint(i)
    if i is not None and not OPT["pre"]: stamp(i)
uid = [0]
def newlab(p):
    uid[0] += 1
    return f"L_{p}_{uid[0]}"
def call(name): e(f"s_call_b64 {sr(sRET)}, {name}")
def ret(): e(f"s_setpc_b64 {sr(sRET)}")

class LQ:
    def __init__(self): self.q = []
    def op(self, s, tag=None):
        e(s); self.q.append(tag)
    def wait(self, tag):
        idx = [i for i, t in enumerate(self.q) if t == tag]
        if not idx: return
        n = len(self.q) - 1 - max(idx)
        e(f"s_waitcnt lgkmcnt({min(n, 14)})")
        self.q = self.q[max(idx) + 1:]

def block_base(k):
    if k == 0: t = sCU
    else:
        t = sT0
        if k < 4: e(f"s_add_u32 s{sT0}, s{sCU}, {32*k}")
        else:
            e(f"s_lshr_b32 s{sT0}, s{sCU}, 1")
            e(f"s_add_u32 s{sT0}, s{sT0}, 128")
    e(f"s_mul_i32 s{sT1}, s{t}, 171")
    e(f"s_lshr_b32 s{sT1}, s{sT1}, 10")
    e(f"s_mul_i32 s{sT2}, s{sT1}, 6")
    e(f"s_sub_u32 s{sT2}, s{t}, s{sT2}")
    e(f"s_add_u32 s{sT2}, s{sT2}, s3")
    e(f"s_mul_i32 s{sBASE+k}, s{sT1}, {16*ROWB}")
    e(f"s_mul_i32 s{sT3}, s{sT2}, {8*192}")
    e(f"s_add_u32 s{sBASE+k}, s{sBASE+k}, s{sT3}")
    if k == 4:
        e(f"s_and_b32 s{sT3}, s{sCU}, 1")
        e(f"s_mul_i32 s{sT3}, s{sT3}, {8*ROWB}")
        e(f"s_add_u32 s{sBASE+k}, s{sBASE+k}, s{sT3}")
    e(f"s_cmp_eq_u32 s{sT2}, 0")
    e(f"s_cselect_b32 s{sBFL+k}, 0, 8")
    e(f"s_cmp_eq_u32 s{sT2}, 47")
    e(f"s_cselect_b32 s{sBFL+k}, 4, s{sBFL+k}")

def calc_rel(js):
    e(f"s_mov_b32 s{sT0}, {ROWB - 145*16}")
    e(f"s_movk_i32 s{sT1}, 1338")
    for j in js:
        e(f"v_and_b32 v{vT0}, 255, v0")
        if j: e(f"v_add_u32 v{vT0}, {256*j}, v{vT0}")
        e(f"v_mul_u32_u24 v{vT2}, 7232, v{vT0}")
        e(f"v_lshrrev_b32 v{vT2}, 20, v{vT2}")
        e(f"v_mul_u32_u24 v{vT3}, 145, v{vT2}")
        e(f"v_sub_u32 v{vT3}, v{vT0}, v{vT3}")
        e(f"v_lshlrev_b32 v{vT0}, 4, v{vT0}")
        e(f"v_mad_u32_u24 v{vREL+j}, v{vT2}, s{sT0}, v{vT0}")
        e(f"v_mad_u32_u24 v{vT2}, v{vT3}, s{sT1}, s{sT1}")
        e(f"v_lshrrev_b32 v{vT2}, 16, v{vT2}")
        e(f"v_mad_i32_i24 v{vREL+j}, v{vT2}, -8, v{vREL+j}")
        e(f"v_subrev_u32 v{vT2}, 24, v{vT3}")
        e(f"v_lshrrev_b32 v{vT2}, 31, v{vT2}")
        e(f"v_lshl_or_b32 v{vFL}, v{vT2}, {j}, v{vFL}")
        e(f"v_sub_u32 v{vT2}, 120, v{vT3}")
        e(f"v_lshrrev_b32 v{vT2}, 31, v{vT2}")
        e(f"v_lshl_or_b32 v{vFL}, v{vT2}, {4+j}, v{vFL}")
for x in range(1024): assert (x * 7232) >> 20 == x // 145
for x in range(145): assert ((x + 1) * 1338) >> 16 == (x >= 48) + (x >= 97)

def dma_prep(k, js=(0, 1, 2, 3), g0=True):
    e(f"s_sub_u32 s{sDB}, s{sBASE+k}, {2*ROWB + 2*192}")
    e(f"s_add_u32 s{sDL}, s{sI1K}, {SB[k]}")
    e(f"v_lshrrev_b32 v{vT3}, s{sBFL+k}, v{vFL}")
    for j in js:
        e(f"v_bfe_i32 v{vD+j}, v{vT3}, {j}, 1")
        if g0:
            e(f"v_add_u32 v{vD+4+j}, s{sDB}, v{vREL+j}")
            e(f"v_or_b32 v{vD+4+j}, v{vD+4+j}, v{vD+j}")
        e(f"v_or_b32 v{vD+j}, v{vD+j}, v{vREL+j}")
def dma_packet(g, j):
    p = [f"s_add_u32 m0, s{sDL}, {7*g*ROWP + 4096*j}"]
    if g == 0: p += ["s_nop 0", f"buffer_load_dwordx4 v{vD+4+j}, {sr(sX,4)}, 0 offen lds"]
    else: p += [f"s_add_u32 s{sT1}, s{sDB}, {7*g*ROWB}", f"buffer_load_dwordx4 v{vD+j}, {sr(sX,4)}, s{sT1} offen lds"]
    return p
def dma_now(parts, last):
    n = 0
    for g, j in parts:
        sk = None
        if (g, j) == last:
            sk = newlab("sk")
            e(f"s_cmp_ge_u32 s{sI4}, 2")
            e(f"s_cbranch_scc1 {sk}")
        else: n += 1
        for x in dma_packet(g, j): e(x)
        if sk: lab(sk)
    return n
def set_mask(parts, last):
    m = sum(1 << (4 * g + j) for g, j in parts)
    if last in parts:
        e(f"s_cmp_ge_u32 s{sI4}, 2")
        e(f"s_movk_i32 s{sDM}, {m}")
        e(f"s_cselect_b32 s{sDM}, {m & ~(1 << (4*last[0] + last[1]))}, s{sDM}")
        return len(parts) - 1
    e(f"s_movk_i32 s{sDM}, {m}")
    return len(parts)
ALLP = [(g, j) for g in range(3) for j in range(4)]

def dma_w(slots):
    for j in slots:
        e(f"s_mul_i32 s{sT0}, s{sWJ}, {j}")
        e(f"s_add_u32 s{sT0}, s{sT0}, s{sWB}")
        for t in range(3):
            e(f"s_add_u32 m0, s{sI3K}, {j*SLOT + 1024*t}")
            if t: e(f"s_add_u32 s{sT0}, s{sT0}, s{sWP}")
            else: e("s_nop 0")
            e(f"buffer_load_dwordx4 v{vWO}, {sr(sWS,4)}, s{sT0} offen lds")
def w_packets(ja, jb):
    pk = []
    for t in range(3):
        p = []
        if t == 0:
            p += [f"s_mul_i32 s{sWA}, s{sG}, {jb - ja}", f"s_add_u32 s{sWA}, s{sWA}, {ja}",
                  f"s_mul_i32 s{sWM}, s{sWA}, {SLOT}", f"s_add_u32 s{sWM}, s{sWM}, s{sI3K}",
                  f"s_mul_i32 s{sWA}, s{sWA}, s{sWJ}", f"s_mov_b32 m0, s{sWM}", f"s_add_u32 s{sWA}, s{sWA}, s{sWB}"]
        else:
            p += [f"s_add_u32 m0, s{sWM}, {1024*t}", f"s_add_u32 s{sWA}, s{sWA}, s{sWP}"]
        p.append(f"buffer_load_dwordx4 v{vWO}, {sr(sWS,4)}, s{sWA} offen lds")
        pk.append(p)
    return pk

def zero16(a):
    z = vr(vCW, 2)
    e(f"v_mfma_f32_32x32x8_bf16 {vr(a,16)}, {z}, {z}, 0")
def pickup(k):
    e(f"v_add_u32 v{vT3}, {XB[k]}, v{vPK}")
    d = vX if k < 2 else vXP
    for s in range(6): e(f"ds_read_b128 {vr(d+4*s,4)}, v{vT3} offset:{1024*s}")
def conv_addr(k):
    if k < 4: e(f"v_add_u32 v{vCA}, {SB[k]}, v{vIN}")
    else:
        e(f"v_bfe_u32 v{vT1}, v{vTID}, 1, 3")
        e(f"v_mul_u32_u24 v{vT1}, {ROWP}, v{vT1}")
        e(f"v_sub_u32 v{vCA}, v{vIN}, v{vT1}")
        e(f"v_add_u32 v{vCA}, {SB[k]}, v{vCA}")

def conv_core(R):
    q = LQ()
    ring = [vXP, vXP + 8, vXP + 16] + ([vRES, vRES + 8, vRES + 16] if R == 2 else [vACC + 24, vACC + 32, vACC + 40])
    reads = []
    for qq in range(6):
        for f in range(3):
            for rp in range(4):
                d = ring[(qq * 3 + f) % 6] + 2 * rp
                reads.append((f"ds_read_b64 {vr(d,2)}, v{vCA} offset:{2*f*ROWP + (rp>>1)*776 + (rp&1)*192 + 8*qq}", qq * 3 + f))
    if OPT["cp"]: e("s_setprio 1")
    for r, t in reads[:14]: q.op(r, t)
    nxt = 14
    for idx in range(18):
        qq, f = divmod(idx, 3)
        q.wait(idx)
        for rho in range(R):
            a = vCW + 12 * qq + 4 * f + (2 if rho == 0 else 0)
            e(f"v_smfmac_f32_16x16x64_bf16 {vr(vACC + rho*24 + 4*qq, 4)}, {vr(a,4)}, {vr(ring[idx % 6], 8)}, v{vIDX}")
            lo, hi = (nxt + 2 * rho, nxt + 2 * rho + 2) if R == 2 else (nxt, nxt + 4)
            for r, t in reads[lo:hi]: q.op(r, t)
        nxt += 4
        if R == 2 and idx == OPT["gam"]:
            sk = newlab("gam")
            e(f"s_cmp_eq_u32 s{sFLG}, 0")
            e(f"s_cbranch_scc1 {sk}")
            e("s_barrier")
            lab(sk)
def conv_stats(R):
    e(f"v_add_u32 v{vT0}, s{sI1K}, v{vSTA}")
    for rho in range(R):
        a = vACC + rho * 24
        s2, q2 = vS + 4 * rho, vS + 4 * rho + 2
        e(f"v_pk_add_f32 {vr(s2,2)}, {vr(a,2)}, {vr(a+2,2)}")
        e(f"v_pk_mul_f32 {vr(q2,2)}, {vr(a,2)}, {vr(a,2)}")
        for i in range(1, 12):
            if i >= 2: e(f"v_pk_add_f32 {vr(s2,2)}, {vr(s2,2)}, {vr(a+2*i,2)}")
            e(f"v_pk_fma_f32 {vr(q2,2)}, {vr(a+2*i,2)}, {vr(a+2*i,2)}, {vr(q2,2)}")
    e(f"v_add_f32 v{vS}, v{vS}, v{vS+1}")
    e(f"v_add_f32 v{vS+1}, v{vS+2}, v{vS+3}")
    if R == 2:
        e(f"v_add_f32 v{vS+2}, v{vS+4}, v{vS+5}")
        e(f"v_add_f32 v{vS+3}, v{vS+6}, v{vS+7}")
    e(f"ds_write_b128 v{vT0}, {vr(vS,4)}")
    if OPT["cp"]: e("s_setprio 0")
    e("s_waitcnt lgkmcnt(0)")
def conv(k):
    cm(f"======== conv {k}")
    if k in (2, 3): pickup(k - 2)
    if k < 4:
        call("L_core")
        e(f"v_add_u32 v{vT3}, {SB[k]}, v{vRD}")
        d = vRES1 if k < 2 else vRES
        for i in range(12): e(f"ds_read_b64 {vr(d+2*i,2)}, v{vT3} offset:{32*(i>>1) + 8*(i&1)}")
        call("L_stats")
    else:
        conv_core(1)
        pickup(2)
        conv_stats(1)

def norm_reads(R):
    tb = vXP if R == 2 else vACC + 24
    for w in range(4): e(f"ds_read_b128 {vr(tb+4*w,4)}, v{vSTA} offset:{1024*w}")
def norm_body(R, packets):
    tb = vXP if R == 2 else vACC + 24
    ops = []
    o = ops.append
    for i in range(2 * R): o(f"v_add_f32 v{tb+i}, v{tb+i}, v{tb+4+i}")
    for i in range(2 * R): o(f"v_add_f32 v{tb+8+i}, v{tb+8+i}, v{tb+12+i}")
    for i in range(2 * R): o(f"v_add_f32 v{tb+i}, v{tb+i}, v{tb+8+i}")
    rr = range(R)
    sm = [tb + 2 * r for r in rr]; sq = [tb + 2 * r + 1 for r in rr]
    for r in rr: o(f"v_mul_f32 v{sm[r]}, {hex(f2u(1.0/96))}, v{sm[r]}")
    for r in rr: o(f"v_mul_f32 v{sq[r]}, {hex(f2u(1.0/96))}, v{sq[r]}")
    for r in rr: o(f"v_fma_f32 v{sq[r]}, -v{sm[r]}, v{sm[r]}, v{sq[r]}")
    for r in rr: o(f"v_max_f32 v{sq[r]}, 0, v{sq[r]}")
    for r in rr: o(f"v_add_f32 v{sq[r]}, {hex(f2u(1e-5))}, v{sq[r]}")
    for r in rr: o(f"v_rsq_f32 v{sq[r]}, v{sq[r]}")
    o("s_nop 0")
    for r in rr: o(f"v_mul_f32 v{sq[r]}, {hex(f2u(SC))}, v{sq[r]}")
    for r in rr: o(f"v_mul_f32 v{sm[r]}, v{sm[r]}, v{sq[r]}")
    for rho in rr:
        a = vACC + rho * 24
        for oc in range(3):
            for i in range(8): o(f"v_fma_f32 v{a+8*oc+i}, v{a+8*oc+i}, v{sq[rho]}, -v{sm[rho]}")
            for i in range(4): o(f"v_cvt_pk_bf16_f32 v{a+4*oc+i}, v{a+8*oc+2*i}, v{a+8*oc+2*i+1}")
            o(f"ds_write_b128 v{vT0}, {vr(a+4*oc,4)} offset:{rho*12288 + 512*oc}")
    pk = list(packets)
    if OPT["nm"] & 1:
        ops = [x for x in ops if not x.startswith("ds_write")] + [x for x in ops if x.startswith("ds_write")]
    if OPT["nm"] & 2:
        o2 = []
        for x in ops:
            o2 += ["s_setprio 2", x, "s_setprio 0"] if x.startswith("ds_write") else [x]
        ops = o2
        pk = [["s_setprio 2"] + p + ["s_setprio 0"] for p in pk]
    def emit_pk():
        if pk:
            for x in pk.pop(0): (lab(x[:-1]) if x.endswith(":") else e(x))
    fs = (lambda i: stamp(i, True)) if (OPT["fine"] == 7 and R == 2 and not pk) or (OPT["fine"] == 6 and R == 2 and pk) else (lambda i: None)
    fs(2)
    if not OPT["nm"] & 1:
        emit_pk(); emit_pk()
    e("s_waitcnt lgkmcnt(0)")
    fs(3)
    step = max(1, len(ops) // max(1, len(pk))) if pk and not OPT["nm"] & 1 else 0
    nw = 0
    for i, x in enumerate(ops):
        e(x)
        if i == 28: fs(4)
        if x.startswith("ds_write"):
            fs(5 + nw); nw += 1
        if step and (i + 1) % step == 0: emit_pk()
    while pk: emit_pk()
    e("s_waitcnt lgkmcnt(0)")
    fs(11)
def guarded():
    out = [dma_packet(g, j) for g, j in ALLP[:7]]
    sk = newlab("gd")
    out.append([f"s_cmp_eq_u32 s{sDM}, 0", f"s_cbranch_scc1 {sk}"] + dma_packet(1, 3) + [sk + ":"])
    return out
def norm(k, prep, nextk):
    cm(f"======== norm {k}")
    if (OPT["fine"] == 7 and k >= 2) or (OPT["fine"] == 6 and k < 2): stamp(1, True)
    if OPT["nm"] & 6: e("s_setprio 2")
    norm_reads(2)
    late = (OPT["nm"] & 1) and (k == 2 or (k == 3 and not OPT["nm"] & 4))
    if not late: prep()
    if OPT["nm"] & 6: e("s_setprio 0")
    e(f"v_add_u32 v{vT0}, {XB[k]}, v{vXW}")
    call("L_normd" if (k == 0 or (k == 1 and not OPT["b4a"])) else "L_norm")
    if late: prep()
    if nextk is not None:
        for i in range(3 if nextk < 4 else 2): zero16(vACC + 16 * i)
        conv_addr(nextk)
    if (OPT["fine"] == 7 and k >= 2) or (OPT["fine"] == 6 and k < 2): stamp(12, True)

def load_cw():
    for q in range(6):
        for i in range(5):
            e(f"ds_read_b64_tr_b16 {vr(vCW+12*q+2+2*i,2)}, v{vS} offset:{960*i + 8*q}")

def setup_conv(grp):
    e(f"v_and_b32 v{vT0}, 14, v0")
    e(f"v_mul_u32_u24 v{vRD}, {ROWP}, v{vT0}")
    e(f"v_and_b32 v{vT0}, 1, v0")
    e(f"v_mul_u32_u24 v{vT0}, 776, v{vT0}")
    e(f"v_add_u32 v{vRD}, v{vRD}, v{vT0}")
    e(f"v_bfe_u32 v{vT2}, v0, 4, 1")
    e(f"v_mul_u32_u24 v{vT0}, {ROWP}, v{vT2}")
    e(f"v_bfe_u32 v{vT3}, v0, 5, 1")
    e(f"v_mul_u32_u24 v{vT1}, 384, v{vT3}")
    e(f"v_add3_u32 v{vIN}, v{vRD}, v{vT0}, v{vT1}")
    e(f"s_mul_i32 s{sT0}, s{sI4}, 48")
    e(f"v_add_u32 v{vIN}, s{sT0}, v{vIN}")
    e(f"v_mul_u32_u24 v{vT0}, 192, v{vT2}")
    e(f"v_lshl_add_u32 v{vPX}, v{vT3}, 4, v{vT0}")
    e(f"s_lshr_b32 s{sT0}, s{sI4}, 1")
    e(f"s_mul_i32 s{sT1}, s{sT0}, {ROWP}")
    e(f"s_and_b32 s{sT2}, s{sI4}, 1")
    e(f"s_mul_i32 s{sT3}, s{sT2}, 392")
    e(f"s_add_u32 s{sT1}, s{sT1}, s{sT3}")
    e(f"s_add_u32 s{sT1}, s{sT1}, {2*ROWP + 384}")
    e(f"v_add3_u32 v{vRD}, v{vRD}, v{vPX}, s{sT1}")
    e(f"v_mul_u32_u24 v{vT0}, 6144, v{vT3}")
    e(f"v_and_b32 v{vT2}, 31, v0")
    e(f"v_lshl_add_u32 v{vT0}, v{vT2}, 4, v{vT0}")
    e(f"s_mul_i32 s{sT0}, s{sI4}, 1536")
    e(f"v_add_u32 v{vXW}, s{sT0}, v{vT0}")
    e(f"s_mul_i32 s{sT0}, s{sI4}, 6144")
    e(f"v_add_u32 v{vPK}, s{sT0}, v{vLIN}")
    e(f"v_and_b32 v{vT2}, 3, v0")
    e(f"v_mul_u32_u24 v{vIDX}, 0x5555, v{vT2}")
    e(f"s_mov_b32 s{sFLG}, 0")

def setup_ffn():
    e(f"s_lshr_b32 s{sG}, s{sW}, 2")
    e(f"s_cmp_lt_u32 s{sI4}, 2")
    e(f"s_cselect_b32 s{sWS}, s96, s98")
    e(f"s_cselect_b32 s{sWS+1}, s97, s99")
    e(f"s_mov_b32 s{sWS+2}, 73728")
    e(f"s_mov_b32 s{sWS+3}, 0x20000")
    e(f"s_movk_i32 s{sWP}, 1024")
    e(f"s_cselect_b32 s{sWP}, 12288, s{sWP}")
    e(f"s_cselect_b32 s{sWJ}, 64, 6144")
    e(f"s_cselect_b32 s{sT0}, 768, 64")
    e(f"s_and_b32 s{sT1}, s{sI4}, 1")
    e(f"s_mul_i32 s{sWB}, s{sWP}, 3")
    e(f"s_mul_i32 s{sWB}, s{sWB}, s{sT1}")
    e(f"s_mul_i32 s{sI3K}, s{sI4}, 3072")
    e(f"v_bfe_u32 v{vT0}, v0, 2, 4")
    e(f"v_mul_u32_u24 v{vT0}, s{sT0}, v{vT0}")
    e(f"v_and_b32 v{vT2}, 3, v0")
    e(f"v_lshl_add_u32 v{vWO}, v{vT2}, 4, v{vT0}")
    e(f"s_mov_b32 s{sO+2}, {XBYTES}")
    e(f"s_mov_b32 s{sO+3}, 0x20000")
    e(f"v_and_b32 v{vT1}, 14, v0")
    e(f"s_mov_b32 s{sT3}, {ROWB}")
    e(f"v_mul_lo_u32 v{vT0}, v{vT1}, s{sT3}")
    e(f"v_and_b32 v{vT1}, 1, v0")
    e(f"v_mul_u32_u24 v{vT1}, 768, v{vT1}")
    e(f"v_add3_u32 v{vPX}, v{vPX}, v{vT0}, v{vT1}")
    e(f"s_lshr_b32 s{sT0}, s{sI4}, 1")
    e(f"s_mul_i32 s{sT0}, s{sT0}, {ROWB}")
    e(f"s_and_b32 s{sT2}, s{sI4}, 1")
    e(f"s_mul_i32 s{sT2}, s{sT2}, 384")
    e(f"s_add_u32 s{sT0}, s{sT0}, s{sT2}")
    e(f"s_cmp_eq_u32 s{sG}, 0")
    e(f"s_cselect_b32 s{sJ1}, s{sBASE}, s{sBASE+1}")
    e(f"s_cselect_b32 s{sJ2}, s{sBASE+2}, s{sBASE+3}")
    e(f"s_add_u32 s{sJ1}, s{sJ1}, s{sT0}")
    e(f"s_add_u32 s{sJ2}, s{sJ2}, s{sT0}")
    e(f"v_bfe_u32 v{vT0}, v0, 4, 1")
    e(f"v_lshlrev_b32 v{vT0}, 5, v{vT0}")
    e(f"v_and_b32 v{vT2}, 1, v0")
    e(f"v_lshl_add_u32 v{vT0}, v{vT2}, 4, v{vT0}")
    e(f"v_bfe_u32 v{vT2}, v0, 1, 1")
    e(f"v_lshl_add_u32 v{vT0}, v{vT2}, 3, v{vT0}")
    e(f"v_bfe_u32 v{vT2}, v0, 2, 2")
    e(f"v_bfe_u32 v{vT3}, v0, 5, 1")
    e(f"v_lshl_add_u32 v{vT2}, v{vT3}, 3, v{vT2}")
    e(f"v_lshl_add_u32 v{vA1}, v{vT2}, 6, v{vT0}")
    e(f"v_mul_u32_u24 v{vT2}, 192, v{vT2}")
    e(f"v_add_u32 v{vA2}, v{vT2}, v{vT0}")
    for r, v in ((sC0, C0), (sSC, SC)):
        e(f"s_mov_b32 s{r}, {hex(f2u(v))}")
        e(f"s_mov_b32 s{r+1}, {hex(f2u(v))}")

class Addr:
    def __init__(self): self.b = {vA1: 0, vA2: 0}
    def off(self, reg, slot, extra): return (slot - self.b[reg]) * SLOT + extra
    def ensure(self, reg, slot):
        if not (0 <= (slot - self.b[reg]) * SLOT and (slot - self.b[reg] + 1) * SLOT <= 65536):
            nb = {0: 0, 5: 1, 9: 7, 6: 6}.get(slot, slot)
            d = (nb - self.b[reg]) * SLOT
            if d > 0: e(f"v_add_u32 v{reg}, {d}, v{reg}")
            else: e(f"v_subrev_u32 v{reg}, {-d}, v{reg}")
            self.b[reg] = nb
AD = Addr()
def f1_reads(slot):
    AD.ensure(vA1, slot)
    return [f"ds_read_b64_tr_b16 {vr(vF1+4*s+2*t,2)}, v{vA1} offset:{AD.off(vA1, slot, (16*s+4*t)*64)}" for s in range(6) for t in range(2)]
def f2_reads(slot):
    AD.ensure(vA2, slot)
    return [f"ds_read_b64_tr_b16 {vr(vF2+12*s+4*T+2*t,2)}, v{vA2} offset:{AD.off(vA2, slot, 6144+(16*s+4*t)*192+64*T)}" for s in range(2) for T in range(3) for t in range(2)]
def g1(h, x):
    return [f"v_mfma_f32_32x32x16_bf16 {vr(h,16)}, {vr(vF1+4*s,4)}, {vr(x+4*s,4)}, {vr(h,16) if s else 0}" for s in range(6)]
def g2(o, y, zero=False):
    return [f"v_mfma_f32_32x32x16_bf16 {vr(o+16*T,16)}, {vr(vF2+12*s+4*T,4)}, {vr(y+8*s,4)}, {0 if (zero and s==0) else vr(o+16*T,16)}" for s in range(2) for T in range(3)]
def cvts(h, s): return [f"v_cvt_pk_bf16_f32 v{h+8*s+i}, v{h+8*s+2*i}, v{h+8*s+2*i+1}" for i in range(4)]
def pz(h):
    a = [f"v_pk_fma_f32 {vr(vT+2*i,2)}, {vr(h+2*i,2)}, {vr(h+2*i,2)}, {sr(sC0)}" for i in range(8)]
    b = [f"v_pk_mul_f32 {vr(vT+2*i,2)}, {vr(vT+2*i,2)}, {vr(h+2*i,2)} neg_lo:[1,0] neg_hi:[1,0]" for i in range(8)]
    return a + b
PEND = []
FQ = LQ()
def pphase(ops, ds, tag, nst=1):
    for r in ds: FQ.op(r, tag)
    for i in range(nst):
        if PEND:
            p = PEND.pop(0)
            for x in (p if isinstance(p, list) else [p]): e(x)
    for o in ops: e(o)
def mphase(mf, fill):
    for i in range(6):
        if mf: e(mf[i])
        for o in fill[i]: e(o)
def res_unpack(o, src):
    for i in range(24):
        e(f"v_lshlrev_b32 v{o+2*i}, 16, v{src+i}")
        e(f"v_and_b32 v{o+2*i+1}, 0xffff0000, v{src+i}")
def out_pack(dst, o, sbase, mod):
    for i in range(24): e(f"v_cvt_pk_bf16_f32 v{dst+i}, v{o+2*i}, v{o+2*i+1}")
    for i in (0, 2, 4):
        for r in range(4): e(f"v_permlane16_swap_b32 v{dst+4*i+r}, v{dst+4*i+4+r}")
    for i in range(6):
        PEND.append(f"buffer_store_dwordx4 {vr(dst+4*i,4)}, v{vPS}, {sr(sO,4)}, s{sbase} offen offset:{32*(i&~1) + 192*(i&1)} {mod}")
def hook(hooks, p, j):
    for f in hooks.get((p, j), []): f()
def ffn_prologue(steps, hooks):
    res_unpack(vO, vRES1)
    for r in f1_reads(steps[0][0]): e(r)
    res_unpack(vO2, vRES)
    hook(hooks, "pre", 0)
    e("s_waitcnt lgkmcnt(0)")
    for m in g1(vH[0], steps[0][1]): e(m)
    if steps[1][0] != steps[0][0]:
        for r in f1_reads(steps[1][0]): FQ.op(r, "F1")
    else: e("s_nop 11")
    for o in pz(vH[0]): e(o)
def ffn_step(steps, hooks, u, nst=1):
    N = len(steps)
    cm(f"ustep {u}")
    ex = [f"v_exp_f32 v{vT+i}, v{vT+i}" for i in range(16)]
    rc = [f"v_rcp_f32 v{vT+i}, v{vT+i}" for i in range(16)]
    h, hn = vH[u & 1], vH[(u + 1) & 1]
    c = cvts(hn, 1) if u >= 1 else []
    hook(hooks, "m1", u)
    FQ.wait("F2")
    mphase(g2(steps[u-1][2], hn, steps[u-1][3]) if u >= 1 else [],
           [ex[0:2] + c[0:2], ex[2:4] + c[2:4], ex[4:7], ex[7:10], ex[10:13], ex[13:16]])
    hook(hooks, "p1", u)
    d = [f"v_pk_fma_f32 {vr(vT+2*i,2)}, {vr(vT+2*i,2)}, {sr(sSC)}, {sr(sSC)}" for i in range(8)]
    pphase(d, f2_reads(steps[u][0]) if (u == 0 or steps[u][0] != steps[u-1][0]) else [], "F2", nst)
    hook(hooks, "m2", u)
    FQ.wait("F1")
    nf = OPT["df"]
    ys = [f"v_mul_f32 v{h+i}, v{h+i}, v{vT+i}" for i in range(2 * nf)]
    mphase(g1(hn, steps[u+1][1]) if u + 1 < N else [],
           [rc[0:3], rc[3:6], rc[6:9], rc[9:12], rc[12:14] + ys[:nf], rc[14:16] + ys[nf:]])
    y = [f"v_pk_mul_f32 {vr(h+2*i,2)}, {vr(h+2*i,2)}, {vr(vT+2*i,2)}" for i in range(nf, 8)]
    hook(hooks, "p2", u)
    pphase(y + cvts(h, 0) + (pz(hn) if u + 1 < N else []),
           f1_reads(steps[u+2][0]) if (u + 2 < N and steps[u+2][0] != steps[u+1][0]) else [], "F1", nst)
    hook(hooks, "post", u)
    if OPT["fine"] == 9 and u % 2 == 1 and u < 24: stamp(1 + u // 2, True)
def ffn_epilogue(steps):
    h = vH[(len(steps) - 1) & 1]
    for o in cvts(h, 1): e(o)
    e("s_waitcnt lgkmcnt(0)")
    for m in g2(steps[-1][2], h, steps[-1][3]): e(m)

e("s_cmp_ge_u32 s2, 256")
e("s_cbranch_scc1 L_end")
e(f"s_load_dwordx2 s[{sX}:{sX+1}], s[0:1], 0")
e("s_load_dwordx4 s[24:27], s[0:1], 8")
e("s_load_dwordx4 s[96:99], s[0:1], 24")
e(f"s_load_dwordx2 s[{sO}:{sO+1}], s[0:1], 40")
if OPT["stamp"]:
    e(f"s_load_dwordx2 s[{sDBG}:{sDBG+1}], s[0:1], 56")
    e(f"s_mov_b32 s{sDBG+2}, {1 << 20}")
    e(f"s_mov_b32 s{sDBG+3}, 0x20000")
    e(f"s_memrealtime s[{sTS+28}:{sTS+29}]")
    stamp(0)
if OPT["padat"] >= 0: e("s_memrealtime s[64:65]")
if OPT["cpf"]:
    e(f"s_getpc_b64 {sr(sPC)}")
    lab("L_pc")
    e(f"v_lshlrev_b32 v{vT0}, 7, v0")
    e(f"v_min_u32 v{vT0}, L_end-L_pc, v{vT0}")
    e(f"global_load_dword v255, v{vT0}, {sr(sPC)}")
e(f"s_mov_b32 s{sX+2}, {XBYTES}")
e(f"s_mov_b32 s{sX+3}, 0x20000")
e(f"v_lshrrev_b32 v{vT0}, 6, v0")
e(f"v_and_b32 v{vT1}, 63, v0")
e(f"v_readfirstlane_b32 s{sW}, v{vT0}")
e(f"v_lshlrev_b32 v{vLIN}, 4, v{vT1}")
e(f"s_lshr_b32 s{sCU}, s2, 3")
e(f"s_and_b32 s3, s2, 7")
e(f"s_mul_i32 s3, s3, 6")
e(f"s_and_b32 s{sI4}, s{sW}, 3")
e(f"s_lshl_b32 s{sI1K}, s{sI4}, 10")
e(f"v_mov_b32 v{vFL}, 0")
block_base(0)
e(f"s_cmp_ge_u32 s{sW}, 4")
e(f"s_cbranch_scc1 L_grpB")

def cw_addr():
    for i in range(7): e(f"v_pk_mov_b32 {vr(vCW+12*i,2)}, 0, 0")
    e(f"v_bfe_u32 v{vT0}, v0, 3, 3")
    e(f"v_and_b32 v{vT2}, 3, v0")
    e(f"v_sub_u32 v{vT0}, v{vT0}, v{vT2}")
    e(f"v_cmp_gt_u32 {sr(sT2)}, 5, v{vT0}")
    e(f"v_mul_u32_u24 v{vT0}, 192, v{vT0}")
    e(f"v_bfe_u32 v{vT2}, v0, 2, 1")
    e(f"s_movk_i32 s{sT0}, 5120")
    e(f"v_mad_u32_u24 v{vT0}, v{vT2}, s{sT0}, v{vT0}")
    e(f"v_mov_b32 v{vT2}, s{sT0}")
    e(f"v_cndmask_b32 v{vT0}, v{vT2}, v{vT0}, {sr(sT2)}")
    e(f"s_mul_i32 s{sT0}, s{sI4}, 48")
    e(f"s_add_u32 s{sT0}, s{sT0}, {DWS}")
    e(f"v_add_u32 v{vS}, s{sT0}, v{vT0}")
    for i in range(3): zero16(vACC + 16 * i)

e(f"v_subrev_u32 v{vT1}, 192, v{vLIN}")
e(f"s_movk_i32 s{sT0}, 576")
e(f"v_cmp_gt_u32 {sr(sT2)}, s{sT0}, v{vT1}")
e(f"s_cmp_eq_u32 s{sW}, 0")
e(f"s_cselect_b64 {sr(sT0)}, -1, 0")
e(f"v_cndmask_b32 v{vT1}, -1, v{vT1}, {sr(sT2)}")
e(f"v_cndmask_b32 v{vT1}, v{vT1}, v{vLIN}, {sr(sT0)}")
calc_rel([0, 1])
dma_prep(0, (0, 1))
e("s_waitcnt lgkmcnt(0)")
e(f"s_mov_b32 s{sDS}, s26")
e(f"s_mov_b32 s{sDS+1}, s27")
e(f"s_movk_i32 s{sDS+2}, 4800")
e(f"s_mov_b32 s{sDS+3}, 0x20000")
e(f"s_add_u32 m0, s{sI1K}, {DWS}")
e(f"s_mul_i32 s{sT0}, s{sI4}, 576")
e(f"buffer_load_dwordx4 v{vLIN}, {sr(sDS,4)}, s{sI1K} offen lds")
e(f"s_mul_i32 s{sT1}, s{sI4}, 960")
e(f"s_sub_u32 s{sT0}, s{sT0}, 576")
e(f"s_add_u32 s{sT1}, s{sT1}, {DWL}")
e(f"s_cmp_eq_u32 s{sW}, 0")
e(f"s_cselect_b32 s{sDS}, s26, s24")
e(f"s_cselect_b32 s{sDS+1}, s27, s25")
e(f"s_cselect_b32 s{sDS+2}, s{sDS+2}, 1728")
e(f"s_cselect_b32 m0, {DWS + 4096}, s{sT1}")
e(f"s_cselect_b32 s{sT0}, 4096, s{sT0}")
e(f"buffer_load_dwordx4 v{vT1}, {sr(sDS,4)}, s{sT0} offen lds")
n = dma_now([(g, j) for g in range(3) for j in (0, 1)], None)
stamp(1)
cw_addr()
e(f"v_add_u32 v{vSTA}, {STB[0]}, v{vLIN}")
e(f"s_waitcnt vmcnt({n})")
bar(2)
call("L_setup")
conv_addr(0)
calc_rel([2, 3])
e("s_waitcnt vmcnt(0) lgkmcnt(0)")
bar(3)
conv(0)
bar(4)
B3LO = [(0, 0), (0, 1), (0, 2), (0, 3), (1, 0), (1, 1), (1, 2)]
B3HI = [(1, 3), (2, 0), (2, 1), (2, 2), (2, 3)]
norm(0, lambda: (dma_prep(3), e(f"s_mov_b32 s{sDM}, 0")), 2)
e(f"s_mov_b32 s{sFLG}, 1")
bar(5)
conv(2)
if OPT["b4a"]:
    dma_prep(4)
    n4 = dma_now(ALLP[:8], (1, 3))
    e(f"s_waitcnt vmcnt({n4})")
else: e("s_waitcnt vmcnt(0)")
bar(6)
norm(2, lambda: dma_w([0]), 4)
e("s_waitcnt vmcnt(3)")
bar(7)
conv(4)
e("s_waitcnt vmcnt(0)")
bar(8)
norm_reads(1)
e(f"v_add_u32 v{vT0}, {XB[4]}, v{vXW}")
norm_body(1, w_packets(1, 1) + w_packets(2, 2) + w_packets(3, 3))
e("s_branch L_ffn")
lab("L_setup")
load_cw(); setup_conv(0)
for k in (1, 2, 3, 4): block_base(k)
setup_ffn(); ret()
lab("L_core"); conv_core(2); ret()
lab("L_stats"); conv_stats(2); ret()
lab("L_normd"); norm_body(2, guarded()); ret()
lab("L_norm"); norm_body(2, []); ret()
lab("L_grpB")
calc_rel([2, 3])
dma_prep(0, (2, 3))
e("s_waitcnt lgkmcnt(0)")
n = dma_now([(g, j) for g in range(3) for j in (2, 3)], (2, 3))
stamp(1)
if OPT["wpf"]:
    sk = newlab("wpf")
    e(f"s_cmp_lg_u32 s{sW}, 7")
    e(f"s_cbranch_scc1 {sk}")
    e(f"s_cmp_ge_u32 s{sCU}, 18")
    e(f"s_cbranch_scc1 {sk}")
    e(f"s_cmp_lt_u32 s{sCU}, 9")
    e(f"s_cselect_b32 s{sT0}, s96, s98")
    e(f"s_cselect_b32 s{sT1}, s97, s99")
    e(f"s_cselect_b32 s{sT2}, 0, 9")
    e(f"s_sub_u32 s{sT2}, s{sCU}, s{sT2}")
    e(f"s_lshl_b32 s{sT2}, s{sT2}, 13")
    e(f"v_lshl_add_u32 v{vT0}, v{vLIN}, 3, s{sT2}")
    e(f"global_load_dword v{vS+7}, v{vT0}, {sr(sT0)}")
    lab(sk)
cw_addr()
e(f"v_pk_mov_b32 {vr(vCW+2,2)}, 0, 0")
sk = newlab("zr")
e(f"s_cmp_ge_u32 s{sI4}, 2")
e(f"s_cbranch_scc1 {sk}")
e(f"s_mul_i32 s{sT0}, s{sI4}, 3840")
e(f"s_add_u32 s{sT0}, s{sT0}, {DWL}")
e(f"v_add_u32 v{vT0}, s{sT0}, v{vLIN}")
e(f"ds_write_b128 v{vT0}, {vr(vCW,4)}")
lab(sk)
e(f"v_add_u32 v{vSTA}, {STB[1]}, v{vLIN}")
calc_rel([0, 1])
e("s_waitcnt lgkmcnt(0)")
bar(2)
call("L_setup")
conv_addr(1)
dma_prep(1)
n1 = dma_now(ALLP[:OPT["b1a"]], (2, 3))
e(f"s_waitcnt vmcnt({n1}) lgkmcnt(0)")
bar(3)
dma_now(ALLP[OPT["b1a"]:], (2, 3))
dma_prep(2)
n2 = dma_now(ALLP, (2, 3))
e(f"s_waitcnt vmcnt({n2})")
bar(4)
conv(1)
e("s_waitcnt vmcnt(0)")
bar(5)
n4 = [0]
def prep1():
    dma_prep(3, g0=False)
    e("s_barrier")
    dma_now(B3HI, (2, 3))
    if OPT["b4a"]: return
    dma_prep(4)
    e(f"s_cmp_lt_u32 s{sI4}, 2")
    e(f"s_cselect_b32 s{sDM}, 1, 0")
    n4[0] = 7
norm(1, prep1, 3)
e(f"s_waitcnt vmcnt({n4[0]})")
bar(6)
conv(3)
e("s_waitcnt vmcnt(0)")
bar(7)
norm(3, lambda: dma_w([4, 5]), None)
e("s_waitcnt vmcnt(0)")
bar(8)
pickup(3)
lab("L_ffn")
stamp(9)

KS = OPT["ks"]
steps24 = [(j, vX, vO, False) for j in ORDER[:KS]] + [(j, x, o, False) for j in ORDER[KS:] for x, o in ((vX, vO), (vXP, vO2))] + [(j, vXP, vO2, False) for j in ORDER[:KS]]
first = lambda j: min(u for u, st in enumerate(steps24) if st[0] == j)
steps30 = steps24 + [(12 + j, vX, vO, j == 0) for j in range(6)]
hooks = {}
def addhook(p, j, f): hooks.setdefault((p, j), []).append(f)
def h_ps():
    e(f"v_bfe_u32 v{vT0}, v0, 4, 1")
    e(f"v_mul_u32_u24 v{vT0}, 160, v{vT0}")
    e(f"v_sub_u32 v{vPS}, v{vPX}, v{vT0}")
addhook("pre", 0, h_ps)
def h_bar(grp):
    def f():
        sk = None
        if grp is not None:
            sk = newlab("gb")
            e(f"s_cmp_lg_u32 s{sG}, {grp}")
            e(f"s_cbranch_scc1 {sk}")
        e("s_waitcnt vmcnt(0)")
        e("s_barrier")
        if sk: lab(sk)
    return f
PEND.extend(w_packets(9, 10))
for ua, ub in ((OPT["ba1"], OPT["bb1"]), (OPT["ba2"], OPT["bb2"])):
    if ua == ub: addhook("p2", ua, h_bar(None))
    else:
        addhook("p2", ua, h_bar(0)); addhook("p2", ub, h_bar(1))
assert max(OPT["ba1"], OPT["bb1"]) <= first(1) - 2 and max(OPT["ba2"], OPT["bb2"]) <= first(9) - 2 and min(OPT["ba2"], OPT["bb2"]) >= max(OPT["ba1"], OPT["bb1"]) + 3 and min(OPT["ba1"], OPT["bb1"]) >= 1
addhook("p2", max(OPT["ba1"], OPT["bb1"]), lambda: PEND.extend(w_packets(11, 6) + w_packets(7, 8)))
def setprio_b(p):
    sk = newlab("prio")
    e(f"s_cmp_lt_u32 s{sW}, 4")
    e(f"s_cbranch_scc1 {sk}")
    e(f"s_setprio {p}")
    lab(sk)
P = OPT["prio"]
if OPT["pat"]:
    pat = OPT["pat"][1:]
    cur = "0"
    for j, ch in enumerate(pat):
        if ch != cur:
            addhook("m1", j, (lambda p: (lambda: setprio_b(p)))(int(ch))); cur = ch
else:
  for j in range(0, 20):
    if j < OPT["pfix"]:
        if P and (j + 1) % P == 0: addhook("post", j, (lambda p: (lambda: setprio_b(p)))(((j + 1) // P) & 1))
    elif j == OPT["pfix"]: addhook("post", j, lambda: setprio_b(1))
addhook("post", 12, lambda: stamp(10))
addhook("post", 23 - KS, lambda: out_pack(vXP if KS < 3 else vO, vO, sJ1, OPT["st1"]))
assert KS == 0 or KS >= 3
ffn_prologue(steps24, hooks)
for j in range(22): ffn_step(steps24 if j < 21 else steps24, hooks, j)
e(f"s_cmp_ge_u32 s{sW}, 4")
e("s_cbranch_scc1 L_tailB")
save = dict(AD.b); saveq = list(FQ.q); savep = list(PEND)
for j in range(22, 24): ffn_step(steps24, hooks, j)
ffn_epilogue(steps24)
while PEND: e(PEND.pop(0))
e("s_nop 10")
out_pack(vO2, vO2, sJ2, OPT["st3"])
while PEND: e(PEND.pop(0))
stamp(11)
e("s_barrier"); e("s_barrier")
stamp(12)
e("s_branch L_fin")
lab("L_tailB")
AD.b = save; FQ.q = saveq; PEND.extend(savep)
vSR = vO2 + 24
def h_x4():
    e(f"s_lshr_b32 s{sT0}, s{sI4}, 1")
    e(f"s_mul_i32 s{sT1}, s{sT0}, 6144")
    e(f"s_add_u32 s{sT1}, s{sT1}, {XB[4]}")
    e(f"v_add_u32 v{vT0}, s{sT1}, v{vLIN}")
    for s_ in range(6): FQ.op(f"ds_read_b128 {vr(vX+4*s_,4)}, v{vT0} offset:{1024*s_}", "F1")
    e(f"v_bfe_u32 v{vT1}, v{vTID}, 1, 3")
    e(f"s_mov_b32 s{sT1}, {ROWB}")
    e(f"v_mul_lo_u32 v{vT1}, v{vT1}, s{sT1}")
    e(f"v_sub_u32 v{vIN}, v{vPX}, v{vT1}")
    e(f"s_mul_i32 s{sT0}, s{sT0}, 384")
    e(f"s_add_u32 s{sT0}, s{sT0}, s{sBASE+4}")
    e(f"s_and_b32 s{sT1}, s{sI4}, 1")
    e(f"s_mul_i32 s{sT1}, s{sT1}, 128")
    e(f"s_add_u32 s{sSH}, s{sT0}, s{sT1}")
    e(f"v_sub_u32 v{vRD}, v{vPS}, v{vT1}")
addhook("p2", 22, h_x4)
def rebase(reg):
    def f():
        e(f"s_and_b32 s{sT0}, s{sW}, 1")
        e(f"s_mul_i32 s{sT0}, s{sT0}, {6*SLOT}")
        e(f"s_sub_u32 s{sT0}, s{sT0}, {AD.b[reg]*SLOT}")
        e(f"v_add_u32 v{reg}, s{sT0}, v{reg}")
        AD.b[reg] = 12
    return f
addhook("p2", 22, rebase(vA1))
addhook("p1", 24, rebase(vA2))
def h_o2():
    out_pack(vO2, vO2, sJ2, OPT["st2"])
    for t in range(4):
        PEND.insert(t, f"buffer_load_dwordx4 {vr(vSR+4*t,4)}, v{vIN}, {sr(sX,4)}, s{sSH} offen offset:{32*t}")
    global NAFTER
    NAFTER = len(PEND) - 4
addhook("post", 24, h_o2)
for j in range(22, 30):
    if j == 25 and KS: assert all("s%d offen offset" % sJ1 not in str(p) for p in PEND)
    ffn_step(steps30, hooks, j, 2 if (KS == 0 or j == 25) else 1)
assert not PEND
ffn_epilogue(steps30)
stamp(11)
vQ = 16
vR = 208
e(f"s_mul_i32 s{sT0}, s{sI4}, 8192")
e(f"v_add_u32 v{vT0}, s{sT0}, v{vLIN}")
e(f"v_xor_b32 v{vT1}, 8192, v{vT0}")
e(f"s_waitcnt vmcnt({NAFTER})")
for i in range(16):
    e(f"v_lshlrev_b32 v{vQ+2*i}, 16, v{vSR+i}")
    e(f"v_and_b32 v{vQ+2*i+1}, 0xffff0000, v{vSR+i}")
e("s_barrier")
e(f"s_bitcmp1_b32 s{sI4}, 0")
e("s_cbranch_scc1 L_odd")
for half in range(2):
    if half: lab("L_odd")
    keep, nk, send, nsd = (vO, 32, vO + 32, 16) if half == 0 else (vO + 32, 16, vO, 32)
    for u in range(nsd // 4): e(f"ds_write_b128 v{vT0}, {vr(send+4*u,4)} offset:{1024*u}")
    for i in range(nk // 2): e(f"v_pk_add_f32 {vr(vQ+2*i,2)}, {vr(vQ+2*i,2)}, {vr(keep+2*i,2)}")
    e("s_waitcnt lgkmcnt(0)")
    e("s_barrier")
    stamp(12)
    for u in range(nk // 4): e(f"ds_read_b128 {vr(vR+4*u,4)}, v{vT1} offset:{1024*u}")
    for t in range(nk // 16):
        e(f"s_waitcnt lgkmcnt({nk // 4 - 4*(t+1)})")
        for i in range(8): e(f"v_pk_add_f32 {vr(vQ+16*t+2*i,2)}, {vr(vQ+16*t+2*i,2)}, {vr(vR+16*t+2*i,2)}")
        for i in range(8): e(f"v_cvt_pk_bf16_f32 v{vO+8*t+i}, v{vQ+16*t+2*i}, v{vQ+16*t+2*i+1}")
        e("s_nop 1")
        for r in range(4): e(f"v_permlane16_swap_b32 v{vO+8*t+r}, v{vO+8*t+4+r}")
        for i in range(2):
            e(f"buffer_store_dwordx4 {vr(vO+8*t+4*i,4)}, v{vRD}, {sr(sO,4)}, s{sSH} offen offset:{64*t + 192*i} {OPT['st3']}")
    if half == 0: e("s_branch L_fin")
lab("L_fin")
if OPT["stamp"]:
    e("s_waitcnt vmcnt(0)")
    stamp(13)
    e(f"s_memrealtime s[{sTS+30}:{sTS+31}]")
    e("s_waitcnt lgkmcnt(0)")
    e(f"s_lshl_b32 s{sT0}, s2, 3")
    e(f"s_add_u32 s{sT0}, s{sT0}, s{sW}")
    e(f"s_lshl_b32 s{sT0}, s{sT0}, 6")
    e(f"v_mov_b32 v{vT0}, 0")
    for i in range(16):
        e(f"v_mov_b32 v{vT1}, s{sTS+2*i}")
        e(f"buffer_store_dword v{vT1}, v{vT0}, {sr(sDBG,4)}, s{sT0} offen offset:{4*i}")
lab("L_end")
e("s_endpgm")

ref = open(f"cdna_kernels/{NAME}.s.ref").read().splitlines()
head = [l for l in ref if l.startswith(";") and "@launch" not in l]
out = "\n".join(head) + f"\n; @launch grid=(256,1,1) block=(512,1,1) lds={LDS_TOTAL}\n"
out += f""".amdgcn_target "amdgcn-amd-amdhsa--gfx950"
.text
.globl {NAME}_kernel
.p2align 8
.type {NAME}_kernel,@function
{NAME}_kernel:
""" + "\n".join(L) + f"""
.section .rodata,"a"
.p2align 6
.amdhsa_kernel {NAME}_kernel
  .amdhsa_next_free_vgpr 256
  .amdhsa_next_free_sgpr 102
  .amdhsa_accum_offset 256
  .amdhsa_group_segment_fixed_size 0
  .amdhsa_kernarg_size 64
  .amdhsa_user_sgpr_count 2
  .amdhsa_user_sgpr_kernarg_segment_ptr 1
  .amdhsa_system_sgpr_workgroup_id_x 1
.end_amdhsa_kernel
"""
open(sys.argv[1], "w").write(out)
```

```python
import sys, struct, math
NAME = "standalone__modern_conv_block_replknet__vision"
OPT = dict(stamp=0, fine=-1, pre=0, prio=2, pfix=11, st1="sc1", st2="sc1", cpf=1, wpf=1, gam=0, cp=1, b1a=6, nm=5, padat=-1, padt=2000, p64=1, st3="sc1", b4a=1, df=2, pat="p00110011001100110011111111", ba1=1, bb1=1, ba2=7, bb2=7, ks=3, b3e=0, b1p=4, eb=28, dd=1, ca=3, ub=0)
for a in sys.argv[2:]:
    k, v = a.split("=")
    assert k in OPT, k
    OPT[k] = int(v) if v.lstrip("-").isdigit() else v.replace("+", " ")

def f2u(x): return struct.unpack("<I", struct.pack("<f", x))[0]
K0 = 2.0 * math.sqrt(2.0 / math.pi) * math.log2(math.e)
K1 = K0 * 0.044715
SC = K1 ** (1.0 / 3.0)
C0 = K0 / SC

L = []
def e(s): L.append("  " + s)
def lab(s): L.append(s + ":")
def cm(s): L.append("  ; " + s)
def vr(b, n): return f"v[{b}:{b+n-1}]"
def sr(b, n=2): return f"s[{b}:{b+n-1}]"

SLOT = 12288
SB = [47104, 116736, 0, 47104, 108544]
XB = [75776, 139264, 22528, 75776, 151552]
DWS = 106496
DWL = DWS + 5120
STB = [100352 + 4096 * (k & 1) for k in range(5)]
ROWP = 145 * 16
LDS_TOTAL = 163840
XBYTES = 384 * 384 * 192
ROWB = 384 * 192
ORDER = [0, 4, 5, 1, 2, 3, 9, 10, 11, 6, 7, 8]

sG = 3
sX, sO, sWS, sDS = 4, 8, 12, 20
sWB, sWP, sWJ = 16, 17, 18
sI4 = 19
sRET = 24
sFLG = 26
sDM = 27
sW = 28
sCU = 29
sT0, sT1, sT2, sT3 = 30, 31, 32, 33
sBASE = 34
sBFL = 39
sC0 = 44
sSC = 46
sDB, sDL = 48, 49
sSH = 50
sPC = 52
sJ1, sJ2 = 56, 57
sI1K = 58
sI3K = 59
sDBG = 60
sTS = 64
sWA, sWM = 100, 101

vTID = 0
vA1, vA2 = 1, 2
vPX = 3
vLIN = 4
vT0, vT1, vT2, vT3 = 5, 6, 7, 8
vIN = 9
vXW = 10
vWO = 11
vPK = 12
vIDX = 13
vFL = 14
vRD = 15
vPS = 14
vX = 16
vXP = 40
vO = 64
vO2 = 112
vH = [160, 176]
vT = 192
vF1 = 208
vF2 = 232
vRES = 232
vCW = 64
vREL = 138
vCA = 142
vSTA = 143
vACC = 144
vS = 192
vD = 200
vRES1 = 208

def stamp(i, fine=False):
    if OPT["fine"] >= 0 and not fine and 1 <= i <= 12: return
    if OPT["stamp"]:
        e(f"{'s_memtime' if OPT['stamp'] == 1 else 's_memrealtime'} s[{sTS+2*i}:{sTS+2*i+1}]")
def padpoint(i):
    if OPT["padat"] == i:
        lb = newlab("pad")
        lab(lb)
        e("s_sleep 2")
        e("s_memrealtime s[66:67]")
        e("s_waitcnt lgkmcnt(0)")
        e("s_sub_u32 s66, s66, s64")
        e(f"s_cmp_lt_u32 s66, {OPT['padt']}")
        e(f"s_cbranch_scc1 {lb}")
def bar(i=None):
    if i is not None and OPT["pre"]: stamp(i)
    e("s_barrier")
    if i is not None: padpoint(i)
    if i is not None and not OPT["pre"]: stamp(i)
uid = [0]
def newlab(p):
    uid[0] += 1
    return f"L_{p}_{uid[0]}"
def call(name): e(f"s_call_b64 {sr(sRET)}, {name}")
def ret(): e(f"s_setpc_b64 {sr(sRET)}")

class LQ:
    def __init__(self): self.q = []
    def op(self, s, tag=None):
        e(s); self.q.append(tag)
    def wait(self, tag):
        idx = [i for i, t in enumerate(self.q) if t == tag]
        if not idx: return
        n = len(self.q) - 1 - max(idx)
        e(f"s_waitcnt lgkmcnt({min(n, 14)})")
        self.q = self.q[max(idx) + 1:]

def block_base(k):
    if k == 0: t = sCU
    else:
        t = sT0
        if k < 4: e(f"s_add_u32 s{sT0}, s{sCU}, {32*k}")
        else:
            e(f"s_lshr_b32 s{sT0}, s{sCU}, 1")
            e(f"s_add_u32 s{sT0}, s{sT0}, 128")
    e(f"s_mul_i32 s{sT1}, s{t}, 171")
    e(f"s_lshr_b32 s{sT1}, s{sT1}, 10")
    e(f"s_mul_i32 s{sT2}, s{sT1}, 6")
    e(f"s_sub_u32 s{sT2}, s{t}, s{sT2}")
    e(f"s_add_u32 s{sT2}, s{sT2}, s3")
    e(f"s_mul_i32 s{sBASE+k}, s{sT1}, {16*ROWB}")
    e(f"s_mul_i32 s{sT3}, s{sT2}, {8*192}")
    e(f"s_add_u32 s{sBASE+k}, s{sBASE+k}, s{sT3}")
    if k == 4:
        e(f"s_and_b32 s{sT3}, s{sCU}, 1")
        e(f"s_mul_i32 s{sT3}, s{sT3}, {8*ROWB}")
        e(f"s_add_u32 s{sBASE+k}, s{sBASE+k}, s{sT3}")
    e(f"s_cmp_eq_u32 s{sT2}, 0")
    e(f"s_cselect_b32 s{sBFL+k}, 0, 8")
    e(f"s_cmp_eq_u32 s{sT2}, 47")
    e(f"s_cselect_b32 s{sBFL+k}, 4, s{sBFL+k}")

def calc_rel(js):
    e(f"s_mov_b32 s{sT0}, {ROWB - 145*16}")
    e(f"s_movk_i32 s{sT1}, 1338")
    for j in js:
        e(f"v_and_b32 v{vT0}, 255, v0")
        if j: e(f"v_add_u32 v{vT0}, {256*j}, v{vT0}")
        e(f"v_mul_u32_u24 v{vT2}, 7232, v{vT0}")
        e(f"v_lshrrev_b32 v{vT2}, 20, v{vT2}")
        e(f"v_mul_u32_u24 v{vT3}, 145, v{vT2}")
        e(f"v_sub_u32 v{vT3}, v{vT0}, v{vT3}")
        e(f"v_lshlrev_b32 v{vT0}, 4, v{vT0}")
        e(f"v_mad_u32_u24 v{vREL+j}, v{vT2}, s{sT0}, v{vT0}")
        e(f"v_mad_u32_u24 v{vT2}, v{vT3}, s{sT1}, s{sT1}")
        e(f"v_lshrrev_b32 v{vT2}, 16, v{vT2}")
        e(f"v_mad_i32_i24 v{vREL+j}, v{vT2}, -8, v{vREL+j}")
        e(f"v_subrev_u32 v{vT2}, 24, v{vT3}")
        e(f"v_lshrrev_b32 v{vT2}, 31, v{vT2}")
        e(f"v_lshl_or_b32 v{vFL}, v{vT2}, {j}, v{vFL}")
        e(f"v_sub_u32 v{vT2}, 120, v{vT3}")
        e(f"v_lshrrev_b32 v{vT2}, 31, v{vT2}")
        e(f"v_lshl_or_b32 v{vFL}, v{vT2}, {4+j}, v{vFL}")
for x in range(1024): assert (x * 7232) >> 20 == x // 145
for x in range(145): assert ((x + 1) * 1338) >> 16 == (x >= 48) + (x >= 97)

def dma_prep(k, js=(0, 1, 2, 3), g0=True):
    e(f"s_sub_u32 s{sDB}, s{sBASE+k}, {2*ROWB + 2*192}")
    e(f"s_add_u32 s{sDL}, s{sI1K}, {SB[k]}")
    e(f"v_lshrrev_b32 v{vT3}, s{sBFL+k}, v{vFL}")
    for j in js:
        e(f"v_bfe_i32 v{vD+j}, v{vT3}, {j}, 1")
        if g0:
            e(f"v_add_u32 v{vD+4+j}, s{sDB}, v{vREL+j}")
            e(f"v_or_b32 v{vD+4+j}, v{vD+4+j}, v{vD+j}")
        e(f"v_or_b32 v{vD+j}, v{vD+j}, v{vREL+j}")
def dma_packet(g, j):
    p = [f"s_add_u32 m0, s{sDL}, {7*g*ROWP + 4096*j}"]
    if g == 0: p += ["s_nop 0", f"buffer_load_dwordx4 v{vD+4+j}, {sr(sX,4)}, 0 offen lds"]
    else: p += [f"s_add_u32 s{sT1}, s{sDB}, {7*g*ROWB}", f"buffer_load_dwordx4 v{vD+j}, {sr(sX,4)}, s{sT1} offen lds"]
    return p
def dma_now(parts, last):
    n = 0
    for g, j in parts:
        sk = None
        if (g, j) == last:
            sk = newlab("sk")
            e(f"s_cmp_ge_u32 s{sI4}, 2")
            e(f"s_cbranch_scc1 {sk}")
        else: n += 1
        for x in dma_packet(g, j): e(x)
        if sk: lab(sk)
    return n
def set_mask(parts, last):
    m = sum(1 << (4 * g + j) for g, j in parts)
    if last in parts:
        e(f"s_cmp_ge_u32 s{sI4}, 2")
        e(f"s_movk_i32 s{sDM}, {m}")
        e(f"s_cselect_b32 s{sDM}, {m & ~(1 << (4*last[0] + last[1]))}, s{sDM}")
        return len(parts) - 1
    e(f"s_movk_i32 s{sDM}, {m}")
    return len(parts)
def wait2(n, extra=""):
    l1, l2 = newlab("wv"), newlab("wv")
    e(f"s_cmp_ge_u32 s{sI4}, 2")
    e(f"s_cbranch_scc1 {l1}")
    e(f"s_waitcnt vmcnt({n+1}) {extra}")
    e(f"s_branch {l2}")
    lab(l1)
    e(f"s_waitcnt vmcnt({n}) {extra}")
    lab(l2)
ALLP = [(g, j) for g in range(3) for j in range(4)]

def dma_w(slots):
    for j in slots:
        e(f"s_mul_i32 s{sT0}, s{sWJ}, {j}")
        e(f"s_add_u32 s{sT0}, s{sT0}, s{sWB}")
        for t in range(3):
            e(f"s_add_u32 m0, s{sI3K}, {j*SLOT + 1024*t}")
            if t: e(f"s_add_u32 s{sT0}, s{sT0}, s{sWP}")
            else: e("s_nop 0")
            e(f"buffer_load_dwordx4 v{vWO}, {sr(sWS,4)}, s{sT0} offen lds")
def w_packets(ja, jb):
    pk = []
    for t in range(3):
        p = []
        if t == 0:
            p += [f"s_mul_i32 s{sWA}, s{sG}, {jb - ja}", f"s_add_u32 s{sWA}, s{sWA}, {ja}",
                  f"s_mul_i32 s{sWM}, s{sWA}, {SLOT}", f"s_add_u32 s{sWM}, s{sWM}, s{sI3K}",
                  f"s_mul_i32 s{sWA}, s{sWA}, s{sWJ}", f"s_mov_b32 m0, s{sWM}", f"s_add_u32 s{sWA}, s{sWA}, s{sWB}"]
        else:
            p += [f"s_add_u32 m0, s{sWM}, {1024*t}", f"s_add_u32 s{sWA}, s{sWA}, s{sWP}"]
        p.append(f"buffer_load_dwordx4 v{vWO}, {sr(sWS,4)}, s{sWA} offen lds")
        pk.append(p)
    return pk

def zero16(a):
    z = vr(vCW, 2)
    e(f"v_mfma_f32_32x32x8_bf16 {vr(a,16)}, {z}, {z}, 0")
def pickup(k):
    e(f"v_add_u32 v{vT3}, {XB[k]}, v{vPK}")
    d = vX if k < 2 else vXP
    for s in range(6): e(f"ds_read_b128 {vr(d+4*s,4)}, v{vT3} offset:{1024*s}")
def conv_addr(k):
    if k < 4: e(f"v_add_u32 v{vCA}, {SB[k]}, v{vIN}")
    else:
        e(f"v_bfe_u32 v{vT1}, v{vTID}, 1, 3")
        e(f"v_mul_u32_u24 v{vT1}, {ROWP}, v{vT1}")
        e(f"v_sub_u32 v{vCA}, v{vIN}, v{vT1}")
        e(f"v_add_u32 v{vCA}, {SB[k]}, v{vCA}")

def conv_core(R):
    q = LQ()
    ring = [vXP, vXP + 8, vXP + 16] + ([vRES, vRES + 8, vRES + 16] if R == 2 else [vACC + 24, vACC + 32, vACC + 40])
    reads = []
    for qq in range(6):
        for f in range(3):
            for rp in range(4):
                d = ring[(qq * 3 + f) % 6] + 2 * rp
                reads.append((f"ds_read_b64 {vr(d,2)}, v{vCA} offset:{2*f*ROWP + (rp>>1)*776 + (rp&1)*192 + 8*qq}", qq * 3 + f))
    if OPT["cp"]: e("s_setprio 1")
    for r, t in reads[:14]: q.op(r, t)
    nxt = 14
    for idx in range(18):
        qq, f = divmod(idx, 3)
        q.wait(idx)
        for rho in range(R):
            a = vCW + 12 * qq + 4 * f + (2 if rho == 0 else 0)
            e(f"v_smfmac_f32_16x16x64_bf16 {vr(vACC + rho*24 + 4*qq, 4)}, {vr(a,4)}, {vr(ring[idx % 6], 8)}, v{vIDX}")
            lo, hi = (nxt + 2 * rho, nxt + 2 * rho + 2) if R == 2 else (nxt, nxt + 4)
            for r, t in reads[lo:hi]: q.op(r, t)
        nxt += 4
        if R == 2 and idx == OPT["gam"]:
            sk = newlab("gam")
            e(f"s_cmp_eq_u32 s{sFLG}, 0")
            e(f"s_cbranch_scc1 {sk}")
            e("s_barrier")
            lab(sk)
def conv_stats(R):
    e(f"v_add_u32 v{vT0}, s{sI1K}, v{vSTA}")
    for rho in range(R):
        a = vACC + rho * 24
        s2, q2 = vS + 4 * rho, vS + 4 * rho + 2
        e(f"v_pk_add_f32 {vr(s2,2)}, {vr(a,2)}, {vr(a+2,2)}")
        e(f"v_pk_mul_f32 {vr(q2,2)}, {vr(a,2)}, {vr(a,2)}")
        for i in range(1, 12):
            if i >= 2: e(f"v_pk_add_f32 {vr(s2,2)}, {vr(s2,2)}, {vr(a+2*i,2)}")
            e(f"v_pk_fma_f32 {vr(q2,2)}, {vr(a+2*i,2)}, {vr(a+2*i,2)}, {vr(q2,2)}")
    e(f"v_add_f32 v{vS}, v{vS}, v{vS+1}")
    e(f"v_add_f32 v{vS+1}, v{vS+2}, v{vS+3}")
    if R == 2:
        e(f"v_add_f32 v{vS+2}, v{vS+4}, v{vS+5}")
        e(f"v_add_f32 v{vS+3}, v{vS+6}, v{vS+7}")
    e(f"ds_write_b128 v{vT0}, {vr(vS,4)}")
    if OPT["cp"]: e("s_setprio 0")
    e("s_waitcnt lgkmcnt(0)")
def conv(k):
    cm(f"======== conv {k}")
    if k in (2, 3): pickup(k - 2)
    if k < 4:
        call("L_core")
        e(f"v_add_u32 v{vT3}, {SB[k]}, v{vRD}")
        d = vRES1 if k < 2 else vRES
        for i in range(12): e(f"ds_read_b64 {vr(d+2*i,2)}, v{vT3} offset:{32*(i>>1) + 8*(i&1)}")
        call("L_stats")
    else:
        conv_core(1)
        pickup(2)
        conv_stats(1)

def norm_reads(R):
    tb = vXP if R == 2 else vACC + 24
    for w in range(4): e(f"ds_read_b128 {vr(tb+4*w,4)}, v{vSTA} offset:{1024*w}")
def norm_body(R, packets):
    tb = vXP if R == 2 else vACC + 24
    ops = []
    o = ops.append
    for i in range(2 * R): o(f"v_add_f32 v{tb+i}, v{tb+i}, v{tb+4+i}")
    for i in range(2 * R): o(f"v_add_f32 v{tb+8+i}, v{tb+8+i}, v{tb+12+i}")
    for i in range(2 * R): o(f"v_add_f32 v{tb+i}, v{tb+i}, v{tb+8+i}")
    rr = range(R)
    sm = [tb + 2 * r for r in rr]; sq = [tb + 2 * r + 1 for r in rr]
    for r in rr: o(f"v_mul_f32 v{sm[r]}, {hex(f2u(1.0/96))}, v{sm[r]}")
    for r in rr: o(f"v_mul_f32 v{sq[r]}, {hex(f2u(1.0/96))}, v{sq[r]}")
    for r in rr: o(f"v_fma_f32 v{sq[r]}, -v{sm[r]}, v{sm[r]}, v{sq[r]}")
    for r in rr: o(f"v_max_f32 v{sq[r]}, 0, v{sq[r]}")
    for r in rr: o(f"v_add_f32 v{sq[r]}, {hex(f2u(1e-5))}, v{sq[r]}")
    for r in rr: o(f"v_rsq_f32 v{sq[r]}, v{sq[r]}")
    o("s_nop 0")
    for r in rr: o(f"v_mul_f32 v{sq[r]}, {hex(f2u(SC))}, v{sq[r]}")
    for r in rr: o(f"v_mul_f32 v{sm[r]}, v{sm[r]}, v{sq[r]}")
    for rho in rr:
        a = vACC + rho * 24
        for oc in range(3):
            for i in range(8): o(f"v_fma_f32 v{a+8*oc+i}, v{a+8*oc+i}, v{sq[rho]}, -v{sm[rho]}")
            for i in range(4): o(f"v_cvt_pk_bf16_f32 v{a+4*oc+i}, v{a+8*oc+2*i}, v{a+8*oc+2*i+1}")
            o(f"ds_write_b128 v{vT0}, {vr(a+4*oc,4)} offset:{rho*12288 + 512*oc}")
    pk = list(packets)
    if OPT["nm"] & 1:
        ops = [x for x in ops if not x.startswith("ds_write")] + [x for x in ops if x.startswith("ds_write")]
    if OPT["nm"] & 2:
        o2 = []
        for x in ops:
            o2 += ["s_setprio 2", x, "s_setprio 0"] if x.startswith("ds_write") else [x]
        ops = o2
        pk = [["s_setprio 2"] + p + ["s_setprio 0"] for p in pk]
    def emit_pk():
        if pk:
            for x in pk.pop(0): (lab(x[:-1]) if x.endswith(":") else e(x))
    fs = (lambda i: stamp(i, True)) if (OPT["fine"] == 7 and R == 2 and not pk) or (OPT["fine"] == 6 and R == 2 and pk) else (lambda i: None)
    fs(2)
    if not OPT["nm"] & 1:
        emit_pk(); emit_pk()
    e("s_waitcnt lgkmcnt(0)")
    fs(3)
    step = max(1, len(ops) // max(1, len(pk))) if pk and not OPT["nm"] & 1 else 0
    nw = 0
    for i, x in enumerate(ops):
        e(x)
        if i == 28: fs(4)
        if x.startswith("ds_write"):
            fs(5 + nw); nw += 1
        if step and (i + 1) % step == 0: emit_pk()
    while pk: emit_pk()
    e("s_waitcnt lgkmcnt(0)")
    fs(11)
def guarded():
    out = [dma_packet(g, j) for g, j in ALLP[:7]]
    sk = newlab("gd")
    out.append([f"s_cmp_eq_u32 s{sDM}, 0", f"s_cbranch_scc1 {sk}"] + dma_packet(1, 3) + [sk + ":"])
    return out
def norm(k, prep, nextk):
    cm(f"======== norm {k}")
    if (OPT["fine"] == 7 and k >= 2) or (OPT["fine"] == 6 and k < 2): stamp(1, True)
    if OPT["nm"] & 6: e("s_setprio 2")
    norm_reads(2)
    late = (OPT["nm"] & 1) and (k == 2 or (k == 3 and not OPT["nm"] & 4))
    if not late: prep()
    if OPT["nm"] & 6: e("s_setprio 0")
    e(f"v_add_u32 v{vT0}, {XB[k]}, v{vXW}")
    call("L_normd" if ((k == 0 and not OPT["b3e"]) or (k == 1 and not OPT["b4a"])) else "L_norm")
    if late: prep()
    if nextk is not None:
        for i in range(3 if nextk < 4 else 2): zero16(vACC + 16 * i)
        conv_addr(nextk)
    if (OPT["fine"] == 7 and k >= 2) or (OPT["fine"] == 6 and k < 2): stamp(12, True)

def load_cw():
    for q in range(6):
        for i in range(5):
            e(f"ds_read_b64_tr_b16 {vr(vCW+12*q+2+2*i,2)}, v{vS} offset:{960*i + 8*q}")

def setup_conv(grp):
    e(f"v_and_b32 v{vT0}, 14, v0")
    e(f"v_mul_u32_u24 v{vRD}, {ROWP}, v{vT0}")
    e(f"v_and_b32 v{vT0}, 1, v0")
    e(f"v_mul_u32_u24 v{vT0}, 776, v{vT0}")
    e(f"v_add_u32 v{vRD}, v{vRD}, v{vT0}")
    e(f"v_bfe_u32 v{vT2}, v0, 4, 1")
    e(f"v_mul_u32_u24 v{vT0}, {ROWP}, v{vT2}")
    e(f"v_bfe_u32 v{vT3}, v0, 5, 1")
    e(f"v_mul_u32_u24 v{vT1}, 384, v{vT3}")
    e(f"v_add3_u32 v{vIN}, v{vRD}, v{vT0}, v{vT1}")
    e(f"s_mul_i32 s{sT0}, s{sI4}, 48")
    e(f"v_add_u32 v{vIN}, s{sT0}, v{vIN}")
    e(f"v_mul_u32_u24 v{vT0}, 192, v{vT2}")
    e(f"v_lshl_add_u32 v{vPX}, v{vT3}, 4, v{vT0}")
    e(f"s_lshr_b32 s{sT0}, s{sI4}, 1")
    e(f"s_mul_i32 s{sT1}, s{sT0}, {ROWP}")
    e(f"s_and_b32 s{sT2}, s{sI4}, 1")
    e(f"s_mul_i32 s{sT3}, s{sT2}, 392")
    e(f"s_add_u32 s{sT1}, s{sT1}, s{sT3}")
    e(f"s_add_u32 s{sT1}, s{sT1}, {2*ROWP + 384}")
    e(f"v_add3_u32 v{vRD}, v{vRD}, v{vPX}, s{sT1}")
    e(f"v_mul_u32_u24 v{vT0}, 6144, v{vT3}")
    e(f"v_and_b32 v{vT2}, 31, v0")
    e(f"v_lshl_add_u32 v{vT0}, v{vT2}, 4, v{vT0}")
    e(f"s_mul_i32 s{sT0}, s{sI4}, 1536")
    e(f"v_add_u32 v{vXW}, s{sT0}, v{vT0}")
    e(f"s_mul_i32 s{sT0}, s{sI4}, 6144")
    e(f"v_add_u32 v{vPK}, s{sT0}, v{vLIN}")
    e(f"v_and_b32 v{vT2}, 3, v0")
    e(f"v_mul_u32_u24 v{vIDX}, 0x5555, v{vT2}")
    e(f"s_mov_b32 s{sFLG}, 0")

def setup_ffn():
    e(f"s_lshr_b32 s{sG}, s{sW}, 2")
    e(f"s_cmp_lt_u32 s{sI4}, 2")
    e(f"s_cselect_b32 s{sWS}, s96, s98")
    e(f"s_cselect_b32 s{sWS+1}, s97, s99")
    e(f"s_mov_b32 s{sWS+2}, 73728")
    e(f"s_mov_b32 s{sWS+3}, 0x20000")
    e(f"s_movk_i32 s{sWP}, 1024")
    e(f"s_cselect_b32 s{sWP}, 12288, s{sWP}")
    e(f"s_cselect_b32 s{sWJ}, 64, 6144")
    e(f"s_cselect_b32 s{sT0}, 768, 64")
    e(f"s_and_b32 s{sT1}, s{sI4}, 1")
    e(f"s_mul_i32 s{sWB}, s{sWP}, 3")
    e(f"s_mul_i32 s{sWB}, s{sWB}, s{sT1}")
    e(f"s_mul_i32 s{sI3K}, s{sI4}, 3072")
    e(f"v_bfe_u32 v{vT0}, v0, 2, 4")
    e(f"v_mul_u32_u24 v{vT0}, s{sT0}, v{vT0}")
    e(f"v_and_b32 v{vT2}, 3, v0")
    e(f"v_lshl_add_u32 v{vWO}, v{vT2}, 4, v{vT0}")
def setup_ffn2():
    e(f"s_mov_b32 s{sO+2}, {XBYTES}")
    e(f"s_mov_b32 s{sO+3}, 0x20000")
    e(f"v_and_b32 v{vT1}, 14, v0")
    e(f"s_mov_b32 s{sT3}, {ROWB}")
    e(f"v_mul_lo_u32 v{vT0}, v{vT1}, s{sT3}")
    e(f"v_and_b32 v{vT1}, 1, v0")
    e(f"v_mul_u32_u24 v{vT1}, 768, v{vT1}")
    e(f"v_add3_u32 v{vPX}, v{vPX}, v{vT0}, v{vT1}")
    e(f"s_lshr_b32 s{sT0}, s{sI4}, 1")
    e(f"s_mul_i32 s{sT0}, s{sT0}, {ROWB}")
    e(f"s_and_b32 s{sT2}, s{sI4}, 1")
    e(f"s_mul_i32 s{sT2}, s{sT2}, 384")
    e(f"s_add_u32 s{sT0}, s{sT0}, s{sT2}")
    e(f"s_cmp_eq_u32 s{sG}, 0")
    e(f"s_cselect_b32 s{sJ1}, s{sBASE}, s{sBASE+1}")
    e(f"s_cselect_b32 s{sJ2}, s{sBASE+2}, s{sBASE+3}")
    e(f"s_add_u32 s{sJ1}, s{sJ1}, s{sT0}")
    e(f"s_add_u32 s{sJ2}, s{sJ2}, s{sT0}")
    e(f"v_bfe_u32 v{vT0}, v0, 4, 1")
    e(f"v_lshlrev_b32 v{vT0}, 5, v{vT0}")
    e(f"v_and_b32 v{vT2}, 1, v0")
    e(f"v_lshl_add_u32 v{vT0}, v{vT2}, 4, v{vT0}")
    e(f"v_bfe_u32 v{vT2}, v0, 1, 1")
    e(f"v_lshl_add_u32 v{vT0}, v{vT2}, 3, v{vT0}")
    e(f"v_bfe_u32 v{vT2}, v0, 2, 2")
    e(f"v_bfe_u32 v{vT3}, v0, 5, 1")
    e(f"v_lshl_add_u32 v{vT2}, v{vT3}, 3, v{vT2}")
    e(f"v_lshl_add_u32 v{vA1}, v{vT2}, 6, v{vT0}")
    e(f"v_mul_u32_u24 v{vT2}, 192, v{vT2}")
    e(f"v_add_u32 v{vA2}, v{vT2}, v{vT0}")
    for r, v in ((sC0, C0), (sSC, SC)):
        e(f"s_mov_b32 s{r}, {hex(f2u(v))}")
        e(f"s_mov_b32 s{r+1}, {hex(f2u(v))}")

class Addr:
    def __init__(self): self.b = {vA1: 0, vA2: 0}
    def off(self, reg, slot, extra): return (slot - self.b[reg]) * SLOT + extra
    def ensure(self, reg, slot):
        if not (0 <= (slot - self.b[reg]) * SLOT and (slot - self.b[reg] + 1) * SLOT <= 65536):
            nb = {0: 0, 5: 1, 9: 7, 6: 6}.get(slot, slot)
            d = (nb - self.b[reg]) * SLOT
            if d > 0: e(f"v_add_u32 v{reg}, {d}, v{reg}")
            else: e(f"v_subrev_u32 v{reg}, {-d}, v{reg}")
            self.b[reg] = nb
AD = Addr()
def f1_reads(slot):
    AD.ensure(vA1, slot)
    return [f"ds_read_b64_tr_b16 {vr(vF1+4*s+2*t,2)}, v{vA1} offset:{AD.off(vA1, slot, (16*s+4*t)*64)}" for s in range(6) for t in range(2)]
def f2_reads(slot):
    AD.ensure(vA2, slot)
    return [f"ds_read_b64_tr_b16 {vr(vF2+12*s+4*T+2*t,2)}, v{vA2} offset:{AD.off(vA2, slot, 6144+(16*s+4*t)*192+64*T)}" for s in range(2) for T in range(3) for t in range(2)]
def g1(h, x):
    return [f"v_mfma_f32_32x32x16_bf16 {vr(h,16)}, {vr(vF1+4*s,4)}, {vr(x+4*s,4)}, {vr(h,16) if s else 0}" for s in range(6)]
def g2(o, y, zero=False):
    return [f"v_mfma_f32_32x32x16_bf16 {vr(o+16*T,16)}, {vr(vF2+12*s+4*T,4)}, {vr(y+8*s,4)}, {0 if (zero and s==0) else vr(o+16*T,16)}" for s in range(2) for T in range(3)]
def cvts(h, s): return [f"v_cvt_pk_bf16_f32 v{h+8*s+i}, v{h+8*s+2*i}, v{h+8*s+2*i+1}" for i in range(4)]
def pz(h):
    a = [f"v_pk_fma_f32 {vr(vT+2*i,2)}, {vr(h+2*i,2)}, {vr(h+2*i,2)}, {sr(sC0)}" for i in range(8)]
    b = [f"v_pk_mul_f32 {vr(vT+2*i,2)}, {vr(vT+2*i,2)}, {vr(h+2*i,2)} neg_lo:[1,0] neg_hi:[1,0]" for i in range(8)]
    return a + b
PEND = []
FQ = LQ()
def pphase(ops, ds, tag, nst=1):
    for r in ds: FQ.op(r, tag)
    for i in range(nst):
        if PEND:
            p = PEND.pop(0)
            for x in (p if isinstance(p, list) else [p]): e(x)
    for o in ops: e(o)
def mphase(mf, fill):
    for i in range(6):
        if mf: e(mf[i])
        for o in fill[i]: e(o)
def res_unpack(o, src):
    for i in range(24):
        e(f"v_lshlrev_b32 v{o+2*i}, 16, v{src+i}")
        e(f"v_and_b32 v{o+2*i+1}, 0xffff0000, v{src+i}")
def out_pack(dst, o, sbase, mod):
    for i in range(24): e(f"v_cvt_pk_bf16_f32 v{dst+i}, v{o+2*i}, v{o+2*i+1}")
    for i in (0, 2, 4):
        for r in range(4): e(f"v_permlane16_swap_b32 v{dst+4*i+r}, v{dst+4*i+4+r}")
    for i in range(6):
        PEND.append(f"buffer_store_dwordx4 {vr(dst+4*i,4)}, v{vPS}, {sr(sO,4)}, s{sbase} offen offset:{32*(i&~1) + 192*(i&1)} {mod}")
def hook(hooks, p, j):
    for f in hooks.get((p, j), []): f()
def ffn_prologue(steps, hooks):
    if not OPT["ub"]: res_unpack(vO, vRES1)
    for r in f1_reads(steps[0][0]): e(r)
    if not OPT["ub"]: res_unpack(vO2, vRES)
    else:
        sk = newlab("ub")
        e(f"s_cmp_lg_u32 s{sG}, 0")
        e(f"s_cbranch_scc1 {sk}")
        call("L_unp2")
        lab(sk)
    hook(hooks, "pre", 0)
    e("s_waitcnt lgkmcnt(0)")
    for m in g1(vH[0], steps[0][1]): e(m)
    if steps[1][0] != steps[0][0]:
        for r in f1_reads(steps[1][0]): FQ.op(r, "F1")
    else: e("s_nop 11")
    for o in pz(vH[0]): e(o)
def ffn_step(steps, hooks, u, nst=1):
    N = len(steps)
    cm(f"ustep {u}")
    ex = [f"v_exp_f32 v{vT+i}, v{vT+i}" for i in range(16)]
    rc = [f"v_rcp_f32 v{vT+i}, v{vT+i}" for i in range(16)]
    h, hn = vH[u & 1], vH[(u + 1) & 1]
    c = cvts(hn, 1) if u >= 1 else []
    hook(hooks, "m1", u)
    FQ.wait("F2")
    mphase(g2(steps[u-1][2], hn, steps[u-1][3]) if u >= 1 else [],
           [ex[0:2] + c[0:2], ex[2:4] + c[2:4], ex[4:7], ex[7:10], ex[10:13], ex[13:16]])
    hook(hooks, "p1", u)
    d = [f"v_pk_fma_f32 {vr(vT+2*i,2)}, {vr(vT+2*i,2)}, {sr(sSC)}, {sr(sSC)}" for i in range(8)]
    hasds = (u == 0 or steps[u][0] != steps[u-1][0])
    dd = OPT["dd"] if not hasds else 0
    d = [f"v_fma_f32 v{vT+i}, v{vT+i}, s{sSC}, s{sSC}" for i in range(2 * dd)] + d[dd:]
    pphase(d, f2_reads(steps[u][0]) if (u == 0 or steps[u][0] != steps[u-1][0]) else [], "F2", nst)
    hook(hooks, "m2", u)
    FQ.wait("F1")
    nf = OPT["df"]
    if OPT["ca"] and not (u + 2 < N and steps[u+2][0] != steps[u+1][0]): nf = OPT["ca"]
    ys = [f"v_mul_f32 v{h+i}, v{h+i}, v{vT+i}" for i in range(2 * nf)]
    mphase(g1(hn, steps[u+1][1]) if u + 1 < N else [],
           [rc[0:3], rc[3:6], rc[6:9], rc[9:12], rc[12:14] + ys[:2], rc[14:16] + ys[2:]])
    y = [f"v_pk_mul_f32 {vr(h+2*i,2)}, {vr(h+2*i,2)}, {vr(vT+2*i,2)}" for i in range(nf, 8)]
    hook(hooks, "p2", u)
    pphase(y + cvts(h, 0) + (pz(hn) if u + 1 < N else []),
           f1_reads(steps[u+2][0]) if (u + 2 < N and steps[u+2][0] != steps[u+1][0]) else [], "F1", nst)
    hook(hooks, "post", u)
    if OPT["fine"] == 9 and u % 2 == 1 and u < 24: stamp(1 + u // 2, True)
def ffn_epilogue(steps):
    h = vH[(len(steps) - 1) & 1]
    for o in cvts(h, 1): e(o)
    e("s_waitcnt lgkmcnt(0)")
    for m in g2(steps[-1][2], h, steps[-1][3]): e(m)

e("s_cmp_ge_u32 s2, 256")
e("s_cbranch_scc1 L_end")
e(f"s_load_dwordx2 s[{sX}:{sX+1}], s[0:1], 0")
e("s_load_dwordx4 s[24:27], s[0:1], 8")
e("s_load_dwordx4 s[96:99], s[0:1], 24")
e(f"s_load_dwordx2 s[{sO}:{sO+1}], s[0:1], 40")
if OPT["stamp"]:
    e(f"s_load_dwordx2 s[{sDBG}:{sDBG+1}], s[0:1], 56")
    e(f"s_mov_b32 s{sDBG+2}, {1 << 20}")
    e(f"s_mov_b32 s{sDBG+3}, 0x20000")
    e(f"s_memrealtime s[{sTS+28}:{sTS+29}]")
    stamp(0)
if OPT["padat"] >= 0: e("s_memrealtime s[64:65]")
e(f"s_getpc_b64 {sr(sPC)}")
lab("L_pc")
def code_pf(mask=None, add=0):
    if mask: e(f"v_and_b32 v{vT0}, {mask}, v0")
    e(f"v_lshlrev_b32 v{vT0}, 7, v{vT0 if mask else 0}")
    if add: e(f"v_add_u32 v{vT0}, {add}, v{vT0}")
    e(f"v_min_u32 v{vT0}, L_end-L_pc, v{vT0}")
    e(f"global_load_dword v255, v{vT0}, {sr(sPC)}")
if OPT["cpf"] == 1: code_pf()
e(f"s_mov_b32 s{sX+2}, {XBYTES}")
e(f"s_mov_b32 s{sX+3}, 0x20000")
e(f"v_lshrrev_b32 v{vT0}, 6, v0")
e(f"v_and_b32 v{vT1}, 63, v0")
e(f"v_readfirstlane_b32 s{sW}, v{vT0}")
e(f"v_lshlrev_b32 v{vLIN}, 4, v{vT1}")
e(f"s_lshr_b32 s{sCU}, s2, 3")
e(f"s_and_b32 s3, s2, 7")
e(f"s_mul_i32 s3, s3, 6")
e(f"s_and_b32 s{sI4}, s{sW}, 3")
e(f"s_lshl_b32 s{sI1K}, s{sI4}, 10")
e(f"v_mov_b32 v{vFL}, 0")
block_base(0)
e(f"s_cmp_ge_u32 s{sW}, 4")
e(f"s_cbranch_scc1 L_grpB")

def cw_addr():
    for i in range(7): e(f"v_pk_mov_b32 {vr(vCW+12*i,2)}, 0, 0")
    e(f"v_bfe_u32 v{vT0}, v0, 3, 3")
    e(f"v_and_b32 v{vT2}, 3, v0")
    e(f"v_sub_u32 v{vT0}, v{vT0}, v{vT2}")
    e(f"v_cmp_gt_u32 {sr(sT2)}, 5, v{vT0}")
    e(f"v_mul_u32_u24 v{vT0}, 192, v{vT0}")
    e(f"v_bfe_u32 v{vT2}, v0, 2, 1")
    e(f"s_movk_i32 s{sT0}, 5120")
    e(f"v_mad_u32_u24 v{vT0}, v{vT2}, s{sT0}, v{vT0}")
    e(f"v_mov_b32 v{vT2}, s{sT0}")
    e(f"v_cndmask_b32 v{vT0}, v{vT2}, v{vT0}, {sr(sT2)}")
    e(f"s_mul_i32 s{sT0}, s{sI4}, 48")
    e(f"s_add_u32 s{sT0}, s{sT0}, {DWS}")
    e(f"v_add_u32 v{vS}, s{sT0}, v{vT0}")
    for i in range(3): zero16(vACC + 16 * i)

e(f"v_subrev_u32 v{vT1}, 192, v{vLIN}")
e(f"s_movk_i32 s{sT0}, 576")
e(f"v_cmp_gt_u32 {sr(sT2)}, s{sT0}, v{vT1}")
e(f"s_cmp_eq_u32 s{sW}, 0")
e(f"s_cselect_b64 {sr(sT0)}, -1, 0")
e(f"v_cndmask_b32 v{vT1}, -1, v{vT1}, {sr(sT2)}")
e(f"v_cndmask_b32 v{vT1}, v{vT1}, v{vLIN}, {sr(sT0)}")
calc_rel([0, 1])
dma_prep(0, (0, 1))
e("s_waitcnt lgkmcnt(0)")
e(f"s_mov_b32 s{sDS}, s26")
e(f"s_mov_b32 s{sDS+1}, s27")
e(f"s_movk_i32 s{sDS+2}, 4800")
e(f"s_mov_b32 s{sDS+3}, 0x20000")
e(f"s_add_u32 m0, s{sI1K}, {DWS}")
e(f"s_mul_i32 s{sT0}, s{sI4}, 576")
e(f"buffer_load_dwordx4 v{vLIN}, {sr(sDS,4)}, s{sI1K} offen lds")
e(f"s_mul_i32 s{sT1}, s{sI4}, 960")
e(f"s_sub_u32 s{sT0}, s{sT0}, 576")
e(f"s_add_u32 s{sT1}, s{sT1}, {DWL}")
e(f"s_cmp_eq_u32 s{sW}, 0")
e(f"s_cselect_b32 s{sDS}, s26, s24")
e(f"s_cselect_b32 s{sDS+1}, s27, s25")
e(f"s_cselect_b32 s{sDS+2}, s{sDS+2}, 1728")
e(f"s_cselect_b32 m0, {DWS + 4096}, s{sT1}")
e(f"s_cselect_b32 s{sT0}, 4096, s{sT0}")
e(f"buffer_load_dwordx4 v{vT1}, {sr(sDS,4)}, s{sT0} offen lds")
n = dma_now([(g, j) for g in range(3) for j in (0, 1)], None)
if OPT["cpf"] == 2:
    code_pf(); n += 1
stamp(1)
cw_addr()
e(f"v_add_u32 v{vSTA}, {STB[0]}, v{vLIN}")
e(f"s_waitcnt vmcnt({n})")
bar(2)
call("L_setup")
conv_addr(0)
calc_rel([2, 3])
e(f"s_waitcnt vmcnt({1 if OPT['cpf'] == 2 else 0}) lgkmcnt(0)")
bar(3)
conv(0)
call("L_setup2")
dma_prep(3)
bar(4)
B3LO = [(0, 0), (0, 1), (0, 2), (0, 3), (1, 0), (1, 1), (1, 2)]
B3HI = [(1, 3), (2, 0), (2, 1), (2, 2), (2, 3)]
norm(0, (lambda: dma_now(B3LO, None)) if OPT["b3e"] else (lambda: e(f"s_mov_b32 s{sDM}, 0")), 2)
e(f"s_mov_b32 s{sFLG}, 1")
bar(5)
conv(2)
if OPT["b4a"]:
    dma_prep(4)
    n4 = dma_now(ALLP[:8], (1, 3))
    wait2(n4)
else: e("s_waitcnt vmcnt(0)")
bar(6)
norm(2, lambda: dma_w([0]), 4)
e("s_waitcnt vmcnt(3)")
bar(7)
conv(4)
call("L_setup3")
if OPT["ub"]: call("L_unp1")
e("s_waitcnt vmcnt(0)")
bar(8)
norm_reads(1)
e(f"v_add_u32 v{vT0}, {XB[4]}, v{vXW}")
norm_body(1, w_packets(1, 1) + w_packets(2, 2) + w_packets(3, 3))
e("s_branch L_ffn")
lab("L_setup")
load_cw(); setup_conv(0); ret()
lab("L_setup2")
for k in (2, 3, 4): block_base(k)
setup_ffn(); ret()
lab("L_setup3"); setup_ffn2(); ret()
if OPT["ub"]:
    lab("L_unp1"); res_unpack(vO, vRES1); ret()
    lab("L_unp2"); res_unpack(vO2, vRES); ret()
lab("L_core"); conv_core(2); ret()
lab("L_stats"); conv_stats(2); ret()
if not (OPT["b3e"] and OPT["b4a"]):
    lab("L_normd"); norm_body(2, guarded()); ret()
lab("L_norm"); norm_body(2, []); ret()
lab("L_grpB")
if OPT["cpf"] == 2: code_pf()
if OPT["cpf"] == 3:
    code_pf(255); code_pf(255, 32768)
calc_rel([2, 3])
dma_prep(0, (2, 3))
e("s_waitcnt lgkmcnt(0)")
n = dma_now([(g, j) for g in range(3) for j in (2, 3)], (2, 3))
stamp(1)
cw_addr()
e(f"v_pk_mov_b32 {vr(vCW+2,2)}, 0, 0")
sk = newlab("zr")
e(f"s_cmp_ge_u32 s{sI4}, 2")
e(f"s_cbranch_scc1 {sk}")
e(f"s_mul_i32 s{sT0}, s{sI4}, 3840")
e(f"s_add_u32 s{sT0}, s{sT0}, {DWL}")
e(f"v_add_u32 v{vT0}, s{sT0}, v{vLIN}")
e(f"ds_write_b128 v{vT0}, {vr(vCW,4)}")
lab(sk)
e(f"v_add_u32 v{vSTA}, {STB[1]}, v{vLIN}")
block_base(1)
calc_rel([0, 1])
dma_prep(1)
n1 = dma_now(ALLP[:OPT["b1p"]], (2, 3))
e("s_waitcnt lgkmcnt(0)")
bar(2)
n1 += dma_now(ALLP[OPT["b1p"]:OPT["b1a"]], (2, 3))
call("L_setup")
conv_addr(1)
e(f"s_waitcnt vmcnt({n1})")
bar(3)
dma_now(ALLP[OPT["b1a"]:], (2, 3))
block_base(2)
dma_prep(2)
n2 = dma_now(ALLP, (2, 3))
call("L_setup2")
wait2(n2, "lgkmcnt(0)")
if OPT["wpf"]:
    sk = newlab("wpf")
    e(f"s_cmp_lg_u32 s{sW}, 7")
    e(f"s_cbranch_scc1 {sk}")
    e(f"s_cmp_ge_u32 s{sCU}, 18")
    e(f"s_cbranch_scc1 {sk}")
    e(f"s_cmp_lt_u32 s{sCU}, 9")
    e(f"s_cselect_b32 s{sT0}, s96, s98")
    e(f"s_cselect_b32 s{sT1}, s97, s99")
    e(f"s_cselect_b32 s{sT2}, 0, 9")
    e(f"s_sub_u32 s{sT2}, s{sCU}, s{sT2}")
    e(f"s_lshl_b32 s{sT2}, s{sT2}, 13")
    e(f"v_lshl_add_u32 v{vT0}, v{vLIN}, 3, s{sT2}")
    e(f"global_load_dword v{vX}, v{vT0}, {sr(sT0)}")
    lab(sk)
bar(4)
conv(1)
call("L_setup3")
e("s_waitcnt vmcnt(0)")
bar(5)
n4 = [0]
def prep1():
    dma_prep(3, g0=False)
    e("s_barrier")
    dma_now(B3HI, (2, 3))
    if OPT["b4a"]: return
    dma_prep(4)
    e(f"s_cmp_lt_u32 s{sI4}, 2")
    e(f"s_cselect_b32 s{sDM}, 1, 0")
    n4[0] = 7
norm(1, prep1, 3)
e(f"s_waitcnt vmcnt({n4[0]})")
bar(6)
conv(3)
e("s_waitcnt vmcnt(0)")
bar(7)
norm(3, lambda: dma_w([4, 5]), None)
if OPT["ub"]:
    call("L_unp1"); call("L_unp2")
e("s_waitcnt vmcnt(0)")
bar(8)
pickup(3)
lab("L_ffn")
stamp(9)

KS = OPT["ks"]
steps24 = [(j, vX, vO, False) for j in ORDER[:KS]] + [(j, x, o, False) for j in ORDER[KS:] for x, o in ((vX, vO), (vXP, vO2))] + [(j, vXP, vO2, False) for j in ORDER[:KS]]
first = lambda j: min(u for u, st in enumerate(steps24) if st[0] == j)
steps30 = steps24 + [(12 + j, vX, vO, j == 0) for j in range(6)]
hooks = {}
def addhook(p, j, f): hooks.setdefault((p, j), []).append(f)
def h_ps():
    e(f"v_bfe_u32 v{vT0}, v0, 4, 1")
    e(f"v_mul_u32_u24 v{vT0}, 160, v{vT0}")
    e(f"v_sub_u32 v{vPS}, v{vPX}, v{vT0}")
addhook("pre", 0, h_ps)
def h_bar(grp):
    def f():
        sk = None
        if grp is not None:
            sk = newlab("gb")
            e(f"s_cmp_lg_u32 s{sG}, {grp}")
            e(f"s_cbranch_scc1 {sk}")
        e("s_waitcnt vmcnt(0)")
        e("s_barrier")
        if sk: lab(sk)
    return f
PEND.extend(w_packets(9, 10))
for ua, ub in ((OPT["ba1"], OPT["bb1"]), (OPT["ba2"], OPT["bb2"])):
    if ua == ub: addhook("p2", ua, h_bar(None))
    else:
        addhook("p2", ua, h_bar(0)); addhook("p2", ub, h_bar(1))
assert max(OPT["ba1"], OPT["bb1"]) <= first(1) - 2 and max(OPT["ba2"], OPT["bb2"]) <= first(9) - 2 and min(OPT["ba2"], OPT["bb2"]) >= max(OPT["ba1"], OPT["bb1"]) + 3 and min(OPT["ba1"], OPT["bb1"]) >= 1
addhook("p2", max(OPT["ba1"], OPT["bb1"]), lambda: PEND.extend(w_packets(11, 6) + w_packets(7, 8)))
def setprio_b(p):
    sk = newlab("prio")
    e(f"s_cmp_lt_u32 s{sW}, 4")
    e(f"s_cbranch_scc1 {sk}")
    e(f"s_setprio {p}")
    lab(sk)
P = OPT["prio"]
if OPT["pat"]:
    pat = OPT["pat"][1:]
    cur = "0"
    for j, ch in enumerate(pat):
        if ch != cur:
            addhook("m1", j, (lambda p: (lambda: setprio_b(p)))(int(ch))); cur = ch
else:
  for j in range(0, 20):
    if j < OPT["pfix"]:
        if P and (j + 1) % P == 0: addhook("post", j, (lambda p: (lambda: setprio_b(p)))(((j + 1) // P) & 1))
    elif j == OPT["pfix"]: addhook("post", j, lambda: setprio_b(1))
addhook("post", 12, lambda: stamp(10))
addhook("post", 23 - KS, lambda: out_pack(vXP if KS < 3 else vO, vO, sJ1, OPT["st1"]))
assert KS == 0 or KS >= 3
ffn_prologue(steps24, hooks)
for j in range(22): ffn_step(steps24 if j < 21 else steps24, hooks, j)
e(f"s_cmp_ge_u32 s{sW}, 4")
e("s_cbranch_scc1 L_tailB")
save = dict(AD.b); saveq = list(FQ.q); savep = list(PEND)
for j in range(22, 24): ffn_step(steps24, hooks, j)
ffn_epilogue(steps24)
while PEND: e(PEND.pop(0))
e("s_nop 10")
out_pack(vO2, vO2, sJ2, OPT["st3"])
while PEND: e(PEND.pop(0))
stamp(11)
e("s_barrier"); e("s_barrier")
stamp(12)
e("s_branch L_fin")
lab("L_tailB")
AD.b = save; FQ.q = saveq; PEND.extend(savep)
vSR = vO2 + 24
def h_x4():
    e(f"s_lshr_b32 s{sT0}, s{sI4}, 1")
    e(f"s_mul_i32 s{sT1}, s{sT0}, 6144")
    e(f"s_add_u32 s{sT1}, s{sT1}, {XB[4]}")
    e(f"v_add_u32 v{vT0}, s{sT1}, v{vLIN}")
    for s_ in range(6): FQ.op(f"ds_read_b128 {vr(vX+4*s_,4)}, v{vT0} offset:{1024*s_}", "F1")
    e(f"v_bfe_u32 v{vT1}, v{vTID}, 1, 3")
    e(f"s_mov_b32 s{sT1}, {ROWB}")
    e(f"v_mul_lo_u32 v{vT1}, v{vT1}, s{sT1}")
    e(f"v_sub_u32 v{vIN}, v{vPX}, v{vT1}")
    e(f"s_mul_i32 s{sT0}, s{sT0}, 384")
    e(f"s_add_u32 s{sT0}, s{sT0}, s{sBASE+4}")
    e(f"s_and_b32 s{sT1}, s{sI4}, 1")
    e(f"s_mul_i32 s{sT1}, s{sT1}, 128")
    e(f"s_add_u32 s{sSH}, s{sT0}, s{sT1}")
    e(f"v_sub_u32 v{vRD}, v{vPS}, v{vT1}")
addhook("p2", 22, h_x4)
def rebase(reg):
    def f():
        e(f"s_and_b32 s{sT0}, s{sW}, 1")
        e(f"s_mul_i32 s{sT0}, s{sT0}, {6*SLOT}")
        e(f"s_sub_u32 s{sT0}, s{sT0}, {AD.b[reg]*SLOT}")
        e(f"v_add_u32 v{reg}, s{sT0}, v{reg}")
        AD.b[reg] = 12
    return f
addhook("p2", 22, rebase(vA1))
addhook("p1", 24, rebase(vA2))
def h_o2():
    out_pack(vO2, vO2, sJ2, OPT["st2"])
    for t in range(4):
        PEND.insert(t, f"buffer_load_dwordx4 {vr(vSR+4*t,4)}, v{vIN}, {sr(sX,4)}, s{sSH} offen offset:{32*t}")
    global NAFTER
    NAFTER = len(PEND) - 4
addhook("post", 24, h_o2)
vQ = vO2
def h_early():
    assert not PEND
    e(f"s_mul_i32 s{sT0}, s{sI4}, 8192")
    e(f"v_add_u32 v{vT0}, s{sT0}, v{vLIN}")
    e(f"v_xor_b32 v{vT1}, 8192, v{vT0}")
    e(f"s_waitcnt vmcnt({NAFTER})")
    for i in range(16):
        e(f"v_lshlrev_b32 v{vQE+2*i}, 16, v{vSR+i}")
        e(f"v_and_b32 v{vQE+2*i+1}, 0xffff0000, v{vSR+i}")
    e("s_barrier")
vQE = 32
addhook("post", 28, h_early)
for j in range(22, 30):
    if j == 25 and KS: assert all("s%d offen offset" % sJ1 not in str(p) for p in PEND)
    ffn_step(steps30, hooks, j, 2 if (KS == 0 or j == 25) else 1)
assert not PEND
ffn_epilogue(steps30)
stamp(11)
vQ = vQE
vR = 208
e("s_nop 10")
e(f"s_bitcmp1_b32 s{sI4}, 0")
e("s_cbranch_scc1 L_odd")
for half in range(2):
    if half: lab("L_odd")
    keep, nk, send, nsd = (vO, 32, vO + 32, 16) if half == 0 else (vO + 32, 16, vO, 32)
    for u in range(nsd // 4): e(f"ds_write_b128 v{vT0}, {vr(send+4*u,4)} offset:{1024*u}")
    for i in range(nk // 2): e(f"v_pk_add_f32 {vr(vQ+2*i,2)}, {vr(vQ+2*i,2)}, {vr(keep+2*i,2)}")
    e("s_waitcnt lgkmcnt(0)")
    e("s_barrier")
    stamp(12)
    for u in range(nk // 4): e(f"ds_read_b128 {vr(vR+4*u,4)}, v{vT1} offset:{1024*u}")
    for t in range(nk // 16):
        e(f"s_waitcnt lgkmcnt({nk // 4 - 4*(t+1)})")
        for i in range(8): e(f"v_pk_add_f32 {vr(vQ+16*t+2*i,2)}, {vr(vQ+16*t+2*i,2)}, {vr(vR+16*t+2*i,2)}")
        for i in range(8): e(f"v_cvt_pk_bf16_f32 v{vO+8*t+i}, v{vQ+16*t+2*i}, v{vQ+16*t+2*i+1}")
        e("s_nop 1")
        for r in range(4): e(f"v_permlane16_swap_b32 v{vO+8*t+r}, v{vO+8*t+4+r}")
        for i in range(2):
            e(f"buffer_store_dwordx4 {vr(vO+8*t+4*i,4)}, v{vRD}, {sr(sO,4)}, s{sSH} offen offset:{64*t + 192*i} {OPT['st3']}")
    if half == 0: e("s_branch L_fin")
lab("L_fin")
if OPT["stamp"]:
    e("s_waitcnt vmcnt(0)")
    stamp(13)
    e(f"s_memrealtime s[{sTS+30}:{sTS+31}]")
    e("s_waitcnt lgkmcnt(0)")
    e(f"s_lshl_b32 s{sT0}, s2, 3")
    e(f"s_add_u32 s{sT0}, s{sT0}, s{sW}")
    e(f"s_lshl_b32 s{sT0}, s{sT0}, 6")
    e(f"v_mov_b32 v{vT0}, 0")
    for i in range(16):
        e(f"v_mov_b32 v{vT1}, s{sTS+2*i}")
        e(f"buffer_store_dword v{vT1}, v{vT0}, {sr(sDBG,4)}, s{sT0} offen offset:{4*i}")
lab("L_end")
e("s_endpgm")

ref = open(f"cdna_kernels/{NAME}.s.ref").read().splitlines()
head = [l for l in ref if l.startswith(";") and "@launch" not in l]
out = "\n".join(head) + f"\n; @launch grid=(256,1,1) block=(512,1,1) lds={LDS_TOTAL}\n"
out += f""".amdgcn_target "amdgcn-amd-amdhsa--gfx950"
.text
.globl {NAME}_kernel
.p2align 8
.type {NAME}_kernel,@function
{NAME}_kernel:
""" + "\n".join(L) + f"""
.section .rodata,"a"
.p2align 6
.amdhsa_kernel {NAME}_kernel
  .amdhsa_next_free_vgpr 256
  .amdhsa_next_free_sgpr 102
  .amdhsa_accum_offset 256
  .amdhsa_group_segment_fixed_size 0
  .amdhsa_kernarg_size 64
  .amdhsa_user_sgpr_count 2
  .amdhsa_user_sgpr_kernarg_segment_ptr 1
  .amdhsa_system_sgpr_workgroup_id_x 1
.end_amdhsa_kernel
"""
open(sys.argv[1], "w").write(out)
```

```python
import sys, struct, math
NAME = "standalone__modern_conv_block_replknet__vision"
OPT = dict(stamp=0, fine=-1, pre=0, prio=2, pfix=11, st1="sc1", st2="sc1", cpf=1, wpf=1, gam=0, cp=1, b1a=8, nm=5, padat=-1, padt=2000, p64=1, st3="sc1", b4a=1, df=2, pat="p00110011001100110011111111", ba1=1, bb1=1, ba2=7, bb2=7, ks=3, b3e=0, b1p=2, eb=28, dd=1, ca=3, ub=0, so=2)
for a in sys.argv[2:]:
    k, v = a.split("=")
    assert k in OPT, k
    OPT[k] = int(v) if v.lstrip("-").isdigit() else v.replace("+", " ")

def f2u(x): return struct.unpack("<I", struct.pack("<f", x))[0]
K0 = 2.0 * math.sqrt(2.0 / math.pi) * math.log2(math.e)
K1 = K0 * 0.044715
SC = K1 ** (1.0 / 3.0)
C0 = K0 / SC

L = []
def e(s): L.append("  " + s)
def lab(s): L.append(s + ":")
def cm(s): L.append("  ; " + s)
def vr(b, n): return f"v[{b}:{b+n-1}]"
def sr(b, n=2): return f"s[{b}:{b+n-1}]"

SLOT = 12288
SB = [47104, 116736, 0, 47104, 108544]
XB = [75776, 139264, 22528, 75776, 151552]
DWS = 106496
DWL = DWS + 5120
STB = [100352 + 4096 * (k & 1) for k in range(5)]
ROWP = 145 * 16
LDS_TOTAL = 163840
XBYTES = 384 * 384 * 192
ROWB = 384 * 192
ORDER = [0, 4, 5, 1, 2, 3, 9, 10, 11, 6, 7, 8]

sG = 3
sX, sO, sWS, sDS = 4, 8, 12, 20
sWB, sWP, sWJ = 16, 17, 18
sI4 = 19
sRET = 24
sFLG = 26
sDM = 27
sW = 28
sCU = 29
sT0, sT1, sT2, sT3 = 30, 31, 32, 33
sBASE = 34
sBFL = 39
sC0 = 44
sSC = 46
sDB, sDL = 48, 49
sSH = 50
sPC = 52
sJ1, sJ2 = 56, 57
sI1K = 58
sI3K = 59
sDBG = 60
sTS = 64
sWA, sWM = 100, 101

vTID = 0
vA1, vA2 = 1, 2
vPX = 3
vLIN = 4
vT0, vT1, vT2, vT3 = 5, 6, 7, 8
vIN = 9
vXW = 10
vWO = 11
vPK = 12
vIDX = 13
vFL = 14
vRD = 15
vPS = 14
vX = 16
vXP = 40
vO = 64
vO2 = 112
vH = [160, 176]
vT = 192
vF1 = 208
vF2 = 232
vRES = 232
vCW = 64
vREL = 138
vCA = 142
vSTA = 143
vACC = 144
vS = 192
vD = 200
vRES1 = 208

def stamp(i, fine=False):
    if OPT["fine"] >= 0 and not fine and 1 <= i <= 12: return
    if OPT["stamp"]:
        e(f"{'s_memtime' if OPT['stamp'] == 1 else 's_memrealtime'} s[{sTS+2*i}:{sTS+2*i+1}]")
def padpoint(i):
    if OPT["padat"] == i:
        lb = newlab("pad")
        lab(lb)
        e("s_sleep 2")
        e("s_memrealtime s[66:67]")
        e("s_waitcnt lgkmcnt(0)")
        e("s_sub_u32 s66, s66, s64")
        e(f"s_cmp_lt_u32 s66, {OPT['padt']}")
        e(f"s_cbranch_scc1 {lb}")
def bar(i=None):
    if i is not None and OPT["pre"]: stamp(i)
    e("s_barrier")
    if i is not None: padpoint(i)
    if i is not None and not OPT["pre"]: stamp(i)
uid = [0]
def newlab(p):
    uid[0] += 1
    return f"L_{p}_{uid[0]}"
def call(name): e(f"s_call_b64 {sr(sRET)}, {name}")
def ret(): e(f"s_setpc_b64 {sr(sRET)}")

class LQ:
    def __init__(self): self.q = []
    def op(self, s, tag=None):
        e(s); self.q.append(tag)
    def wait(self, tag):
        idx = [i for i, t in enumerate(self.q) if t == tag]
        if not idx: return
        n = len(self.q) - 1 - max(idx)
        e(f"s_waitcnt lgkmcnt({min(n, 14)})")
        self.q = self.q[max(idx) + 1:]

def block_base(k):
    if k == 0: t = sCU
    else:
        t = sT0
        if k < 4: e(f"s_add_u32 s{sT0}, s{sCU}, {32*k}")
        else:
            e(f"s_lshr_b32 s{sT0}, s{sCU}, 1")
            e(f"s_add_u32 s{sT0}, s{sT0}, 128")
    e(f"s_mul_i32 s{sT1}, s{t}, 171")
    e(f"s_lshr_b32 s{sT1}, s{sT1}, 10")
    e(f"s_mul_i32 s{sT2}, s{sT1}, 6")
    e(f"s_sub_u32 s{sT2}, s{t}, s{sT2}")
    e(f"s_add_u32 s{sT2}, s{sT2}, s3")
    e(f"s_mul_i32 s{sBASE+k}, s{sT1}, {16*ROWB}")
    e(f"s_mul_i32 s{sT3}, s{sT2}, {8*192}")
    e(f"s_add_u32 s{sBASE+k}, s{sBASE+k}, s{sT3}")
    if k == 4:
        e(f"s_and_b32 s{sT3}, s{sCU}, 1")
        e(f"s_mul_i32 s{sT3}, s{sT3}, {8*ROWB}")
        e(f"s_add_u32 s{sBASE+k}, s{sBASE+k}, s{sT3}")
    e(f"s_cmp_eq_u32 s{sT2}, 0")
    e(f"s_cselect_b32 s{sBFL+k}, 0, 8")
    e(f"s_cmp_eq_u32 s{sT2}, 47")
    e(f"s_cselect_b32 s{sBFL+k}, 4, s{sBFL+k}")

def calc_rel(js):
    e(f"s_mov_b32 s{sT0}, {ROWB - 145*16}")
    e(f"s_movk_i32 s{sT1}, 1338")
    for j in js:
        e(f"v_and_b32 v{vT0}, 255, v0")
        if j: e(f"v_add_u32 v{vT0}, {256*j}, v{vT0}")
        e(f"v_mul_u32_u24 v{vT2}, 7232, v{vT0}")
        e(f"v_lshrrev_b32 v{vT2}, 20, v{vT2}")
        e(f"v_mul_u32_u24 v{vT3}, 145, v{vT2}")
        e(f"v_sub_u32 v{vT3}, v{vT0}, v{vT3}")
        e(f"v_lshlrev_b32 v{vT0}, 4, v{vT0}")
        e(f"v_mad_u32_u24 v{vREL+j}, v{vT2}, s{sT0}, v{vT0}")
        e(f"v_mad_u32_u24 v{vT2}, v{vT3}, s{sT1}, s{sT1}")
        e(f"v_lshrrev_b32 v{vT2}, 16, v{vT2}")
        e(f"v_mad_i32_i24 v{vREL+j}, v{vT2}, -8, v{vREL+j}")
        e(f"v_subrev_u32 v{vT2}, 24, v{vT3}")
        e(f"v_lshrrev_b32 v{vT2}, 31, v{vT2}")
        e(f"v_lshl_or_b32 v{vFL}, v{vT2}, {j}, v{vFL}")
        e(f"v_sub_u32 v{vT2}, 120, v{vT3}")
        e(f"v_lshrrev_b32 v{vT2}, 31, v{vT2}")
        e(f"v_lshl_or_b32 v{vFL}, v{vT2}, {4+j}, v{vFL}")
for x in range(1024): assert (x * 7232) >> 20 == x // 145
for x in range(145): assert ((x + 1) * 1338) >> 16 == (x >= 48) + (x >= 97)

def dma_prep(k, js=(0, 1, 2, 3), g0=True):
    e(f"s_sub_u32 s{sDB}, s{sBASE+k}, {2*ROWB + 2*192}")
    e(f"s_add_u32 s{sDL}, s{sI1K}, {SB[k]}")
    e(f"v_lshrrev_b32 v{vT3}, s{sBFL+k}, v{vFL}")
    for j in js:
        e(f"v_bfe_i32 v{vD+j}, v{vT3}, {j}, 1")
        if g0:
            e(f"v_add_u32 v{vD+4+j}, s{sDB}, v{vREL+j}")
            e(f"v_or_b32 v{vD+4+j}, v{vD+4+j}, v{vD+j}")
        e(f"v_or_b32 v{vD+j}, v{vD+j}, v{vREL+j}")
def dma_packet(g, j):
    p = [f"s_add_u32 m0, s{sDL}, {7*g*ROWP + 4096*j}"]
    if g == 0: p += ["s_nop 0", f"buffer_load_dwordx4 v{vD+4+j}, {sr(sX,4)}, 0 offen lds"]
    else: p += [f"s_add_u32 s{sT1}, s{sDB}, {7*g*ROWB}", f"buffer_load_dwordx4 v{vD+j}, {sr(sX,4)}, s{sT1} offen lds"]
    return p
def dma_now(parts, last):
    n = 0
    for g, j in parts:
        sk = None
        if (g, j) == last:
            sk = newlab("sk")
            e(f"s_cmp_ge_u32 s{sI4}, 2")
            e(f"s_cbranch_scc1 {sk}")
        else: n += 1
        for x in dma_packet(g, j): e(x)
        if sk: lab(sk)
    return n
def set_mask(parts, last):
    m = sum(1 << (4 * g + j) for g, j in parts)
    if last in parts:
        e(f"s_cmp_ge_u32 s{sI4}, 2")
        e(f"s_movk_i32 s{sDM}, {m}")
        e(f"s_cselect_b32 s{sDM}, {m & ~(1 << (4*last[0] + last[1]))}, s{sDM}")
        return len(parts) - 1
    e(f"s_movk_i32 s{sDM}, {m}")
    return len(parts)
def wait2(n, extra=""):
    l1, l2 = newlab("wv"), newlab("wv")
    e(f"s_cmp_ge_u32 s{sI4}, 2")
    e(f"s_cbranch_scc1 {l1}")
    e(f"s_waitcnt vmcnt({n+1}) {extra}")
    e(f"s_branch {l2}")
    lab(l1)
    e(f"s_waitcnt vmcnt({n}) {extra}")
    lab(l2)
ALLP = [(g, j) for g in range(3) for j in range(4)]

def dma_w(slots):
    for j in slots:
        e(f"s_mul_i32 s{sT0}, s{sWJ}, {j}")
        e(f"s_add_u32 s{sT0}, s{sT0}, s{sWB}")
        for t in range(3):
            e(f"s_add_u32 m0, s{sI3K}, {j*SLOT + 1024*t}")
            if t: e(f"s_add_u32 s{sT0}, s{sT0}, s{sWP}")
            else: e("s_nop 0")
            e(f"buffer_load_dwordx4 v{vWO}, {sr(sWS,4)}, s{sT0} offen lds")
def w_packets(ja, jb):
    pk = []
    for t in range(3):
        p = []
        if t == 0:
            p += [f"s_mul_i32 s{sWA}, s{sG}, {jb - ja}", f"s_add_u32 s{sWA}, s{sWA}, {ja}",
                  f"s_mul_i32 s{sWM}, s{sWA}, {SLOT}", f"s_add_u32 s{sWM}, s{sWM}, s{sI3K}",
                  f"s_mul_i32 s{sWA}, s{sWA}, s{sWJ}", f"s_mov_b32 m0, s{sWM}", f"s_add_u32 s{sWA}, s{sWA}, s{sWB}"]
        else:
            p += [f"s_add_u32 m0, s{sWM}, {1024*t}", f"s_add_u32 s{sWA}, s{sWA}, s{sWP}"]
        p.append(f"buffer_load_dwordx4 v{vWO}, {sr(sWS,4)}, s{sWA} offen lds")
        pk.append(p)
    return pk

def zero16(a):
    z = vr(vCW, 2)
    e(f"v_mfma_f32_32x32x8_bf16 {vr(a,16)}, {z}, {z}, 0")
def pickup(k):
    e(f"v_add_u32 v{vT3}, {XB[k]}, v{vPK}")
    d = vX if k < 2 else vXP
    for s in range(6): e(f"ds_read_b128 {vr(d+4*s,4)}, v{vT3} offset:{1024*s}")
def conv_addr(k):
    if k < 4: e(f"v_add_u32 v{vCA}, {SB[k]}, v{vIN}")
    else:
        e(f"v_bfe_u32 v{vT1}, v{vTID}, 1, 3")
        e(f"v_mul_u32_u24 v{vT1}, {ROWP}, v{vT1}")
        e(f"v_sub_u32 v{vCA}, v{vIN}, v{vT1}")
        e(f"v_add_u32 v{vCA}, {SB[k]}, v{vCA}")

def conv_core(R):
    q = LQ()
    ring = [vXP, vXP + 8, vXP + 16] + ([vRES, vRES + 8, vRES + 16] if R == 2 else [vACC + 24, vACC + 32, vACC + 40])
    reads = []
    for qq in range(6):
        for f in range(3):
            for rp in range(4):
                d = ring[(qq * 3 + f) % 6] + 2 * rp
                reads.append((f"ds_read_b64 {vr(d,2)}, v{vCA} offset:{2*f*ROWP + (rp>>1)*776 + (rp&1)*192 + 8*qq}", qq * 3 + f))
    if OPT["cp"]: e("s_setprio 1")
    for r, t in reads[:14]: q.op(r, t)
    nxt = 14
    for idx in range(18):
        qq, f = divmod(idx, 3)
        q.wait(idx)
        for rho in range(R):
            a = vCW + 12 * qq + 4 * f + (2 if rho == 0 else 0)
            e(f"v_smfmac_f32_16x16x64_bf16 {vr(vACC + rho*24 + 4*qq, 4)}, {vr(a,4)}, {vr(ring[idx % 6], 8)}, v{vIDX}")
            lo, hi = (nxt + 2 * rho, nxt + 2 * rho + 2) if R == 2 else (nxt, nxt + 4)
            for r, t in reads[lo:hi]: q.op(r, t)
        nxt += 4
        if R == 2 and idx == OPT["gam"]:
            sk = newlab("gam")
            e(f"s_cmp_eq_u32 s{sFLG}, 0")
            e(f"s_cbranch_scc1 {sk}")
            e("s_barrier")
            lab(sk)
def conv_stats(R):
    e(f"v_add_u32 v{vT0}, s{sI1K}, v{vSTA}")
    for rho in range(R):
        a = vACC + rho * 24
        s2, q2 = vS + 4 * rho, vS + 4 * rho + 2
        e(f"v_pk_add_f32 {vr(s2,2)}, {vr(a,2)}, {vr(a+2,2)}")
        e(f"v_pk_mul_f32 {vr(q2,2)}, {vr(a,2)}, {vr(a,2)}")
        for i in range(1, 12):
            if i >= 2: e(f"v_pk_add_f32 {vr(s2,2)}, {vr(s2,2)}, {vr(a+2*i,2)}")
            e(f"v_pk_fma_f32 {vr(q2,2)}, {vr(a+2*i,2)}, {vr(a+2*i,2)}, {vr(q2,2)}")
    e(f"v_add_f32 v{vS}, v{vS}, v{vS+1}")
    e(f"v_add_f32 v{vS+1}, v{vS+2}, v{vS+3}")
    if R == 2:
        e(f"v_add_f32 v{vS+2}, v{vS+4}, v{vS+5}")
        e(f"v_add_f32 v{vS+3}, v{vS+6}, v{vS+7}")
    e(f"ds_write_b128 v{vT0}, {vr(vS,4)}")
    if OPT["cp"]: e("s_setprio 0")
    e("s_waitcnt lgkmcnt(0)")
def conv(k):
    cm(f"======== conv {k}")
    if k in (2, 3): pickup(k - 2)
    if k < 4:
        call("L_core")
        e(f"v_add_u32 v{vT3}, {SB[k]}, v{vRD}")
        d = vRES1 if k < 2 else vRES
        for i in range(12): e(f"ds_read_b64 {vr(d+2*i,2)}, v{vT3} offset:{32*(i>>1) + 8*(i&1)}")
        call("L_stats")
    else:
        conv_core(1)
        pickup(2)
        conv_stats(1)

def norm_reads(R):
    tb = vXP if R == 2 else vACC + 24
    for w in range(4): e(f"ds_read_b128 {vr(tb+4*w,4)}, v{vSTA} offset:{1024*w}")
def norm_body(R, packets):
    tb = vXP if R == 2 else vACC + 24
    ops = []
    o = ops.append
    for i in range(2 * R): o(f"v_add_f32 v{tb+i}, v{tb+i}, v{tb+4+i}")
    for i in range(2 * R): o(f"v_add_f32 v{tb+8+i}, v{tb+8+i}, v{tb+12+i}")
    for i in range(2 * R): o(f"v_add_f32 v{tb+i}, v{tb+i}, v{tb+8+i}")
    rr = range(R)
    sm = [tb + 2 * r for r in rr]; sq = [tb + 2 * r + 1 for r in rr]
    for r in rr: o(f"v_mul_f32 v{sm[r]}, {hex(f2u(1.0/96))}, v{sm[r]}")
    for r in rr: o(f"v_mul_f32 v{sq[r]}, {hex(f2u(1.0/96))}, v{sq[r]}")
    for r in rr: o(f"v_fma_f32 v{sq[r]}, -v{sm[r]}, v{sm[r]}, v{sq[r]}")
    for r in rr: o(f"v_max_f32 v{sq[r]}, 0, v{sq[r]}")
    for r in rr: o(f"v_add_f32 v{sq[r]}, {hex(f2u(1e-5))}, v{sq[r]}")
    for r in rr: o(f"v_rsq_f32 v{sq[r]}, v{sq[r]}")
    o("s_nop 0")
    for r in rr: o(f"v_mul_f32 v{sq[r]}, {hex(f2u(SC))}, v{sq[r]}")
    for r in rr: o(f"v_mul_f32 v{sm[r]}, v{sm[r]}, v{sq[r]}")
    for rho in rr:
        a = vACC + rho * 24
        for oc in range(3):
            for i in range(8): o(f"v_fma_f32 v{a+8*oc+i}, v{a+8*oc+i}, v{sq[rho]}, -v{sm[rho]}")
            for i in range(4): o(f"v_cvt_pk_bf16_f32 v{a+4*oc+i}, v{a+8*oc+2*i}, v{a+8*oc+2*i+1}")
            o(f"ds_write_b128 v{vT0}, {vr(a+4*oc,4)} offset:{rho*12288 + 512*oc}")
    pk = list(packets)
    if OPT["nm"] & 1:
        ops = [x for x in ops if not x.startswith("ds_write")] + [x for x in ops if x.startswith("ds_write")]
    if OPT["nm"] & 2:
        o2 = []
        for x in ops:
            o2 += ["s_setprio 2", x, "s_setprio 0"] if x.startswith("ds_write") else [x]
        ops = o2
        pk = [["s_setprio 2"] + p + ["s_setprio 0"] for p in pk]
    def emit_pk():
        if pk:
            for x in pk.pop(0): (lab(x[:-1]) if x.endswith(":") else e(x))
    fs = (lambda i: stamp(i, True)) if (OPT["fine"] == 7 and R == 2 and not pk) or (OPT["fine"] == 6 and R == 2 and pk) else (lambda i: None)
    fs(2)
    if not OPT["nm"] & 1:
        emit_pk(); emit_pk()
    e("s_waitcnt lgkmcnt(0)")
    fs(3)
    step = max(1, len(ops) // max(1, len(pk))) if pk and not OPT["nm"] & 1 else 0
    nw = 0
    for i, x in enumerate(ops):
        e(x)
        if i == 28: fs(4)
        if x.startswith("ds_write"):
            fs(5 + nw); nw += 1
        if step and (i + 1) % step == 0: emit_pk()
    while pk: emit_pk()
    e("s_waitcnt lgkmcnt(0)")
    fs(11)
def guarded():
    out = [dma_packet(g, j) for g, j in ALLP[:7]]
    sk = newlab("gd")
    out.append([f"s_cmp_eq_u32 s{sDM}, 0", f"s_cbranch_scc1 {sk}"] + dma_packet(1, 3) + [sk + ":"])
    return out
def norm(k, prep, nextk):
    cm(f"======== norm {k}")
    if (OPT["fine"] == 7 and k >= 2) or (OPT["fine"] == 6 and k < 2): stamp(1, True)
    if OPT["nm"] & 6: e("s_setprio 2")
    norm_reads(2)
    late = (OPT["nm"] & 1) and (k == 2 or (k == 3 and not OPT["nm"] & 4))
    if not late: prep()
    if OPT["nm"] & 6: e("s_setprio 0")
    e(f"v_add_u32 v{vT0}, {XB[k]}, v{vXW}")
    call("L_normd" if ((k == 0 and not OPT["b3e"]) or (k == 1 and not OPT["b4a"])) else "L_norm")
    if late: prep()
    if nextk is not None:
        for i in range(3 if nextk < 4 else 2): zero16(vACC + 16 * i)
        conv_addr(nextk)
    if (OPT["fine"] == 7 and k >= 2) or (OPT["fine"] == 6 and k < 2): stamp(12, True)

def load_cw():
    for q in range(6):
        for i in range(5):
            e(f"ds_read_b64_tr_b16 {vr(vCW+12*q+2+2*i,2)}, v{vS} offset:{960*i + 8*q}")

def setup_conv(grp):
    e(f"v_and_b32 v{vT0}, 14, v0")
    e(f"v_mul_u32_u24 v{vRD}, {ROWP}, v{vT0}")
    e(f"v_and_b32 v{vT0}, 1, v0")
    e(f"v_mul_u32_u24 v{vT0}, 776, v{vT0}")
    e(f"v_add_u32 v{vRD}, v{vRD}, v{vT0}")
    e(f"v_bfe_u32 v{vT2}, v0, 4, 1")
    e(f"v_mul_u32_u24 v{vT0}, {ROWP}, v{vT2}")
    e(f"v_bfe_u32 v{vT3}, v0, 5, 1")
    e(f"v_mul_u32_u24 v{vT1}, 384, v{vT3}")
    e(f"v_add3_u32 v{vIN}, v{vRD}, v{vT0}, v{vT1}")
    e(f"s_mul_i32 s{sT0}, s{sI4}, 48")
    e(f"v_add_u32 v{vIN}, s{sT0}, v{vIN}")
    e(f"v_mul_u32_u24 v{vT0}, 192, v{vT2}")
    e(f"v_lshl_add_u32 v{vPX}, v{vT3}, 4, v{vT0}")
    e(f"s_lshr_b32 s{sT0}, s{sI4}, 1")
    e(f"s_mul_i32 s{sT1}, s{sT0}, {ROWP}")
    e(f"s_and_b32 s{sT2}, s{sI4}, 1")
    e(f"s_mul_i32 s{sT3}, s{sT2}, 392")
    e(f"s_add_u32 s{sT1}, s{sT1}, s{sT3}")
    e(f"s_add_u32 s{sT1}, s{sT1}, {2*ROWP + 384}")
    e(f"v_add3_u32 v{vRD}, v{vRD}, v{vPX}, s{sT1}")
    e(f"v_mul_u32_u24 v{vT0}, 6144, v{vT3}")
    e(f"v_and_b32 v{vT2}, 31, v0")
    e(f"v_lshl_add_u32 v{vT0}, v{vT2}, 4, v{vT0}")
    e(f"s_mul_i32 s{sT0}, s{sI4}, 1536")
    e(f"v_add_u32 v{vXW}, s{sT0}, v{vT0}")
    e(f"s_mul_i32 s{sT0}, s{sI4}, 6144")
    e(f"v_add_u32 v{vPK}, s{sT0}, v{vLIN}")
    e(f"v_and_b32 v{vT2}, 3, v0")
    e(f"v_mul_u32_u24 v{vIDX}, 0x5555, v{vT2}")
    e(f"s_mov_b32 s{sFLG}, 0")

def setup_ffn():
    e(f"s_lshr_b32 s{sG}, s{sW}, 2")
    e(f"s_cmp_lt_u32 s{sI4}, 2")
    e(f"s_cselect_b32 s{sWS}, s96, s98")
    e(f"s_cselect_b32 s{sWS+1}, s97, s99")
    e(f"s_mov_b32 s{sWS+2}, 73728")
    e(f"s_mov_b32 s{sWS+3}, 0x20000")
    e(f"s_movk_i32 s{sWP}, 1024")
    e(f"s_cselect_b32 s{sWP}, 12288, s{sWP}")
    e(f"s_cselect_b32 s{sWJ}, 64, 6144")
    e(f"s_cselect_b32 s{sT0}, 768, 64")
    e(f"s_and_b32 s{sT1}, s{sI4}, 1")
    e(f"s_mul_i32 s{sWB}, s{sWP}, 3")
    e(f"s_mul_i32 s{sWB}, s{sWB}, s{sT1}")
    e(f"s_mul_i32 s{sI3K}, s{sI4}, 3072")
    e(f"v_bfe_u32 v{vT0}, v0, 2, 4")
    e(f"v_mul_u32_u24 v{vT0}, s{sT0}, v{vT0}")
    e(f"v_and_b32 v{vT2}, 3, v0")
    e(f"v_lshl_add_u32 v{vWO}, v{vT2}, 4, v{vT0}")
def setup_ffn2():
    e(f"s_mov_b32 s{sO+2}, {XBYTES}")
    e(f"s_mov_b32 s{sO+3}, 0x20000")
    e(f"v_and_b32 v{vT1}, 14, v0")
    e(f"s_mov_b32 s{sT3}, {ROWB}")
    e(f"v_mul_lo_u32 v{vT0}, v{vT1}, s{sT3}")
    e(f"v_and_b32 v{vT1}, 1, v0")
    e(f"v_mul_u32_u24 v{vT1}, 768, v{vT1}")
    e(f"v_add3_u32 v{vPX}, v{vPX}, v{vT0}, v{vT1}")
    e(f"s_lshr_b32 s{sT0}, s{sI4}, 1")
    e(f"s_mul_i32 s{sT0}, s{sT0}, {ROWB}")
    e(f"s_and_b32 s{sT2}, s{sI4}, 1")
    e(f"s_mul_i32 s{sT2}, s{sT2}, 384")
    e(f"s_add_u32 s{sT0}, s{sT0}, s{sT2}")
    e(f"s_cmp_eq_u32 s{sG}, 0")
    e(f"s_cselect_b32 s{sJ1}, s{sBASE}, s{sBASE+1}")
    e(f"s_cselect_b32 s{sJ2}, s{sBASE+2}, s{sBASE+3}")
    e(f"s_add_u32 s{sJ1}, s{sJ1}, s{sT0}")
    e(f"s_add_u32 s{sJ2}, s{sJ2}, s{sT0}")
    e(f"v_bfe_u32 v{vT0}, v0, 4, 1")
    e(f"v_lshlrev_b32 v{vT0}, 5, v{vT0}")
    e(f"v_and_b32 v{vT2}, 1, v0")
    e(f"v_lshl_add_u32 v{vT0}, v{vT2}, 4, v{vT0}")
    e(f"v_bfe_u32 v{vT2}, v0, 1, 1")
    e(f"v_lshl_add_u32 v{vT0}, v{vT2}, 3, v{vT0}")
    e(f"v_bfe_u32 v{vT2}, v0, 2, 2")
    e(f"v_bfe_u32 v{vT3}, v0, 5, 1")
    e(f"v_lshl_add_u32 v{vT2}, v{vT3}, 3, v{vT2}")
    e(f"v_lshl_add_u32 v{vA1}, v{vT2}, 6, v{vT0}")
    e(f"v_mul_u32_u24 v{vT2}, 192, v{vT2}")
    e(f"v_add_u32 v{vA2}, v{vT2}, v{vT0}")
    for r, v in ((sC0, C0), (sSC, SC)):
        e(f"s_mov_b32 s{r}, {hex(f2u(v))}")
        e(f"s_mov_b32 s{r+1}, {hex(f2u(v))}")

class Addr:
    def __init__(self): self.b = {vA1: 0, vA2: 0}
    def off(self, reg, slot, extra): return (slot - self.b[reg]) * SLOT + extra
    def ensure(self, reg, slot):
        if not (0 <= (slot - self.b[reg]) * SLOT and (slot - self.b[reg] + 1) * SLOT <= 65536):
            nb = {0: 0, 5: 1, 9: 7, 6: 6}.get(slot, slot)
            d = (nb - self.b[reg]) * SLOT
            if d > 0: e(f"v_add_u32 v{reg}, {d}, v{reg}")
            else: e(f"v_subrev_u32 v{reg}, {-d}, v{reg}")
            self.b[reg] = nb
AD = Addr()
def f1_reads(slot):
    AD.ensure(vA1, slot)
    return [f"ds_read_b64_tr_b16 {vr(vF1+4*s+2*t,2)}, v{vA1} offset:{AD.off(vA1, slot, (16*s+4*t)*64)}" for s in range(6) for t in range(2)]
def f2_reads(slot):
    AD.ensure(vA2, slot)
    return [f"ds_read_b64_tr_b16 {vr(vF2+12*s+4*T+2*t,2)}, v{vA2} offset:{AD.off(vA2, slot, 6144+(16*s+4*t)*192+64*T)}" for s in range(2) for T in range(3) for t in range(2)]
def g1(h, x):
    return [f"v_mfma_f32_32x32x16_bf16 {vr(h,16)}, {vr(vF1+4*s,4)}, {vr(x+4*s,4)}, {vr(h,16) if s else 0}" for s in range(6)]
def g2(o, y, zero=False):
    return [f"v_mfma_f32_32x32x16_bf16 {vr(o+16*T,16)}, {vr(vF2+12*s+4*T,4)}, {vr(y+8*s,4)}, {0 if (zero and s==0) else vr(o+16*T,16)}" for s in range(2) for T in range(3)]
def cvts(h, s): return [f"v_cvt_pk_bf16_f32 v{h+8*s+i}, v{h+8*s+2*i}, v{h+8*s+2*i+1}" for i in range(4)]
def pz(h):
    a = [f"v_pk_fma_f32 {vr(vT+2*i,2)}, {vr(h+2*i,2)}, {vr(h+2*i,2)}, {sr(sC0)}" for i in range(8)]
    b = [f"v_pk_mul_f32 {vr(vT+2*i,2)}, {vr(vT+2*i,2)}, {vr(h+2*i,2)} neg_lo:[1,0] neg_hi:[1,0]" for i in range(8)]
    return a + b
PEND = []
FQ = LQ()
def pphase(ops, ds, tag, nst=1):
    for r in ds: FQ.op(r, tag)
    for i in range(nst):
        if PEND:
            p = PEND.pop(0)
            for x in (p if isinstance(p, list) else [p]): e(x)
    for o in ops: e(o)
def mphase(mf, fill):
    for i in range(6):
        if mf: e(mf[i])
        for o in fill[i]: e(o)
def res_unpack(o, src):
    for i in range(24):
        e(f"v_lshlrev_b32 v{o+2*i}, 16, v{src+i}")
        e(f"v_and_b32 v{o+2*i+1}, 0xffff0000, v{src+i}")
def out_pack(dst, o, sbase, mod):
    for i in range(24): e(f"v_cvt_pk_bf16_f32 v{dst+i}, v{o+2*i}, v{o+2*i+1}")
    for i in (0, 2, 4):
        for r in range(4): e(f"v_permlane16_swap_b32 v{dst+4*i+r}, v{dst+4*i+4+r}")
    for i in range(6):
        PEND.append(f"buffer_store_dwordx4 {vr(dst+4*i,4)}, v{vPS}, {sr(sO,4)}, s{sbase} offen offset:{32*(i&~1) + 192*(i&1)} {mod}")
def hook(hooks, p, j):
    for f in hooks.get((p, j), []): f()
def ffn_prologue(steps, hooks):
    if not OPT["ub"]: res_unpack(vO, vRES1)
    for r in f1_reads(steps[0][0]): e(r)
    if not OPT["ub"]: res_unpack(vO2, vRES)
    else:
        sk = newlab("ub")
        e(f"s_cmp_lg_u32 s{sG}, 0")
        e(f"s_cbranch_scc1 {sk}")
        call("L_unp2")
        lab(sk)
    hook(hooks, "pre", 0)
    e("s_waitcnt lgkmcnt(0)")
    for m in g1(vH[0], steps[0][1]): e(m)
    if steps[1][0] != steps[0][0]:
        for r in f1_reads(steps[1][0]): FQ.op(r, "F1")
    else: e("s_nop 11")
    for o in pz(vH[0]): e(o)
def ffn_step(steps, hooks, u, nst=1):
    N = len(steps)
    cm(f"ustep {u}")
    ex = [f"v_exp_f32 v{vT+i}, v{vT+i}" for i in range(16)]
    rc = [f"v_rcp_f32 v{vT+i}, v{vT+i}" for i in range(16)]
    h, hn = vH[u & 1], vH[(u + 1) & 1]
    c = cvts(hn, 1) if u >= 1 else []
    hook(hooks, "m1", u)
    FQ.wait("F2")
    mphase(g2(steps[u-1][2], hn, steps[u-1][3]) if u >= 1 else [],
           [ex[0:2] + c[0:2], ex[2:4] + c[2:4], ex[4:7], ex[7:10], ex[10:13], ex[13:16]])
    hook(hooks, "p1", u)
    d = [f"v_pk_fma_f32 {vr(vT+2*i,2)}, {vr(vT+2*i,2)}, {sr(sSC)}, {sr(sSC)}" for i in range(8)]
    hasds = (u == 0 or steps[u][0] != steps[u-1][0])
    dd = OPT["dd"] if not hasds else 0
    d = [f"v_fma_f32 v{vT+i}, v{vT+i}, s{sSC}, s{sSC}" for i in range(2 * dd)] + d[dd:]
    pphase(d, f2_reads(steps[u][0]) if (u == 0 or steps[u][0] != steps[u-1][0]) else [], "F2", nst)
    hook(hooks, "m2", u)
    FQ.wait("F1")
    nf = OPT["df"]
    if OPT["ca"] and not (u + 2 < N and steps[u+2][0] != steps[u+1][0]): nf = OPT["ca"]
    ys = [f"v_mul_f32 v{h+i}, v{h+i}, v{vT+i}" for i in range(2 * nf)]
    mphase(g1(hn, steps[u+1][1]) if u + 1 < N else [],
           [rc[0:3], rc[3:6], rc[6:9], rc[9:12], rc[12:14] + ys[:2], rc[14:16] + ys[2:]])
    y = [f"v_pk_mul_f32 {vr(h+2*i,2)}, {vr(h+2*i,2)}, {vr(vT+2*i,2)}" for i in range(nf, 8)]
    hook(hooks, "p2", u)
    pphase(y + cvts(h, 0) + (pz(hn) if u + 1 < N else []),
           f1_reads(steps[u+2][0]) if (u + 2 < N and steps[u+2][0] != steps[u+1][0]) else [], "F1", nst)
    hook(hooks, "post", u)
    if OPT["fine"] == 9 and u % 2 == 1 and u < 24: stamp(1 + u // 2, True)
def ffn_epilogue(steps):
    h = vH[(len(steps) - 1) & 1]
    for o in cvts(h, 1): e(o)
    e("s_waitcnt lgkmcnt(0)")
    for m in g2(steps[-1][2], h, steps[-1][3]): e(m)

e("s_cmp_ge_u32 s2, 256")
e("s_cbranch_scc1 L_end")
e(f"s_load_dwordx2 s[{sX}:{sX+1}], s[0:1], 0")
e("s_load_dwordx4 s[24:27], s[0:1], 8")
e("s_load_dwordx4 s[96:99], s[0:1], 24")
e(f"s_load_dwordx2 s[{sO}:{sO+1}], s[0:1], 40")
if OPT["stamp"]:
    e(f"s_load_dwordx2 s[{sDBG}:{sDBG+1}], s[0:1], 56")
    e(f"s_mov_b32 s{sDBG+2}, {1 << 20}")
    e(f"s_mov_b32 s{sDBG+3}, 0x20000")
    e(f"s_memrealtime s[{sTS+28}:{sTS+29}]")
    stamp(0)
if OPT["padat"] >= 0: e("s_memrealtime s[64:65]")
e(f"s_getpc_b64 {sr(sPC)}")
lab("L_pc")
def code_pf(mask=None, add=0):
    if mask: e(f"v_and_b32 v{vT0}, {mask}, v0")
    e(f"v_lshlrev_b32 v{vT0}, 7, v{vT0 if mask else 0}")
    if add: e(f"v_add_u32 v{vT0}, {add}, v{vT0}")
    e(f"v_min_u32 v{vT0}, L_end-L_pc, v{vT0}")
    e(f"global_load_dword v255, v{vT0}, {sr(sPC)}")
if OPT["cpf"] == 1: code_pf()
e(f"s_mov_b32 s{sX+2}, {XBYTES}")
e(f"s_mov_b32 s{sX+3}, 0x20000")
e(f"v_lshrrev_b32 v{vT0}, 6, v0")
e(f"v_and_b32 v{vT1}, 63, v0")
e(f"v_readfirstlane_b32 s{sW}, v{vT0}")
e(f"v_lshlrev_b32 v{vLIN}, 4, v{vT1}")
e(f"s_lshr_b32 s{sCU}, s2, 3")
e(f"s_and_b32 s3, s2, 7")
e(f"s_mul_i32 s3, s3, 6")
e(f"s_and_b32 s{sI4}, s{sW}, 3")
e(f"s_lshl_b32 s{sI1K}, s{sI4}, 10")
e(f"v_mov_b32 v{vFL}, 0")
block_base(0)
e(f"s_cmp_ge_u32 s{sW}, 4")
e(f"s_cbranch_scc1 L_grpB")

def cw_addr():
    for i in range(7): e(f"v_pk_mov_b32 {vr(vCW+12*i,2)}, 0, 0")
    e(f"v_bfe_u32 v{vT0}, v0, 3, 3")
    e(f"v_and_b32 v{vT2}, 3, v0")
    e(f"v_sub_u32 v{vT0}, v{vT0}, v{vT2}")
    e(f"v_cmp_gt_u32 {sr(sT2)}, 5, v{vT0}")
    e(f"v_mul_u32_u24 v{vT0}, 192, v{vT0}")
    e(f"v_bfe_u32 v{vT2}, v0, 2, 1")
    e(f"s_movk_i32 s{sT0}, 5120")
    e(f"v_mad_u32_u24 v{vT0}, v{vT2}, s{sT0}, v{vT0}")
    e(f"v_mov_b32 v{vT2}, s{sT0}")
    e(f"v_cndmask_b32 v{vT0}, v{vT2}, v{vT0}, {sr(sT2)}")
    e(f"s_mul_i32 s{sT0}, s{sI4}, 48")
    e(f"s_add_u32 s{sT0}, s{sT0}, {DWS}")
    e(f"v_add_u32 v{vS}, s{sT0}, v{vT0}")
    for i in range(3): zero16(vACC + 16 * i)

e(f"v_subrev_u32 v{vT1}, 192, v{vLIN}")
e(f"s_movk_i32 s{sT0}, 576")
e(f"v_cmp_gt_u32 {sr(sT2)}, s{sT0}, v{vT1}")
e(f"s_cmp_eq_u32 s{sW}, 0")
e(f"s_cselect_b64 {sr(sT0)}, -1, 0")
e(f"v_cndmask_b32 v{vT1}, -1, v{vT1}, {sr(sT2)}")
e(f"v_cndmask_b32 v{vT1}, v{vT1}, v{vLIN}, {sr(sT0)}")
calc_rel([0, 1])
dma_prep(0, (0, 1))
e("s_waitcnt lgkmcnt(0)")
e(f"s_mov_b32 s{sDS}, s26")
e(f"s_mov_b32 s{sDS+1}, s27")
e(f"s_movk_i32 s{sDS+2}, 4800")
e(f"s_mov_b32 s{sDS+3}, 0x20000")
e(f"s_add_u32 m0, s{sI1K}, {DWS}")
e(f"s_mul_i32 s{sT0}, s{sI4}, 576")
e(f"buffer_load_dwordx4 v{vLIN}, {sr(sDS,4)}, s{sI1K} offen lds")
e(f"s_mul_i32 s{sT1}, s{sI4}, 960")
e(f"s_sub_u32 s{sT0}, s{sT0}, 576")
e(f"s_add_u32 s{sT1}, s{sT1}, {DWL}")
e(f"s_cmp_eq_u32 s{sW}, 0")
e(f"s_cselect_b32 s{sDS}, s26, s24")
e(f"s_cselect_b32 s{sDS+1}, s27, s25")
e(f"s_cselect_b32 s{sDS+2}, s{sDS+2}, 1728")
e(f"s_cselect_b32 m0, {DWS + 4096}, s{sT1}")
e(f"s_cselect_b32 s{sT0}, 4096, s{sT0}")
e(f"buffer_load_dwordx4 v{vT1}, {sr(sDS,4)}, s{sT0} offen lds")
n = dma_now([(g, j) for g in range(3) for j in (0, 1)], None)
if OPT["cpf"] == 2:
    code_pf(); n += 1
stamp(1)
cw_addr()
e(f"v_add_u32 v{vSTA}, {STB[0]}, v{vLIN}")
if OPT["so"]:
    call("L_setupc")
    conv_addr(0)
e(f"s_waitcnt vmcnt({n})")
bar(2)
call("L_setup")
if not OPT["so"]: conv_addr(0)
calc_rel([2, 3])
if OPT["so"]: call("L_setup2")
e(f"s_waitcnt vmcnt({1 if OPT['cpf'] == 2 else 0}) lgkmcnt(0)")
bar(3)
conv(0)
if not OPT["so"]: call("L_setup2")
dma_prep(3)
bar(4)
B3LO = [(0, 0), (0, 1), (0, 2), (0, 3), (1, 0), (1, 1), (1, 2)]
B3HI = [(1, 3), (2, 0), (2, 1), (2, 2), (2, 3)]
norm(0, (lambda: dma_now(B3LO, None)) if OPT["b3e"] else (lambda: e(f"s_mov_b32 s{sDM}, 0")), 2)
e(f"s_mov_b32 s{sFLG}, 1")
bar(5)
conv(2)
if OPT["b4a"]:
    dma_prep(4)
    n4 = dma_now(ALLP[:8], (1, 3))
    wait2(n4)
else: e("s_waitcnt vmcnt(0)")
bar(6)
norm(2, lambda: dma_w([0]), 4)
e("s_waitcnt vmcnt(3)")
bar(7)
conv(4)
call("L_setup3")
if OPT["ub"]: call("L_unp1")
e("s_waitcnt vmcnt(0)")
bar(8)
norm_reads(1)
e(f"v_add_u32 v{vT0}, {XB[4]}, v{vXW}")
norm_body(1, w_packets(1, 1) + w_packets(2, 2) + w_packets(3, 3))
e("s_branch L_ffn")
lab("L_setup")
load_cw()
if OPT["so"]:
    ret(); lab("L_setupc")
setup_conv(0); ret()
lab("L_setup2")
for k in (2, 3, 4): block_base(k)
setup_ffn(); ret()
lab("L_setup3"); setup_ffn2(); ret()
if OPT["ub"]:
    lab("L_unp1"); res_unpack(vO, vRES1); ret()
    lab("L_unp2"); res_unpack(vO2, vRES); ret()
lab("L_core"); conv_core(2); ret()
lab("L_stats"); conv_stats(2); ret()
if not (OPT["b3e"] and OPT["b4a"]):
    lab("L_normd"); norm_body(2, guarded()); ret()
lab("L_norm"); norm_body(2, []); ret()
lab("L_grpB")
if OPT["cpf"] == 2: code_pf()
if OPT["cpf"] == 3:
    code_pf(255); code_pf(255, 32768)
calc_rel([2, 3])
dma_prep(0, (2, 3))
e("s_waitcnt lgkmcnt(0)")
n = dma_now([(g, j) for g in range(3) for j in (2, 3)], (2, 3))
stamp(1)
cw_addr()
e(f"v_pk_mov_b32 {vr(vCW+2,2)}, 0, 0")
sk = newlab("zr")
e(f"s_cmp_ge_u32 s{sI4}, 2")
e(f"s_cbranch_scc1 {sk}")
e(f"s_mul_i32 s{sT0}, s{sI4}, 3840")
e(f"s_add_u32 s{sT0}, s{sT0}, {DWL}")
e(f"v_add_u32 v{vT0}, s{sT0}, v{vLIN}")
e(f"ds_write_b128 v{vT0}, {vr(vCW,4)}")
lab(sk)
e(f"v_add_u32 v{vSTA}, {STB[1]}, v{vLIN}")
block_base(1)
calc_rel([0, 1])
dma_prep(1)
n1 = dma_now(ALLP[:OPT["b1p"]], (2, 3))
e("s_waitcnt lgkmcnt(0)")
bar(2)
n1 += dma_now(ALLP[OPT["b1p"]:OPT["b1a"]], (2, 3))
call("L_setup")
if OPT["so"] == 1: call("L_setupc")
if OPT["so"] != 2: conv_addr(1)
e(f"s_waitcnt vmcnt({n1})")
bar(3)
dma_now(ALLP[OPT["b1a"]:], (2, 3))
block_base(2)
dma_prep(2)
n2 = dma_now(ALLP, (2, 3))
if OPT["so"] == 2:
    call("L_setupc"); conv_addr(1)
call("L_setup2")
wait2(n2, "lgkmcnt(0)")
if OPT["wpf"]:
    sk = newlab("wpf")
    e(f"s_cmp_lg_u32 s{sW}, 7")
    e(f"s_cbranch_scc1 {sk}")
    e(f"s_cmp_ge_u32 s{sCU}, 18")
    e(f"s_cbranch_scc1 {sk}")
    e(f"s_cmp_lt_u32 s{sCU}, 9")
    e(f"s_cselect_b32 s{sT0}, s96, s98")
    e(f"s_cselect_b32 s{sT1}, s97, s99")
    e(f"s_cselect_b32 s{sT2}, 0, 9")
    e(f"s_sub_u32 s{sT2}, s{sCU}, s{sT2}")
    e(f"s_lshl_b32 s{sT2}, s{sT2}, 13")
    e(f"v_lshl_add_u32 v{vT0}, v{vLIN}, 3, s{sT2}")
    e(f"global_load_dword v{vX}, v{vT0}, {sr(sT0)}")
    lab(sk)
bar(4)
conv(1)
call("L_setup3")
e("s_waitcnt vmcnt(0)")
bar(5)
n4 = [0]
def prep1():
    dma_prep(3, g0=False)
    e("s_barrier")
    dma_now(B3HI, (2, 3))
    if OPT["b4a"]: return
    dma_prep(4)
    e(f"s_cmp_lt_u32 s{sI4}, 2")
    e(f"s_cselect_b32 s{sDM}, 1, 0")
    n4[0] = 7
norm(1, prep1, 3)
e(f"s_waitcnt vmcnt({n4[0]})")
bar(6)
conv(3)
e("s_waitcnt vmcnt(0)")
bar(7)
norm(3, lambda: dma_w([4, 5]), None)
if OPT["ub"]:
    call("L_unp1"); call("L_unp2")
e("s_waitcnt vmcnt(0)")
bar(8)
pickup(3)
lab("L_ffn")
stamp(9)

KS = OPT["ks"]
steps24 = [(j, vX, vO, False) for j in ORDER[:KS]] + [(j, x, o, False) for j in ORDER[KS:] for x, o in ((vX, vO), (vXP, vO2))] + [(j, vXP, vO2, False) for j in ORDER[:KS]]
first = lambda j: min(u for u, st in enumerate(steps24) if st[0] == j)
steps30 = steps24 + [(12 + j, vX, vO, j == 0) for j in range(6)]
hooks = {}
def addhook(p, j, f): hooks.setdefault((p, j), []).append(f)
def h_ps():
    e(f"v_bfe_u32 v{vT0}, v0, 4, 1")
    e(f"v_mul_u32_u24 v{vT0}, 160, v{vT0}")
    e(f"v_sub_u32 v{vPS}, v{vPX}, v{vT0}")
addhook("pre", 0, h_ps)
def h_bar(grp):
    def f():
        sk = None
        if grp is not None:
            sk = newlab("gb")
            e(f"s_cmp_lg_u32 s{sG}, {grp}")
            e(f"s_cbranch_scc1 {sk}")
        e("s_waitcnt vmcnt(0)")
        e("s_barrier")
        if sk: lab(sk)
    return f
PEND.extend(w_packets(9, 10))
for ua, ub in ((OPT["ba1"], OPT["bb1"]), (OPT["ba2"], OPT["bb2"])):
    if ua == ub: addhook("p2", ua, h_bar(None))
    else:
        addhook("p2", ua, h_bar(0)); addhook("p2", ub, h_bar(1))
assert max(OPT["ba1"], OPT["bb1"]) <= first(1) - 2 and max(OPT["ba2"], OPT["bb2"]) <= first(9) - 2 and min(OPT["ba2"], OPT["bb2"]) >= max(OPT["ba1"], OPT["bb1"]) + 3 and min(OPT["ba1"], OPT["bb1"]) >= 1
addhook("p2", max(OPT["ba1"], OPT["bb1"]), lambda: PEND.extend(w_packets(11, 6) + w_packets(7, 8)))
def setprio_b(p):
    sk = newlab("prio")
    e(f"s_cmp_lt_u32 s{sW}, 4")
    e(f"s_cbranch_scc1 {sk}")
    e(f"s_setprio {p}")
    lab(sk)
P = OPT["prio"]
if OPT["pat"]:
    pat = OPT["pat"][1:]
    cur = "0"
    for j, ch in enumerate(pat):
        if ch != cur:
            addhook("m1", j, (lambda p: (lambda: setprio_b(p)))(int(ch))); cur = ch
else:
  for j in range(0, 20):
    if j < OPT["pfix"]:
        if P and (j + 1) % P == 0: addhook("post", j, (lambda p: (lambda: setprio_b(p)))(((j + 1) // P) & 1))
    elif j == OPT["pfix"]: addhook("post", j, lambda: setprio_b(1))
addhook("post", 12, lambda: stamp(10))
addhook("post", 23 - KS, lambda: out_pack(vXP if KS < 3 else vO, vO, sJ1, OPT["st1"]))
assert KS == 0 or KS >= 3
ffn_prologue(steps24, hooks)
for j in range(22): ffn_step(steps24 if j < 21 else steps24, hooks, j)
e(f"s_cmp_ge_u32 s{sW}, 4")
e("s_cbranch_scc1 L_tailB")
save = dict(AD.b); saveq = list(FQ.q); savep = list(PEND)
for j in range(22, 24): ffn_step(steps24, hooks, j)
ffn_epilogue(steps24)
while PEND: e(PEND.pop(0))
e("s_nop 10")
out_pack(vO2, vO2, sJ2, OPT["st3"])
while PEND: e(PEND.pop(0))
stamp(11)
e("s_barrier"); e("s_barrier")
stamp(12)
e("s_branch L_fin")
lab("L_tailB")
AD.b = save; FQ.q = saveq; PEND.extend(savep)
vSR = vO2 + 24
def h_x4():
    e(f"s_lshr_b32 s{sT0}, s{sI4}, 1")
    e(f"s_mul_i32 s{sT1}, s{sT0}, 6144")
    e(f"s_add_u32 s{sT1}, s{sT1}, {XB[4]}")
    e(f"v_add_u32 v{vT0}, s{sT1}, v{vLIN}")
    for s_ in range(6): FQ.op(f"ds_read_b128 {vr(vX+4*s_,4)}, v{vT0} offset:{1024*s_}", "F1")
    e(f"v_bfe_u32 v{vT1}, v{vTID}, 1, 3")
    e(f"s_mov_b32 s{sT1}, {ROWB}")
    e(f"v_mul_lo_u32 v{vT1}, v{vT1}, s{sT1}")
    e(f"v_sub_u32 v{vIN}, v{vPX}, v{vT1}")
    e(f"s_mul_i32 s{sT0}, s{sT0}, 384")
    e(f"s_add_u32 s{sT0}, s{sT0}, s{sBASE+4}")
    e(f"s_and_b32 s{sT1}, s{sI4}, 1")
    e(f"s_mul_i32 s{sT1}, s{sT1}, 128")
    e(f"s_add_u32 s{sSH}, s{sT0}, s{sT1}")
    e(f"v_sub_u32 v{vRD}, v{vPS}, v{vT1}")
addhook("p2", 22, h_x4)
def rebase(reg):
    def f():
        e(f"s_and_b32 s{sT0}, s{sW}, 1")
        e(f"s_mul_i32 s{sT0}, s{sT0}, {6*SLOT}")
        e(f"s_sub_u32 s{sT0}, s{sT0}, {AD.b[reg]*SLOT}")
        e(f"v_add_u32 v{reg}, s{sT0}, v{reg}")
        AD.b[reg] = 12
    return f
addhook("p2", 22, rebase(vA1))
addhook("p1", 24, rebase(vA2))
def h_o2():
    out_pack(vO2, vO2, sJ2, OPT["st2"])
    for t in range(4):
        PEND.insert(t, f"buffer_load_dwordx4 {vr(vSR+4*t,4)}, v{vIN}, {sr(sX,4)}, s{sSH} offen offset:{32*t}")
    global NAFTER
    NAFTER = len(PEND) - 4
addhook("post", 24, h_o2)
vQ = vO2
def h_early():
    assert not PEND
    e(f"s_mul_i32 s{sT0}, s{sI4}, 8192")
    e(f"v_add_u32 v{vT0}, s{sT0}, v{vLIN}")
    e(f"v_xor_b32 v{vT1}, 8192, v{vT0}")
    e(f"s_waitcnt vmcnt({NAFTER})")
    for i in range(16):
        e(f"v_lshlrev_b32 v{vQE+2*i}, 16, v{vSR+i}")
        e(f"v_and_b32 v{vQE+2*i+1}, 0xffff0000, v{vSR+i}")
    e("s_barrier")
vQE = 32
addhook("post", 28, h_early)
for j in range(22, 30):
    if j == 25 and KS: assert all("s%d offen offset" % sJ1 not in str(p) for p in PEND)
    ffn_step(steps30, hooks, j, 2 if (KS == 0 or j == 25) else 1)
assert not PEND
ffn_epilogue(steps30)
stamp(11)
vQ = vQE
vR = 208
e("s_nop 10")
e(f"s_bitcmp1_b32 s{sI4}, 0")
e("s_cbranch_scc1 L_odd")
for half in range(2):
    if half: lab("L_odd")
    keep, nk, send, nsd = (vO, 32, vO + 32, 16) if half == 0 else (vO + 32, 16, vO, 32)
    for u in range(nsd // 4): e(f"ds_write_b128 v{vT0}, {vr(send+4*u,4)} offset:{1024*u}")
    for i in range(nk // 2): e(f"v_pk_add_f32 {vr(vQ+2*i,2)}, {vr(vQ+2*i,2)}, {vr(keep+2*i,2)}")
    e("s_waitcnt lgkmcnt(0)")
    e("s_barrier")
    stamp(12)
    for u in range(nk // 4): e(f"ds_read_b128 {vr(vR+4*u,4)}, v{vT1} offset:{1024*u}")
    for t in range(nk // 16):
        e(f"s_waitcnt lgkmcnt({nk // 4 - 4*(t+1)})")
        for i in range(8): e(f"v_pk_add_f32 {vr(vQ+16*t+2*i,2)}, {vr(vQ+16*t+2*i,2)}, {vr(vR+16*t+2*i,2)}")
        for i in range(8): e(f"v_cvt_pk_bf16_f32 v{vO+8*t+i}, v{vQ+16*t+2*i}, v{vQ+16*t+2*i+1}")
        e("s_nop 1")
        for r in range(4): e(f"v_permlane16_swap_b32 v{vO+8*t+r}, v{vO+8*t+4+r}")
        for i in range(2):
            e(f"buffer_store_dwordx4 {vr(vO+8*t+4*i,4)}, v{vRD}, {sr(sO,4)}, s{sSH} offen offset:{64*t + 192*i} {OPT['st3']}")
    if half == 0: e("s_branch L_fin")
lab("L_fin")
if OPT["stamp"]:
    e("s_waitcnt vmcnt(0)")
    stamp(13)
    e(f"s_memrealtime s[{sTS+30}:{sTS+31}]")
    e("s_waitcnt lgkmcnt(0)")
    e(f"s_lshl_b32 s{sT0}, s2, 3")
    e(f"s_add_u32 s{sT0}, s{sT0}, s{sW}")
    e(f"s_lshl_b32 s{sT0}, s{sT0}, 6")
    e(f"v_mov_b32 v{vT0}, 0")
    for i in range(16):
        e(f"v_mov_b32 v{vT1}, s{sTS+2*i}")
        e(f"buffer_store_dword v{vT1}, v{vT0}, {sr(sDBG,4)}, s{sT0} offen offset:{4*i}")
lab("L_end")
e("s_endpgm")

ref = open(f"cdna_kernels/{NAME}.s.ref").read().splitlines()
head = [l for l in ref if l.startswith(";") and "@launch" not in l]
out = "\n".join(head) + f"\n; @launch grid=(256,1,1) block=(512,1,1) lds={LDS_TOTAL}\n"
out += f""".amdgcn_target "amdgcn-amd-amdhsa--gfx950"
.text
.globl {NAME}_kernel
.p2align 8
.type {NAME}_kernel,@function
{NAME}_kernel:
""" + "\n".join(L) + f"""
.section .rodata,"a"
.p2align 6
.amdhsa_kernel {NAME}_kernel
  .amdhsa_next_free_vgpr 256
  .amdhsa_next_free_sgpr 102
  .amdhsa_accum_offset 256
  .amdhsa_group_segment_fixed_size 0
  .amdhsa_kernarg_size 64
  .amdhsa_user_sgpr_count 2
  .amdhsa_user_sgpr_kernarg_segment_ptr 1
  .amdhsa_system_sgpr_workgroup_id_x 1
.end_amdhsa_kernel
"""
open(sys.argv[1], "w").write(out)
```
